```python
import torch

def _softmax(x, axis=-1):
    return torch.softmax(x, dim=axis)
def _gelu(x):
    return torch.nn.functional.gelu(x, approximate="tanh")
def _silu(x):
    return torch.nn.functional.silu(x)
def _sigmoid(x):
    return torch.sigmoid(x)
def _layernorm(x, axis=-1, eps=1e-5):
    m = x.mean(dim=axis, keepdim=True)
    v = x.var(dim=axis, keepdim=True, unbiased=False)
    return (x - m) / torch.sqrt(v + eps)
def _scatter_add(tgt, idx, src, axis=0):
    return tgt.clone().index_add_(axis, idx, src)
def _segment_sum(src, seg, n):
    out = torch.zeros((n,) + src.shape[1:], dtype=src.dtype)
    return out.index_add_(0, seg, src)
def _pad(x, pw):
    flat = tuple(v for pair in reversed(pw) for v in pair)
    return torch.nn.functional.pad(x, flat)

kernel_name = 'interleave_layers__spectral_fnet__swiglu_ffn__prompt'

def setup_inputs():

    _w = (lambda a: (lambda t: t.to(torch.bfloat16) if t.is_floating_point() else t)(torch.as_tensor(a)))
    def _A_setup():
        B, S, D = 1, 2048, 512
        ns = torch.arange(S)[:, None] * torch.arange(S)[None, :]
        nd = torch.arange(D)[:, None] * torch.arange(D)[None, :]
        Ws_re = torch.cos(-2.0 * torch.pi * ns / S).to(float)
        Ws_im = torch.sin(-2.0 * torch.pi * ns / S).to(float)
        Wd_re = torch.cos(-2.0 * torch.pi * nd / D).to(float)
        Wd_im = torch.sin(-2.0 * torch.pi * nd / D).to(float)
        return {
            "x": _w((lambda *s: torch.randn(*s, dtype=torch.bfloat16) * 0.05)(B, S, D)),
            "dft_seq_re": _w(Ws_re),
            "dft_seq_im": _w(Ws_im),
            "dft_hid_re": _w(Wd_re),
            "dft_hid_im": _w(Wd_im),
        }
    _A_in = _A_setup()

    def _B_setup():
        B, S, D, F = 1, 2048, 512, 1376
        return {
            "x": _w((lambda *s: torch.randn(*s, dtype=torch.bfloat16) * 0.05)(B, S, D)),
            "w_gate": _w((lambda *s: torch.randn(*s, dtype=torch.bfloat16) * 0.4)(D, F)),
            "w_up": _w((lambda *s: torch.randn(*s, dtype=torch.bfloat16) * 0.4)(D, F)),
            "w_down": _w((lambda *s: torch.randn(*s, dtype=torch.bfloat16) * 0.4)(F, D)),
        }
    _B_in = _B_setup()

    return {
        "A_x": _A_in["x"],
        "A_dft_seq_re": _A_in["dft_seq_re"],
        "A_dft_seq_im": _A_in["dft_seq_im"],
        "A_dft_hid_re": _A_in["dft_hid_re"],
        "A_dft_hid_im": _A_in["dft_hid_im"],
        "B_x": _B_in["x"],
        "B_w_gate": _B_in["w_gate"],
        "B_w_up": _B_in["w_up"],
        "B_w_down": _B_in["w_down"],
    }

def reference(A_x, A_dft_seq_re, A_dft_seq_im, A_dft_hid_re, A_dft_hid_im, B_x, B_w_gate, B_w_up, B_w_down):
    def _A_ref(x, dft_seq_re, dft_seq_im, dft_hid_re, dft_hid_im):
        a = torch.einsum("bsd,ed->bse", x, dft_hid_re)
        b = torch.einsum("bsd,ed->bse", x, dft_hid_im)
        y = torch.einsum("ts,bse->bte", dft_seq_re, a) - torch.einsum("ts,bse->bte", dft_seq_im, b)
        return y

    def _B_ref(x, w_gate, w_up, w_down):
        g = _silu(x @ w_gate)
        u = x @ w_up
        return (g * u) @ w_down

    x = A_x
    x = x + _A_ref(_layernorm(x, axis=-1), A_dft_seq_re, A_dft_seq_im, A_dft_hid_re, A_dft_hid_im)
    x = x + _B_ref(_layernorm(x, axis=-1), B_w_gate, B_w_up, B_w_down)
    x = x + _A_ref(_layernorm(x, axis=-1), A_dft_seq_re, A_dft_seq_im, A_dft_hid_re, A_dft_hid_im)
    x = x + _B_ref(_layernorm(x, axis=-1), B_w_gate, B_w_up, B_w_down)
    return x
```

```python
import re

TRANS = ("v_exp_f32", "v_log_f32", "v_rcp_f32", "v_rsq_f32", "v_sqrt_f32", "v_sin_f32", "v_cos_f32")
REG = re.compile(r"^-?\|?(v|a|s)(\d+)\|?$|^-?(v|a|s)\[(\d+):(\d+)\]$")


def regs_of(tok):
    tok = tok.strip()
    if tok in ("vcc",):
        return [("s", 106), ("s", 107)]
    if tok == "exec":
        return [("s", 126), ("s", 127)]
    if tok == "m0":
        return [("s", 124)]
    m = REG.match(tok)
    if not m:
        return []
    if m.group(1):
        return [(m.group(1), int(m.group(2)))]
    return [(m.group(3), r) for r in range(int(m.group(4)), int(m.group(5)) + 1)]


def split_ops(rest):
    out, depth, cur = [], 0, ""
    for ch in rest:
        if ch == "[":
            depth += 1
        if ch == "]":
            depth -= 1
        if ch == "," and depth == 0:
            out.append(cur.strip()); cur = ""
        else:
            cur += ch
    if cur.strip():
        out.append(cur.strip())
    if out:
        last = out[-1].split()
        out[-1] = last[0]
        mods = last[1:]
    else:
        mods = []
    return out, mods


class Ins:
    def __init__(self, text):
        self.text = text
        t = text.split(";")[0].strip()
        self.label = t[:-1] if t.endswith(":") else None
        self.directive = t.startswith(".")
        self.op = ""; self.rd = []; self.wr = []; self.kind = "other"; self.mods = []
        self.cregs = []; self.ab = []; self.data = []
        if self.label or self.directive or not t:
            return
        p = t.split(None, 1)
        self.op = p[0]
        ops, self.mods = split_ops(p[1]) if len(p) > 1 else ([], [])
        R = [regs_of(o) for o in ops]
        op = self.op
        flat = lambda L: [r for x in L for r in x]
        if op.startswith("v_mfma"):
            self.kind = "mfma"; self.wr = R[0]; self.ab = R[1] + R[2]; self.cregs = R[3]; self.rd = self.ab + self.cregs
        elif op.startswith("v_"):
            self.kind = "valu"
            if op.startswith("v_permlane") or op.startswith("v_swap"):
                self.wr = R[0] + R[1]; self.rd = R[0] + R[1]
            elif op.startswith(("v_add_co", "v_sub_co", "v_addc_co", "v_subb_co")):
                self.wr = R[0] + R[1]; self.rd = flat(R[2:])
            else:
                self.wr = R[0]; self.rd = flat(R[1:])
                if op.startswith(("v_fmac", "v_pk_fmac", "v_dot2c")) or "dpp" in op:
                    self.rd = self.rd + (R[0] if op.startswith(("v_fmac", "v_pk_fmac", "v_dot2c")) else [])
                if op.startswith("v_cndmask") and len(ops) == 3:
                    self.rd += regs_of("vcc")
        elif op.startswith(("buffer_", "global_")):
            self.kind = "vmem"
            lds = "lds" in self.mods
            if op.startswith("buffer_load"):
                if lds:
                    self.rd = flat(R) + regs_of("m0")
                else:
                    self.wr = R[0]; self.rd = flat(R[1:])
            elif op.startswith("global_load"):
                self.wr = R[0]; self.rd = flat(R[1:])
            elif op.startswith("buffer_"):
                self.rd = flat(R); self.data = R[0]
            else:
                self.rd = flat(R); self.data = R[1]
            self.lds = lds
        elif op.startswith("ds_"):
            self.kind = "ds"
            if op.startswith("ds_read"):
                self.wr = R[0]; self.rd = flat(R[1:])
            else:
                self.rd = flat(R)
        elif op.startswith("s_"):
            self.kind = "salu"
            if op.startswith(("s_cmp", "s_cbranch", "s_branch", "s_waitcnt", "s_barrier", "s_nop", "s_sleep", "s_endpgm", "s_setprio", "s_bitcmp")):
                self.rd = flat(R)
            else:
                self.wr = R[0] if R else []; self.rd = flat(R[1:])
                if "saveexec" in op:
                    self.wr = self.wr + regs_of("exec")
        self.target = None
        if op.startswith(("s_cbranch", "s_branch")):
            self.target = ops[0]

    def states(self):
        if self.label or self.directive or not self.op:
            return 0
        if self.op == "s_nop":
            return int(self.text.split()[1]) + 1
        return 1


def need(ins, st):
    n = 0
    def chk(kind, regs, k):
        nonlocal n
        for r in regs:
            d = st.get((kind, r))
            if d is not None and k - d > n:
                n = k - d
    op = ins.op
    if ins.kind == "mfma":
        chk("valu", ins.rd, 2)
        chk("mfma", ins.ab, 8)
        if ins.cregs != ins.wr:
            chk("mfma", ins.cregs, 8); chk("mfma", ins.wr, 8)
    elif ins.kind == "valu":
        chk("mfma", ins.rd + ins.wr, 8)
        chk("mfmac", ins.wr, 3)
        if not op.startswith(TRANS):
            chk("trans", ins.rd, 1)
        if op.startswith("v_permlane") or "dpp" in op or any(m.startswith(("row_", "quad_perm")) for m in ins.mods):
            chk("valu", ins.rd, 2)
        if op.startswith(("v_readfirstlane", "v_readlane")):
            chk("valu", ins.rd, 1)
        chk("valu", [r for r in ins.rd if r[0] == "s"], 2)
        chk("stdata", ins.wr, 2)
    elif ins.kind in ("vmem", "ds"):
        chk("mfma", ins.rd + ins.wr, 8)
        chk("valu", [r for r in ins.rd if r[0] == "s"], 5)
        chk("stdata", ins.wr, 1)
        if ins.kind == "vmem" and getattr(ins, "lds", False):
            chk("m0", regs_of("m0"), 1)
    elif ins.kind == "salu":
        chk("valu", [r for r in ins.rd if r[0] == "s"], 1)
    return n


def advance(ins, st):
    k = ins.states()
    out = {key: d + k for key, d in st.items() if d + k < 12}
    if ins.kind == "mfma":
        for r in ins.wr: out[("mfma", r)] = 0
        for r in ins.cregs: out[("mfmac", r)] = 0
    elif ins.kind == "valu":
        for r in ins.wr:
            out[("valu", r)] = 0
            out.pop(("trans", r), None)
            if ins.op.startswith(TRANS): out[("trans", r)] = 0
    elif ins.kind == "vmem":
        if len(ins.data) >= 3:
            for r in ins.data: out[("stdata", r)] = 0
    elif ins.kind == "salu":
        if ("s", 124) in ins.wr: out[("m0", ("s", 124))] = 0
    return out


def pad(lines):
    ins = [Ins(l) for l in lines]
    at_label = {}
    for _ in range(4):
        out, st = [], {}
        changed = False
        for i in ins:
            if i.label:
                for key, d in at_label.get(i.label, {}).items():
                    if key not in st or d < st[key]: st[key] = d
                out.append(i); continue
            if i.directive or not i.op:
                out.append(i); continue
            n = need(i, st)
            while n > 0:
                k = min(n, 16)
                nop = Ins(f"    s_nop {k-1}")
                out.append(nop); st = advance(nop, st); n -= k
            out.append(i); st = advance(i, st)
            tgt = getattr(i, "target", None)
            if tgt:
                cur = at_label.setdefault(tgt, {})
                for key, d in st.items():
                    if key not in cur or d < cur[key]:
                        cur[key] = d; changed = True
                if i.op == "s_branch": st = {}
            if i.op == "s_endpgm": st = {}
        if not changed:
            break
    return [i.text for i in out]


class Asm:
    def __init__(self):
        self.lines = []
        self.vm = []
        self.lg = []

    def __call__(self, text, tag=None):
        for l in text.strip("\n").split("\n"):
            s = l.strip()
            if not s: continue
            self.lines.append(s if s.endswith(":") or s.startswith(".") else "    " + s)
            op = s.split()[0]
            if op.startswith(("buffer_", "global_")): self.vm.append(tag)
            if op.startswith("ds_"): self.lg.append(tag)

    def vm_count(self, tag):
        idx = max(i for i, t in enumerate(self.vm) if t == tag)
        return sum(1 for t in self.vm[idx + 1:] if t != "cond")

    def lg_count(self, tag):
        idx = max(i for i, t in enumerate(self.lg) if t == tag)
        return len(self.lg) - 1 - idx

    def wait_vm(self, tag):
        if tag not in self.vm: return
        n = self.vm_count(tag)
        if n <= 63: self(f"s_waitcnt vmcnt({n})")
        else: self("s_waitcnt vmcnt(63)"); assert False, "vmcnt overflow"

    def wait_lg(self, tag):
        if tag not in self.lg: return
        self(f"s_waitcnt lgkmcnt({min(self.lg_count(tag), 15)})")
        assert self.lg_count(tag) <= 15

    def vm0(self):
        self("s_waitcnt vmcnt(0)"); self.vm = []

    def lg0(self):
        self("s_waitcnt lgkmcnt(0)"); self.lg = []
```

```python
import sys
from asmlib import Asm, pad

NAME = "interleave_layers__spectral_fnet__swiglu_ffn__prompt"
MB = 1 << 20
GF, CF, ST, TSO = 0x1000, 0x10000, 0x20000, 0xA0000
Y, XN, X1, X2, W1F, W2F, H = 0x100000, 0x500000, 0x900000, 0xD00000, 0xF00000, 0x1200000, 0x1400000
HL = 0x580000
YB, ZB = 81664, 147200
RB, IB = 81664, 147200
LDS_BYTES = 163840
SPIN = 400000

def f2u(x):
    import struct
    return "0x%08x" % struct.unpack("<I", struct.pack("<f", x))[0]


def gen(ts=False):
    A = Asm()
    nts = [0]

    def TS():
        if not ts: return
        k = nts[0]; nts[0] += 1
        A(f"""s_memrealtime s[80:81]
              s_waitcnt lgkmcnt(0)
              s_mul_i32 s82, s39, 21
              s_add_u32 s82, s82, {k}
              v_cmp_eq_u32 vcc, s82, v0
              v_mov_b32 v28, s80
              v_cndmask_b32 v31, v31, v28, vcc""")
        A.lg = []

    def poll(label, load, regs, mask=None):
        if mask: A(f"s_mov_b64 exec, {mask}")
        A("s_mov_b32 s70, 0")
        A(f"{label}:")
        A(load)
        A("s_waitcnt vmcnt(0)")
        A(f"v_cmp_eq_u32 vcc, s38, v{regs[0]}")
        for k, r in enumerate(regs[1:]):
            A(f"v_cmp_eq_u32 s[{72+2*k}:{73+2*k}], s38, v{r}")
        for k, r in enumerate(regs[1:]):
            A(f"s_and_b64 vcc, vcc, s[{72+2*k}:{73+2*k}]")
        A(f"""s_cmp_eq_u64 vcc, exec
              s_cbranch_scc1 {label}_ok
              s_add_u32 s70, s70, 1
              s_cmp_lt_u32 s70, {SPIN}
              s_cbranch_scc1 {label}
              {label}_ok:""")
        if mask: A("s_mov_b64 exec, -1")
        A.vm = []

    def flag_store(soff):
        A(f"""s_mov_b64 exec, 1
              buffer_store_dword v30, v29, s[4:7], {soff} offen sc1
              s_mov_b64 exec, -1""")

    def dma(vaddr, soff_reg, lds_expr_reg, n, gstep=1024, flags="", tag=None, alt=None):
        for z in range(n):
            if z % 4 == 0:
                if z: A(f"s_add_u32 {lds_expr_reg}, {lds_expr_reg}, 4096")
                A(f"s_mov_b32 m0, {lds_expr_reg}")
            va = vaddr if (alt is None or z % 2 == 0) else alt
            A(f"buffer_load_dwordx4 {va}, s[4:7], {soff_reg} offen offset:{(z % 4) * 1024} {flags} lds", tag)
            step = gstep - 1024 if z % 4 != 3 else gstep + 3072
            if z != n - 1 and step: A(f"s_add_u32 {soff_reg}, {soff_reg}, {step}")

    A(f"""s_cmp_ge_u32 s2, 256
          s_cbranch_scc1 L_end
          s_load_dwordx2 s[30:31], s[0:1], 0
          s_load_dwordx4 s[44:47], s[0:1], 48
          s_load_dwordx4 s[48:51], s[0:1], 64
          s_load_dwordx2 s[52:53], s[0:1], 88
          s_mov_b32 s39, 0
          s_and_b32 s60, s2, 7
          s_lshr_b32 s61, s2, 3
          s_and_b32 s33, s61, 15
          s_lshr_b32 s61, s61, 4
          s_lshl_b32 s32, s60, 1
          s_add_u32 s32, s32, s61
          s_lshr_b32 s34, s33, 3
          s_and_b32 s35, s33, 7
          s_lshl_b32 s40, s32, 4
          s_add_u32 s40, s40, s33
          s_sub_u32 s60, 32, s32
          s_cmp_eq_u32 s32, 0
          s_cselect_b32 s60, 16, s60
          s_cmp_eq_u32 s34, 0
          s_cselect_b32 s36, s32, s60
          v_lshrrev_b32 v5, 6, v0
          v_and_b32 v0, 63, v0
          v_readfirstlane_b32 s37, v5
          v_and_b32 v2, 15, v0
          v_lshrrev_b32 v3, 4, v0
          v_lshlrev_b32 v1, 4, v0
          v_mov_b32 v29, 0
          v_mov_b32 v31, 0
          s_lshr_b32 s60, s37, 1
          s_lshl_b32 s60, s60, 5
          s_add_u32 s60, s60, s36
          s_and_b32 s61, s37, 1
          s_lshl_b32 s61, s61, 10
          s_add_u32 s60, s60, s61
          s_lshl_b32 s60, s60, 10
          s_lshl_b32 s61, s35, 7
          s_add_u32 s60, s60, s61
          v_lshlrev_b32 v4, 16, v2
          v_lshl_add_u32 v4, v3, 4, v4
          v_add_u32 v4, s60, v4
          s_waitcnt lgkmcnt(0)
          s_load_dword s42, s[52:53], 0
          s_mov_b32 s8, s30
          s_mov_b32 s9, s31
          s_mov_b32 s10, {2*MB}
          s_mov_b32 s11, 0x20000""")
    A("""buffer_load_dwordx4 v[16:19], v4, s[8:11], 0 offen
         buffer_load_dwordx4 v[20:23], v4, s[8:11], 0 offen offset:64""", "res")
    A(f"""s_mov_b32 s4, s52
          s_mov_b32 s5, s53
          s_mov_b32 s6, {256*MB}
          s_mov_b32 s7, 0x20000
          s_add_u32 s12, s52, {X2}
          s_addc_u32 s13, s53, 0
          s_mov_b32 s14, {2*MB}
          s_mov_b32 s15, 0x20000
          s_mov_b32 s16, s44
          s_mov_b32 s17, s45
          s_mov_b32 s18, {512*2752}
          s_mov_b32 s19, 0x20000
          s_mov_b32 s20, s46
          s_mov_b32 s21, s47
          s_mov_b32 s22, {512*2752}
          s_mov_b32 s23, 0x20000
          s_mov_b32 s24, s48
          s_mov_b32 s25, s49
          s_mov_b32 s26, {1376*1024}
          s_mov_b32 s27, 0x20000""")
    A(f"""v_and_b32 v5, 31, v0
          v_lshrrev_b32 v6, 5, v0
          s_lshl_b32 s60, s32, 5
          v_add_u32 v5, s60, v5
          v_mul_u32_u24 v5, 2752, v5
          s_mul_i32 s61, s33, 11
          s_lshl_b32 s62, s37, 1
          s_add_u32 s61, s61, s62
          v_add_u32 v6, s61, v6
          v_lshl_add_u32 v7, v6, 4, v5
          v_cmp_gt_u32 vcc, 172, v6
          v_mov_b32 v8, 0x7f000000
          v_cndmask_b32 v7, v8, v7, vcc""")
    A("""buffer_load_dwordx4 v[96:99], v7, s[16:19], 0 offen
         buffer_load_dwordx4 v[100:103], v7, s[20:23], 0 offen""", "w1a")
    A(f"""s_cmp_ge_u32 s37, 2
          s_cbranch_scc1 L_w2load
          v_add_u32 v6, 8, v6
          v_lshl_add_u32 v7, v6, 4, v5
          v_cmp_gt_u32 vcc, 172, v6
          s_nop 1
          v_cndmask_b32 v7, v8, v7, vcc
          buffer_load_dwordx4 v[104:107], v7, s[16:19], 0 offen
          buffer_load_dwordx4 v[108:111], v7, s[20:23], 0 offen
          s_waitcnt vmcnt(4)
          s_branch L_wloaded
          L_w2load:
          s_add_u32 s54, s40, 256
          s_cmp_eq_u32 s37, 3
          s_cselect_b32 s54, s40, s54
          s_mul_i32 s60, s54, 5958
          s_lshr_b32 s60, s60, 16
          s_mul_i32 s61, s60, 11
          s_sub_u32 s61, s54, s61
          s_lshr_b32 s62, s60, 2
          s_and_b32 s60, s60, 3
          s_mul_i32 s60, s60, 352
          v_lshrrev_b32 v5, 3, v0
          v_and_b32 v6, 7, v0
          v_lshlrev_b32 v6, 4, v6
          s_lshl_b32 s62, s62, 7
          v_add_u32 v6, s62, v6
          s_cmp_ge_u32 s61, 8
          s_cbranch_scc1 L_w2rem
          v_lshrrev_b32 v7, 1, v5
          v_and_b32 v5, 1, v5
          v_lshl_add_u32 v5, v7, 3, v5
          s_lshr_b32 s63, s61, 1
          s_mul_i32 s63, s63, 88
          s_and_b32 s64, s61, 1
          s_lshl_b32 s64, s64, 5
          s_add_u32 s63, s63, s64
          s_add_u32 s64, s60, s63
          s_add_u32 s65, s64, 2
          s_add_u32 s66, s64, 4
          s_add_u32 s67, s64, 6
          s_branch L_w2go
          L_w2rem:
          s_sub_u32 s61, s61, 8
          s_lshl_b32 s61, s61, 2
          s_add_u32 s60, s60, 64""")
    for z in range(4):
        A(f"""s_add_u32 s62, s61, {z}
              s_mul_i32 s63, s62, 43
              s_lshr_b32 s63, s63, 7
              s_mul_i32 s68, s63, 3
              s_sub_u32 s62, s62, s68
              s_mul_i32 s63, s63, 88
              s_lshl_b32 s62, s62, 3
              s_add_u32 s63, s63, s62
              s_add_u32 s{64+z}, s60, s63""")
    A("L_w2go:")
    for z in range(4):
        A(f"""v_add_u32 v7, s{64+z}, v5
              v_lshl_add_u32 v7, v7, 10, v6
              buffer_load_dwordx4 v[{104+4*z}:{107+4*z}], v7, s[24:27], 0 offen""")
    A("""s_waitcnt vmcnt(6)
         L_wloaded:""")
    A("""s_lshr_b32 s60, s33, 2
         s_and_b32 s60, s60, 1
         s_lshl_b32 s60, s60, 5
         s_add_u32 s43, s36, s60
         s_sub_u32 s60, 64, s43
         s_cmp_le_u32 s43, 31
         s_cselect_b32 s41, s43, s60
         s_and_b32 s41, s41, 31
         s_and_b32 s60, s33, 3
         s_lshl_b32 s60, s60, 9
         s_add_u32 s55, s43, s60
         s_waitcnt lgkmcnt(0)
         s_mul_i32 s38, s42, 0x9E3779B1
         s_add_u32 s38, s38, 0x7F4A7C15
         v_mov_b32 v30, s38""")
    for r in range(32, 48): A(f"v_mov_b32 v{r}, 0")
    A.vm = []; A.lg = []

    A("L_E:")
    TS()
    for z in range(8):
        A(f"""v_lshlrev_b32 v{6+2*(z&1)}, 16, v{16+z}
              v_and_b32 v{7+2*(z&1)}, 0xffff0000, v{16+z}
              v_pk_add_f32 v[{32+2*z}:{33+2*z}], v[{32+2*z}:{33+2*z}], v[{6+2*(z&1)}:{7+2*(z&1)}]""")
    A("""s_cmp_eq_u32 s39, 0
         s_cbranch_scc1 L_nostore""")
    for z in range(8):
        A(f"v_cvt_pk_bf16_f32 v{16+z}, v{32+2*z}, v{33+2*z}")
    A("""buffer_store_dwordx4 v[16:19], v4, s[12:15], 0 offen sc1
         buffer_store_dwordx4 v[20:23], v4, s[12:15], 0 offen offset:64 sc1
         s_cmp_eq_u32 s39, 2
         s_cbranch_scc1 L_fin
         s_mov_b32 s8, s12
         s_mov_b32 s9, s13
         s_mov_b32 s12, s50
         s_mov_b32 s13, s51
         L_nostore:""")
    A("""v_pk_add_f32 v[6:7], v[32:33], v[34:35]
         v_pk_mul_f32 v[8:9], v[32:33], v[32:33]""")
    A("v_pk_fma_f32 v[8:9], v[34:35], v[34:35], v[8:9]")
    for z in range(2, 8):
        A(f"""v_pk_add_f32 v[6:7], v[6:7], v[{32+2*z}:{33+2*z}]
              v_pk_fma_f32 v[8:9], v[{32+2*z}:{33+2*z}], v[{32+2*z}:{33+2*z}], v[8:9]""")
    def qreduce(a, b, ta, tb):
        for sw in ("v_permlane32_swap_b32", "v_permlane16_swap_b32"):
            A(f"""v_mov_b32 v{ta}, v{a}
                  v_mov_b32 v{tb}, v{b}
                  {sw} v{a}, v{ta}
                  {sw} v{b}, v{tb}
                  v_add_f32 v{a}, v{a}, v{ta}
                  v_add_f32 v{b}, v{b}, v{tb}""")
    A("""v_add_f32 v48, v6, v7
         v_add_f32 v49, v8, v9
         v_mov_b32 v50, s38
         v_mov_b32 v51, s38""")
    qreduce(48, 49, 6, 7)
    A(f"""s_lshl_b32 s60, s39, 5
          s_add_u32 s60, s60, s36
          s_lshl_b32 s60, s60, 13
          s_lshl_b32 s61, s37, 8
          s_add_u32 s60, s60, s61
          s_add_u32 s56, s60, {ST}
          s_lshl_b32 s61, s35, 10
          s_add_u32 s61, s61, s56
          s_add_u32 s57, s56, 4096
          s_mov_b64 exec, 0xffff
          buffer_store_dwordx4 v[48:51], v1, s[4:7], s61 offen sc1
          s_mov_b64 exec, -1""")
    A(f"""s_lshl_b32 s60, s37, 4
          v_add_u32 v5, s60, v2
          v_lshrrev_b32 v6, 1, v5
          v_cmp_eq_u32 vcc, 1, v5
          v_and_b32 v7, 1, v5
          v_cndmask_b32 v6, v6, 32, vcc
          v_cndmask_b32 v7, v7, 0, vcc
          v_and_b32 v11, 1, v6
          v_cvt_f32_u32 v6, v6
          v_cvt_f32_u32 v7, v7
          v_cvt_f32_u32 v8, v3
          v_mul_f32 v6, {f2u(1/64)}, v6
          v_mul_f32 v7, {f2u(0.25)}, v7
          v_mul_f32 v8, {f2u(8.0)}, v8
          v_fma_f32 v7, v6, v8, v7
          v_mul_u32_u24 v11, 0x8000, v11
          v_lshl_or_b32 v11, v11, 16, v11""")
    for ks in range(2):
        for pr in range(2):
            for b in range(2):
                A(f"""v_fmamk_f32 v{8+b}, v6, {f2u(float(ks + 2*(2*pr+b)))}, v7
                      v_cos_f32 v{8+b}, v{8+b}""")
            A(f"""v_cvt_pk_bf16_f32 v{60+4*ks+pr}, v8, v9
                  v_xor_b32 v{62+4*ks+pr}, v11, v{60+4*ks+pr}""")
    A(f"""s_cmp_lg_u32 s39, 0
          s_cbranch_scc1 L_norelay
          s_lshl_b32 s60, s37, 12
          v_lshlrev_b32 v5, 5, v0
          v_add_u32 v5, s60, v5
          v_lshrrev_b32 v6, 2, v2
          v_lshl_add_u32 v6, v3, 3, v6
          v_and_b32 v7, 3, v2
          v_lshlrev_b32 v8, 5, v6
          v_lshl_add_u32 v8, v7, 3, v8
          v_add_u32 v8, s60, v8
          s_mul_i32 s61, s33, 180224
          s_add_u32 s61, s61, {W1F}
          s_lshr_b32 s62, s37, 1
          s_lshl_b32 s62, s62, 16
          s_lshl_b32 s63, s32, 12
          s_add_u32 s62, s62, s63
          s_and_b32 s63, s37, 1
          s_lshl_b32 s63, s63, 11
          s_add_u32 s62, s62, s63
          s_add_u32 s62, s62, s61
          s_waitcnt vmcnt(0)""")
    def w1round(r0, ldsoff, soff, second_guard=False):
        for z in range(4):
            A(f"ds_write2_b32 v5, v{r0+z}, v{r0+4+z} offset0:{ldsoff//4+2*z} offset1:{ldsoff//4+2*z+1}")
        A("s_waitcnt lgkmcnt(0)")
        for t in range(2):
            A(f"""ds_read_b64_tr_b16 v[{136+4*t}:{137+4*t}], v8 offset:{ldsoff+1024*t}
                  ds_read_b64_tr_b16 v[{138+4*t}:{139+4*t}], v8 offset:{ldsoff+1024*t+128}""")
        A("s_waitcnt lgkmcnt(0)")
        A(f"buffer_store_dwordx4 v[136:139], v1, s[4:7], {soff} offen sc1")
        if second_guard:
            A("""s_cmp_eq_u32 s37, 1
                 s_cbranch_scc1 L_norelay""")
        A(f"buffer_store_dwordx4 v[140:143], v1, s[4:7], {soff} offen offset:1024 sc1")
    w1round(96, 0, "s62")
    A(f"""s_cmp_ge_u32 s37, 2
          s_cbranch_scc1 L_w2fin
          s_mul_i32 s62, s32, 3072
          s_lshl_b32 s63, s37, 11
          s_add_u32 s62, s62, s63
          s_add_u32 s62, s62, s61
          s_add_u32 s62, s62, 131072""")
    w1round(104, 0, "s62", True)
    A(f"""s_branch L_norelay
          L_w2fin:
          s_cmp_ge_u32 s54, 352
          s_cbranch_scc1 L_norelay
          v_add_u32 v5, s60, v1
          v_lshlrev_b32 v8, 7, v6
          v_lshl_add_u32 v8, v7, 4, v8
          v_add_u32 v8, s60, v8
          s_lshl_b32 s62, s54, 12
          s_add_u32 s62, s62, {W2F}""")
    for z in range(4):
        A(f"ds_write_b128 v5, v[{104+4*z}:{107+4*z}] offset:{1024*z}")
    A("s_waitcnt lgkmcnt(0)")
    for m in range(4):
        o = 64 * (m >> 1) + 8 * (m & 1)
        A(f"""ds_read_b64_tr_b16 v[{120+4*m}:{121+4*m}], v8 offset:{o}
              ds_read_b64_tr_b16 v[{122+4*m}:{123+4*m}], v8 offset:{o+512}""")
    A("s_waitcnt lgkmcnt(0)")
    for m in range(4):
        A(f"buffer_store_dwordx4 v[{120+4*m}:{123+4*m}], v1, s[4:7], s62 offen offset:{1024*m} sc1")
    A("L_norelay:")
    A(f"""v_lshlrev_b32 v5, 4, v2
          v_lshl_add_u32 v5, v3, 10, v5""")
    TS()
    poll("L_pS", """buffer_load_dwordx4 v[52:55], v5, s[4:7], s56 offen sc1
                    buffer_load_dwordx4 v[56:59], v5, s[4:7], s57 offen sc1""", [54, 55, 58, 59])
    TS()
    A("""v_add_f32 v48, v52, v56
         v_add_f32 v49, v53, v57""")
    def finish_stats(s, ss, r, nmr):
        A(f"""v_mul_f32 v{s}, {f2u(1/512)}, v{s}
              v_mul_f32 v{nmr}, v{s}, v{s}
              v_fma_f32 v{ss}, v{ss}, s58, -v{nmr}
              v_max_f32 v{ss}, 0, v{ss}
              v_add_f32 v{ss}, {f2u(1e-5)}, v{ss}
              v_rsq_f32 v{r}, v{ss}
              s_nop 0
              v_mul_f32 v{nmr}, v{s}, v{r}""")
    A(f"s_mov_b32 s58, {f2u(1/512)}")
    qreduce(48, 49, 6, 7)
    finish_stats(48, 49, 50, 51)
    A(f"""s_mul_i32 s60, s37, {16*160}
          s_add_u32 s60, s60, {IB}
          v_mul_u32_u24 v5, 160, v2
          v_lshl_add_u32 v5, v3, 3, v5
          v_add_u32 v5, s60, v5""")
    for z in range(8):
        A(f"""v_fma_f32 v{32+2*z}, v{32+2*z}, v50, -v51
              v_fma_f32 v{33+2*z}, v{33+2*z}, v50, -v51
              v_cvt_pk_bf16_f32 v{16+z}, v{32+2*z}, v{33+2*z}""")
    for m in range(4):
        A(f"ds_write_b64 v5, v[{16+2*m}:{17+2*m}] offset:{32*m}")
    A(f"""v_lshrrev_b32 v6, 2, v2
          v_lshl_add_u32 v6, v3, 2, v6
          v_and_b32 v7, 3, v2
          v_mul_u32_u24 v8, 160, v6
          v_lshl_add_u32 v8, v7, 3, v8
          v_add_u32 v8, {IB}, v8
          s_waitcnt lgkmcnt(0)
          s_barrier""")
    A.lg = []
    for m in range(4):
        for ks in range(2):
            for hh in range(2):
                r = 96 + 8*m + 4*ks + 2*hh
                A(f"ds_read_b64_tr_b16 v[{r}:{r+1}], v8 offset:{ks*5120+hh*2560+32*m}", ("p1", m))
    A(f"""v_lshrrev_b32 v9, 1, v2
          v_lshlrev_b32 v9, 16, v9
          v_and_b32 v10, 1, v2
          v_lshl_add_u32 v9, v10, 10, v9
          v_lshl_add_u32 v9, v3, 4, v9
          s_lshl_b32 s60, s39, 21
          s_lshl_b32 s61, s37, 19
          s_add_u32 s60, s60, s61
          s_lshl_b32 s61, s36, 11
          s_add_u32 s60, s60, s61
          s_lshl_b32 s61, s35, 7
          s_add_u32 s60, s60, s61
          s_add_u32 s60, s60, {Y}""")
    for m in range(4):
        A.wait_lg(("p1", m))
        A(f"v_mfma_f32_16x16x32_bf16 v[{32+4*m}:{35+4*m}], v[{96+8*m}:{99+8*m}], v[60:63], 0")
        A(f"v_mfma_f32_16x16x32_bf16 v[{32+4*m}:{35+4*m}], v[{100+8*m}:{103+8*m}], v[64:67], v[{32+4*m}:{35+4*m}]")
    for z in range(8):
        A(f"v_cvt_pk_bf16_f32 v{16+z}, v{32+2*z}, v{33+2*z}")
    A("""buffer_store_dwordx4 v[16:19], v9, s[4:7], s60 offen sc1
         buffer_store_dwordx4 v[20:23], v9, s[4:7], s60 offen offset:64 sc1""")
    A(f"""s_lshl_b32 s59, s39, 14
          s_add_u32 s59, s59, {GF}
          s_lshl_b32 s60, s37, 12
          s_lshr_b32 s61, s35, 1
          s_lshl_b32 s61, s61, 10
          s_add_u32 s60, s60, s61
          s_lshr_b32 s61, s36, 2
          s_lshl_b32 s61, s61, 7
          s_add_u32 s60, s60, s61
          s_and_b32 s61, s36, 3
          s_lshl_b32 s61, s61, 3
          s_add_u32 s60, s60, s61
          s_and_b32 s61, s35, 1
          s_lshl_b32 s61, s61, 2
          s_add_u32 s60, s60, s61
          s_add_u32 s60, s60, s59""")
    A.vm0()
    flag_store("s60")
    TS()

    def w1_group1():
        A(f"""s_mul_i32 s60, s33, 180224
              s_add_u32 s60, s60, {W1F}
              s_mul_i32 s61, s37, {19*1024}
              s_add_u32 s60, s60, s61""")
        dma("v1", "s60", "s61", 19, flags="sc1")
    A("""s_cmp_eq_u32 s39, 0
         s_cbranch_scc1 L_nopre""")
    w1_group1()
    A("L_nopre:")

    B2, BA, TC, TSN, BB = 176, 184, 190, 198, 206
    A(f"""s_cmp_eq_u32 s43, 32
          s_cselect_b32 s62, 0, 1.0
          s_cselect_b32 s63, 1.0, 0
          s_cmp_gt_u32 s43, 32
          s_cselect_b32 s64, -1.0, 1.0
          s_and_b32 s60, s43, 31
          s_cmp_eq_u32 s60, 0
          s_cselect_b32 s64, 0, s64
          v_lshrrev_b32 v5, 1, v2
          v_lshlrev_b32 v5, 6, v5
          v_add_u32 v5, s55, v5
          v_cvt_f32_u32 v5, v5
          v_and_b32 v6, 1, v2
          v_cvt_f32_u32 v12, v6
          v_cvt_f32_u32 v7, v3
          v_cvt_f32_u32 v13, v2
          v_mul_f32 v5, {f2u(1/2048)}, v5
          v_mul_f32 v12, {f2u(0.25)}, v12
          v_add_f32 v8, v7, v7
          v_fma_f32 v12, v5, v8, v12
          v_mul_u32_u24 v6, 0x8000, v6
          v_lshl_or_b32 v6, v6, 16, v6
          v_mul_f32 v7, 4.0, v7""")
    for ks in range(2):
        for z in range(4):
            A(f"""v_fmamk_f32 v8, v5, {f2u(float(16*ks + 8*(z>>1) + (z&1)))}, v12
                  v_cos_f32 v9, v8
                  v_sin_f32 v10, v8
                  v_mul_f32 v11, s63, v9
                  v_mul_f32 v9, s62, v9
                  v_fma_f32 v10, v10, s64, v11
                  v_cvt_pk_bf16_f32 v{B2+4*ks+z}, v9, v10""")
    def sincos4(scale, cdst, sdst, add=0):
        A(f"""v_mul_f32 v5, {f2u(scale)}, v13
              v_mul_f32 v12, v5, v7""")
        for j in range(4):
            A(f"""v_fmamk_f32 v8, v5, {f2u(float(j+add))}, v12
                  v_cos_f32 v{cdst+j}, v8
                  v_sin_f32 v{sdst+j}, v8""")
    sincos4(1/16, 16, 20)
    A(f"""v_cvt_pk_bf16_f32 v{BA+2}, v16, v17
          v_cvt_pk_bf16_f32 v{BA+3}, v18, v19
          v_cvt_pk_bf16_f32 v{BA+4}, v20, v21
          v_cvt_pk_bf16_f32 v{BA+5}, v22, v23
          v_xor_b32 v{BA}, 0x80008000, v{BA+4}
          v_xor_b32 v{BA+1}, 0x80008000, v{BA+5}""")
    sincos4(1/512, TC, TSN)
    sincos4(1/512, TC+4, TSN+4, 16)
    sincos4(1/32, 16, 20)
    for ks in range(2):
        A(f"""v_cvt_pk_bf16_f32 v{BB+4*ks}, v{16+4*ks}, v{17+4*ks}
              v_cvt_pk_bf16_f32 v{BB+4*ks+1}, v{18+4*ks}, v{19+4*ks}
              v_xor_b32 v{BB+4*ks+2}, v6, v{BB+4*ks}
              v_xor_b32 v{BB+4*ks+3}, v6, v{BB+4*ks+1}""")
    for z in range(8):
        A(f"v_xor_b32 v{BB+8+z}, 0x80000000, v{BB+z}")
    A(f"""v_lshrrev_b32 v5, 3, v0
          v_and_b32 v6, 7, v0
          v_lshlrev_b32 v5, 7, v5
          v_lshl_add_u32 v5, v6, 2, v5
          s_lshr_b32 s60, s41, 3
          s_lshl_b32 s60, s60, 12
          s_lshl_b32 s61, s37, 10
          s_add_u32 s60, s60, s61
          s_add_u32 s59, s59, s60
          v_lshlrev_b32 v14, 1, v3
          v_xor_b32 v14, v14, v2
          v_lshlrev_b32 v14, 4, v14
          v_lshl_add_u32 v14, v3, 10, v14
          v_xor_b32 v15, 128, v14
          s_lshl_b32 s60, s39, 21
          s_lshl_b32 s61, s41, 16
          s_add_u32 s60, s60, s61
          s_lshl_b32 s61, s37, 8
          s_add_u32 s60, s60, s61
          s_add_u32 s60, s60, {Y}
          s_lshl_b32 s61, s37, 14
          s_add_u32 s61, s61, {YB}
          s_mov_b32 s65, s61""")
    TS()
    poll("L_pG", "buffer_load_dword v6, v5, s[4:7], s59 offen sc1", [6])
    TS()
    dma("v14", "s60", "s61", 16, gstep=4096, flags="sc1", tag="y", alt="v15")
    A(f"""s_barrier
          s_lshl_b32 s60, s37, 7
          s_add_u32 s60, s60, s55
          s_lshl_b32 s66, s60, 10
          s_add_u32 s67, s66, 65536
          v_lshlrev_b32 v10, 5, v2
          v_lshl_add_u32 v10, v3, 3, v10""")
    for r in range(2):
        for g in range(2):
            A(f"buffer_load_dwordx2 v[{16+4*r+2*g}:{17+4*r+2*g}], v10, s[8:11], s{66+r} offen offset:{512*g} sc1", "res")
    A("""s_cmp_lg_u32 s39, 0
         s_cbranch_scc1 L_nog1""")
    w1_group1()
    A("""s_waitcnt vmcnt(23)
         s_branch L_ydone
         L_nog1:
         s_waitcnt vmcnt(4)
         L_ydone:""")
    A(f"""v_lshrrev_b32 v5, 2, v2
          v_lshl_add_u32 v5, v3, 2, v5
          v_and_b32 v6, 7, v5
          v_and_b32 v7, 3, v2
          v_lshlrev_b32 v8, 8, v5
          v_lshl_add_u32 v8, v6, 5, v8
          v_lshl_add_u32 v8, v7, 3, v8
          v_add_u32 v8, s65, v8""")
    TS()
    A.lg = []
    for mt in range(8):
        A(f"v_xor_b32 v9, {32*mt}, v8")
        for ks in range(2):
            for hh in range(2):
                r = 96 + 8*mt + 4*ks + 2*hh
                A(f"ds_read_b64_tr_b16 v[{r}:{r+1}], v9 offset:{ks*8192+hh*4096}", ("p2", mt))
        if mt >= 3:
            m = mt - 3
            A.wait_lg(("p2", m))
            A(f"v_mfma_f32_16x16x32_bf16 v[{32+4*m}:{35+4*m}], v[{96+8*m}:{99+8*m}], v[{B2}:{B2+3}], 0")
            A(f"v_mfma_f32_16x16x32_bf16 v[{32+4*m}:{35+4*m}], v[{100+8*m}:{103+8*m}], v[{B2+4}:{B2+7}], v[{32+4*m}:{35+4*m}]")
    A(f"""v_mul_u32_u24 v11, 1032, v2
          v_lshl_add_u32 v11, v3, 3, v11
          s_lshl_b32 s60, s37, 8
          s_and_b32 s61, s37, 1
          s_lshl_b32 s61, s61, 5
          s_add_u32 s60, s60, {ZB}
          s_add_u32 s62, s60, s61
          s_xor_b32 s61, s61, 32
          s_add_u32 s63, s60, s61
          v_add_u32 v12, s63, v11
          v_add_u32 v11, s62, v11""")
    for m in range(5, 8):
        A.wait_lg(("p2", m))
        A(f"v_mfma_f32_16x16x32_bf16 v[{32+4*m}:{35+4*m}], v[{96+8*m}:{99+8*m}], v[{B2}:{B2+3}], 0")
        A(f"v_mfma_f32_16x16x32_bf16 v[{32+4*m}:{35+4*m}], v[{100+8*m}:{103+8*m}], v[{B2+4}:{B2+7}], v[{32+4*m}:{35+4*m}]")
    for m in range(8):
        A(f"""v_cvt_pk_bf16_f32 v{64+2*m}, v{32+4*m}, v{33+4*m}
              v_cvt_pk_bf16_f32 v{65+2*m}, v{34+4*m}, v{35+4*m}
              ds_write_b64 v{11+(m&1)}, v[{64+2*m}:{65+2*m}] offset:{64*(m>>1)}""")
    A(f"""v_and_b32 v6, 1, v3
          v_lshlrev_b32 v8, 6, v5
          v_lshl_add_u32 v8, v6, 5, v8
          v_lshl_add_u32 v8, v7, 3, v8
          s_mul_i32 s60, s37, 4128
          s_add_u32 s68, s60, {ZB}
          v_xor_b32 v9, 32, v8
          v_add_u32 v8, s68, v8
          v_add_u32 v9, s68, v9
          s_waitcnt lgkmcnt(0)
          s_barrier""")
    A.lg = []
    for r in range(2):
        for h in range(2):
            for cc in range(2):
                reg = 96 + 8*r + 4*h + 2*cc
                A(f"ds_read_b64_tr_b16 v[{reg}:{reg+1}], v{8+h} offset:{r*2064+cc*1032}", ("sa", r))
    A(f"""s_mul_i32 s60, s33, 180224
          s_add_u32 s60, s60, {W1F + 77824}
          s_mul_i32 s61, s37, {17*1024}
          s_add_u32 s60, s60, s61
          s_add_u32 s61, s61, 77824""")
    dma("v1", "s60", "s61", 16, flags="sc1")
    A("""s_cmp_eq_u32 s37, 3
         s_cbranch_scc1 L_g2done
         s_add_u32 s60, s60, 4096
         s_add_u32 s61, s61, 4096
         s_mov_b32 m0, s61""")
    A("buffer_load_dwordx4 v1, s[4:7], s60 offen sc1 lds")
    A("L_g2done:")
    for r in range(2):
        A.wait_lg(("sa", r))
        for h in range(2):
            for c2 in range(2):
                d = 32 + 16*r + 8*c2 + 4*h
                b = BA + 2 if c2 == 0 else BA
                A(f"v_mfma_f32_16x16x32_bf16 v[{d}:{d+3}], v[{96+8*r+4*h}:{99+8*r+4*h}], v[{b}:{b+3}], 0")
    for r in range(2):
        for z in range(4):
            ur, ui = 32 + 16*r + 2*z, 40 + 16*r + 2*z
            A(f"""v_pk_mul_f32 v[6:7], v[{ui}:{ui+1}], v[{TSN+2*z}:{TSN+2*z+1}]
                  v_pk_mul_f32 v[12:13], v[{ur}:{ur+1}], v[{TSN+2*z}:{TSN+2*z+1}]
                  v_pk_fma_f32 v[6:7], v[{ur}:{ur+1}], v[{TC+2*z}:{TC+2*z+1}], v[6:7]
                  v_pk_fma_f32 v[12:13], v[{ui}:{ui+1}], v[{TC+2*z}:{TC+2*z+1}], v[12:13] neg_lo:[0,0,1] neg_hi:[0,0,1]
                  v_cvt_pk_bf16_f32 v{112+8*r+z}, v6, v7
                  v_cvt_pk_bf16_f32 v{116+8*r+z}, v12, v13""")
        for g in range(2):
            d = 64 + 8*r + 4*g
            A(f"v_mfma_f32_16x16x32_bf16 v[{d}:{d+3}], v[{112+8*r}:{115+8*r}], v[{BB+8*g}:{BB+8*g+3}], 0")
            A(f"v_mfma_f32_16x16x32_bf16 v[{d}:{d+3}], v[{116+8*r}:{119+8*r}], v[{BB+8*g+4}:{BB+8*g+7}], v[{d}:{d+3}]")
    A("""s_cmp_lg_u32 s39, 0
         s_cbranch_scc1 L_resw1
         s_waitcnt vmcnt(35)
         s_branch L_resw
         L_resw1:
         s_waitcnt vmcnt(16)
         L_resw:
         v_add_u32 v11, s68, v10""")
    for r in range(2):
        for z in range(4):
            x = 64 + 8*r + 2*z
            A(f"""v_lshlrev_b32 v6, 16, v{16+4*r+z}
                  v_and_b32 v7, 0xffff0000, v{16+4*r+z}
                  v_pk_add_f32 v[{x}:{x+1}], v[{x}:{x+1}], v[6:7]
                  v_cvt_pk_bf16_f32 v{16+4*r+z}, v{x}, v{x+1}""")
        for g in range(2):
            A(f"ds_write_b64 v11, v[{16+4*r+2*g}:{17+4*r+2*g}] offset:{1024*r+512*g}")
        x = 64 + 8*r
        A(f"""v_pk_add_f32 v[{32+4*r}:{33+4*r}], v[{x}:{x+1}], v[{x+2}:{x+3}]
              v_pk_mul_f32 v[{34+4*r}:{35+4*r}], v[{x}:{x+1}], v[{x}:{x+1}]""")
        for z in range(1, 4):
            if z > 1: A(f"v_pk_add_f32 v[{32+4*r}:{33+4*r}], v[{32+4*r}:{33+4*r}], v[{x+2*z}:{x+2*z+1}]")
            A(f"v_pk_fma_f32 v[{34+4*r}:{35+4*r}], v[{x+2*z}:{x+2*z+1}], v[{x+2*z}:{x+2*z+1}], v[{34+4*r}:{35+4*r}]")
        A(f"""v_add_f32 v{40+2*r}, v{32+4*r}, v{33+4*r}
              v_add_f32 v{41+2*r}, v{34+4*r}, v{35+4*r}""")
    for sh in (8, 4, 2, 1):
        for k in range(4):
            A(f"v_add_f32_dpp v{40+k}, v{40+k}, v{40+k} row_ror:{sh} row_mask:0xf bank_mask:0xf")
    for sw in ("v_permlane32_swap_b32", "v_permlane16_swap_b32"):
        for k in range(4): A(f"v_mov_b32 v{44+k}, v{40+k}")
        for k in range(4): A(f"{sw} v{40+k}, v{44+k}")
        for k in range(4): A(f"v_add_f32 v{40+k}, v{40+k}, v{44+k}")
    A(f"""v_add_u32 v12, s68, v1
          s_waitcnt lgkmcnt(0)""")
    A.lg = []
    A("""ds_read_b128 v[48:51], v12
         ds_read_b128 v[52:55], v12 offset:1024""")
    for r in range(2):
        finish_stats(40+2*r, 41+2*r, 44+2*r, 45+2*r)
    for r in range(2):
        for z in range(4):
            x = 64 + 8*r + 2*z
            A(f"""v_fma_f32 v{x}, v{x}, v{44+2*r}, -v{45+2*r}
                  v_fma_f32 v{x+1}, v{x+1}, v{44+2*r}, -v{45+2*r}
                  v_cvt_pk_bf16_f32 v{16+4*r+z}, v{x}, v{x+1}""")
        for g in range(2):
            A(f"ds_write_b64 v11, v[{16+4*r+2*g}:{17+4*r+2*g}] offset:{2048+1024*r+512*g}")
    A(f"""s_lshl_b32 s60, s39, 21
          s_add_u32 s60, s60, {X1}
          s_add_u32 s66, s66, s60
          s_add_u32 s67, s67, s60
          v_and_b32 v5, 7, v0
          v_lshrrev_b32 v6, 3, v0
          v_lshrrev_b32 v7, 1, v5
          v_mul_u32_u24 v7, 4128, v7
          v_and_b32 v8, 1, v5
          v_lshl_add_u32 v7, v8, 10, v7
          v_lshl_add_u32 v7, v6, 4, v7
          s_lshl_b32 s61, s37, 8
          s_add_u32 s61, s61, {ZB + 2048}
          v_add_u32 v7, s61, v7
          v_lshlrev_b32 v6, 8, v6
          v_lshl_add_u32 v6, v5, 4, v6
          s_waitcnt lgkmcnt(0)
          buffer_store_dwordx4 v[48:51], v1, s[4:7], s66 offen sc1
          buffer_store_dwordx4 v[52:55], v1, s[4:7], s67 offen sc1
          s_barrier
          ds_read_b128 v[56:59], v7
          ds_read_b128 v[60:63], v7 offset:128
          s_lshl_b32 s60, s39, 21
          s_lshr_b32 s61, s40, 1
          s_lshl_b32 s61, s61, 14
          s_add_u32 s60, s60, s61
          s_and_b32 s61, s33, 1
          s_lshl_b32 s61, s61, 7
          s_add_u32 s60, s60, s61
          s_lshl_b32 s61, s37, 12
          s_add_u32 s60, s60, s61
          s_add_u32 s60, s60, {XN}
          s_waitcnt lgkmcnt(0)
          buffer_store_dwordx4 v[56:59], v6, s[4:7], s60 offen sc1
          buffer_store_dwordx4 v[60:63], v6, s[4:7], s60 offen offset:2048 sc1
          s_lshl_b32 s59, s39, 6
          s_add_u32 s59, s59, {CF}
          s_lshl_b32 s60, s40, 7
          s_add_u32 s69, s60, s59
          s_lshl_b32 s60, s37, 2
          s_add_u32 s69, s69, s60
          s_lshl_b32 s60, s32, 11
          s_lshl_b32 s61, s37, 9
          s_add_u32 s60, s60, s61
          s_add_u32 s59, s59, s60
          v_lshlrev_b32 v5, 7, v0""")
    TS()
    A.vm0(); A.lg = []
    flag_store("s69")
    TS()
    poll("L_pC1", "buffer_load_dwordx4 v[6:9], v5, s[4:7], s59 offen sc1", [6, 7, 8, 9], mask="15")
    TS()

    def xreg(n):
        return f"a[{176+4*n}:{179+4*n}]" if n < 20 else f"v[{128+4*(n-20)}:{131+4*(n-20)}]"
    A(f"""s_lshl_b32 s60, s39, 21
          s_lshl_b32 s61, s32, 17
          s_add_u32 s60, s60, s61
          s_lshl_b32 s61, s37, 15
          s_add_u32 s60, s60, s61
          s_add_u32 s60, s60, {XN}
          s_add_u32 s61, s60, 16384""")
    for kk in range(16):
        for T in range(2):
            A(f"buffer_load_dwordx4 {xreg(2*kk+T)}, v1, s[4:7], s{60+T} offen offset:{(kk%4)*1024} sc1", ("xn", kk))
        if kk % 4 == 3 and kk < 15:
            A("s_add_u32 s60, s60, 4096\ns_add_u32 s61, s61, 4096")
    A(f"""s_barrier
          v_add_u32 v10, 65536, v1
          v_add_u32 v11, 131072, v1
          s_mul_i32 s60, s39, {HL}
          s_mul_i32 s61, s32, {8*45056}
          s_add_u32 s60, s60, s61
          s_add_u32 s71, s60, {H}
          s_mul_i32 s61, s37, {2*45056}
          s_add_u32 s60, s71, s61
          s_mul_i32 s61, s33, 2816
          s_add_u32 s62, s60, s61
          s_add_u32 s63, s62, 45056""")

    frags = []
    for ps, nt in ((0, 4), (1, 4), (2, 3)):
        for kk in range(16):
            for t in range(nt):
                if ps == 0: addr = ("v1", kk*4096 + t*1024)
                elif ps == 1: addr = ("v10", kk*4096 + t*1024)
                elif kk < 10: addr = ("v11", kk*3072 + t*1024)
                else: addr = ("v1", (kk-10)*3072 + t*1024)
                frags.append((ps, kk, t, addr))
    LOOK = 6
    def aread(n):
        ps, kk, t, (va, off) = frags[n]
        r = 96 + 4*(n % 8)
        A(f"ds_read_b128 v[{r}:{r+3}], {va} offset:{off}", ("af", n))
    def acc(ps, t, T):
        return 32 + 32*(ps & 1) + 8*t + 4*T
    LOG2E = f2u(-1.4426950408889634)
    def epi(ps, nt):
        out = []
        for T in range(2):
            for t in range(nt):
                a = acc(ps, t, T); t0 = 184 + 2*((2*t+T) & 1)
                out += [(4, f"v_mul_f32 v{t0}, {LOG2E}, v{a}"), (4, f"v_mul_f32 v{t0+1}, {LOG2E}, v{a+1}"),
                        (8, f"v_exp_f32 v{t0}, v{t0}"), (8, f"v_exp_f32 v{t0+1}, v{t0+1}"),
                        (4, f"v_mul_f32 v{a}, v{a}, v{a+2}"), (4, f"v_add_f32 v{t0}, 1.0, v{t0}"),
                        (4, f"v_add_f32 v{t0+1}, 1.0, v{t0+1}"), (8, f"v_rcp_f32 v{t0}, v{t0}"),
                        (8, f"v_rcp_f32 v{t0+1}, v{t0+1}"), (4, f"v_mul_f32 v{a+1}, v{a+1}, v{a+3}"),
                        (4, f"v_mul_f32 v{a}, v{a}, v{t0}"), (4, f"v_mul_f32 v{a+1}, v{a+1}, v{t0+1}"),
                        (4, f"v_cvt_pk_bf16_f32 v{176+4*T+t}, v{a}, v{a+1}")]
            if nt == 4:
                out.append((4, f"buffer_store_dwordx4 v[{176+4*T}:{179+4*T}], v1, s[4:7], s{62+T} offen offset:{1024*ps} sc1"))
        return out
    A.lg = []
    for n in range(LOOK): aread(n)
    fill, budget = [], 0
    for n, (ps, kk, t, _) in enumerate(frags):
        first = (kk == 0 and t == 0)
        if first and ps == 1:
            TS()
            A(f"""s_barrier
                  s_mul_i32 s60, s33, 180224
                  s_add_u32 s60, s60, {W1F + 146432}
                  s_lshl_b32 s61, s37, 12
                  s_add_u32 s60, s60, s61
                  s_add_u32 s61, s61, 146432""")
            dma("v1", "s60", "s61", 3, flags="sc1")
            A("""s_cmp_eq_u32 s37, 3
                 s_cbranch_scc1 L_g3done""")
            A("buffer_load_dwordx4 v1, s[4:7], s60 offen offset:3072 sc1 lds")
            A(f"""L_g3done:
                  s_mul_i32 s60, s33, 180224
                  s_add_u32 s60, s60, {W1F + 161792}
                  s_mul_i32 s61, s37, 5120
                  s_add_u32 s60, s60, s61""")
            dma("v1", "s60", "s61", 3, flags="sc1")
            A("""s_cmp_eq_u32 s37, 3
                 s_cbranch_scc1 L_g4done""")
            A("""buffer_load_dwordx4 v1, s[4:7], s60 offen offset:3072 sc1 lds
                 s_add_u32 s60, s60, 4096
                 s_add_u32 s61, s61, 4096
                 s_mov_b32 m0, s61
                 buffer_load_dwordx4 v1, s[4:7], s60 offen sc1 lds""")
            A(f"""L_g4done:
                  s_cmp_lg_u32 s39, 0
                  s_cbranch_scc1 L_now2
                  s_lshl_b32 s60, s35, 2
                  s_add_u32 s60, s60, s37
                  s_mul_i32 s60, s60, 45056
                  s_add_u32 s60, s60, {W2F}""")
            for f in range(44):
                A(f"buffer_load_dwordx4 a[{4*f}:{4*f+3}], v1, s[4:7], s60 offen offset:{(f%4)*1024} sc1")
                if f % 4 == 3: A("s_add_u32 s60, s60, 4096")
            A("L_now2:")
            fill = epi(0, 4); budget = 0
        if first and ps == 2:
            while fill: A(fill.pop(0)[1])
            TS()
            A.vm0()
            A("s_barrier")
            fill = epi(1, 4); budget = 0
        if ps == 0 and t == 0:
            A.wait_vm(("xn", kk))
        A.wait_lg(("af", n))
        r = 96 + 4*(n % 8)
        for T in range(2):
            a = acc(ps, t, T)
            c = "0" if kk == 0 else f"v[{a}:{a+3}]"
            A(f"v_mfma_f32_16x16x32_bf16 v[{a}:{a+3}], v[{r}:{r+3}], {xreg(2*kk+T)}, {c}")
            budget += 8
            if T == 0 and n + LOOK < len(frags):
                aread(n + LOOK); budget -= 4
            while fill and budget >= fill[0][0]:
                budget -= fill[0][0]; A(fill.pop(0)[1])
            budget = min(budget, 8)
    while fill: A(fill.pop(0)[1])
    TS()
    for c_, t_ in epi(2, 3): A(t_)
    for T in range(2):
        b = 176 + 4*T
        A(f"""v_permlane32_swap_b32 v{b}, v{b+2}
              v_permlane32_swap_b32 v{b+1}, v{b+3}
              v_permlane16_swap_b32 v{b}, v{b+1}
              v_permlane16_swap_b32 v{b+2}, v{b+3}""")
    A("""s_mov_b32 exec_hi, 0xffff
         buffer_store_dwordx4 v[176:179], v1, s[4:7], s62 offen offset:2048 sc1
         buffer_store_dwordx4 v[180:183], v1, s[4:7], s63 offen offset:2048 sc1
         s_mov_b32 exec_hi, -1
         s_add_u32 s69, s69, 16
         s_lshl_b32 s60, s34, 3
         s_add_u32 s59, s59, s60
         s_add_u32 s59, s59, 16""")
    A(f"""s_mul_i32 s60, s34, {4*45056}
          s_add_u32 s71, s71, s60
          s_mul_i32 s60, s37, {4*2816}
          s_add_u32 s71, s71, s60""")
    for nu in range(4):
        A(f"""s_add_u32 s60, s37, {1+nu}
              s_and_b32 s60, s60, 3
              s_mul_i32 s61, s60, 45056
              s_add_u32 s{64+nu}, s71, s61""")
        if nu < 3:
            A(f"""s_mul_i32 s60, s60, 12288
                  s_add_u32 s60, s60, {RB + 4096*nu}
                  v_add_u32 v{12+nu}, s60, v1""")
    for k in range(3):
        A(f"""v_add_u32 v6, {4*k}, v3
              v_mul_u32_u24 v7, 43, v6
              v_lshrrev_b32 v7, 7, v7
              v_mul_u32_u24 v8, 3, v7
              v_sub_u32 v6, v6, v8
              v_mul_u32_u24 v7, 2816, v7
              v_lshl_add_u32 v7, v6, 8, v7
              v_lshl_add_u32 v{24+k}, v2, 4, v7""")
    TS()
    A.vm0()
    flag_store("s69")
    TS()
    poll("L_pC2", "buffer_load_dwordx2 v[6:7], v5, s[4:7], s59 offen sc1", [6, 7], mask="15")
    TS()

    order = [(ks, nu) for ks in range(8) for nu in range(4)] + [(ks, nu) for nu in range(4) for ks in range(8, 11)]
    def hreg(i):
        if i < 16: return f"v[{192+4*i}:{195+4*i}]"
        if i < 36: return f"a[{176+4*(i-16)}:{179+4*(i-16)}]"
        return f"v[{128+4*(i-36)}:{131+4*(i-36)}]"
    for i, (ks, nu) in enumerate(order):
        if ks < 8:
            if ks >= 2 and ks % 2 == 0:
                A(f"s_add_u32 s{64+nu}, s{64+nu}, 2816")
            A(f"buffer_load_dwordx4 {hreg(i)}, v1, s[4:7], s{64+nu} offen offset:{(ks&1)*1024} sc1", ("h", i))
        else:
            if ks == 8: A(f"s_sub_u32 s{64+nu}, s{64+nu}, {3*2816}")
            A(f"buffer_load_dwordx4 {hreg(i)}, v{24+ks-8}, s[4:7], s{64+nu} offen offset:2048 sc1", ("h", i))
    A(f"""s_lshl_b32 s60, s39, 21
          s_add_u32 s60, s60, {X1}""")
    A("""buffer_load_dwordx4 v[16:19], v4, s[4:7], s60 offen sc1
         buffer_load_dwordx4 v[20:23], v4, s[4:7], s60 offen offset:64 sc1""", "res")
    def acc2(nu, m): return 32 + 16*((nu+1) & 3) + 4*m
    pendw = []
    for i, (ks, nu) in enumerate(order):
        A.wait_vm(("h", i))
        for m in range(4):
            a = acc2(nu, m)
            c = "0" if ks == 0 else f"v[{a}:{a+3}]"
            f = 4*ks + m
            A(f"v_mfma_f32_16x16x32_bf16 v[{a}:{a+3}], a[{4*f}:{4*f+3}], {hreg(i)}, {c}")
            if pendw and ks > 8: A(pendw.pop(0))
        if ks == 10 and nu < 3:
            pendw = [f"ds_write_b128 v{12+nu}, v[{acc2(nu, m)}:{acc2(nu, m)+3}] offset:{1024*m}" for m in range(4)]
    assert not pendw
    TS()
    A(f"""s_mul_i32 s60, s37, 12288
          s_add_u32 s60, s60, {RB}
          v_add_u32 v5, s60, v1
          s_waitcnt lgkmcnt(0)
          s_barrier""")
    A.lg = []
    for s_ in range(3):
        for m in range(4):
            r = 96 + 16*s_ + 4*m
            A(f"ds_read_b128 v[{r}:{r+3}], v5 offset:{4096*s_+1024*m}", ("rd", s_))
    for s_ in range(3):
        A.wait_lg(("rd", s_))
        for z in range(8):
            A(f"v_pk_add_f32 v[{32+2*z}:{33+2*z}], v[{32+2*z}:{33+2*z}], v[{96+16*s_+2*z}:{97+16*s_+2*z}]")
    A.vm0()
    A("""s_add_u32 s39, s39, 1
         s_branch L_E
         L_fin:""")
    TS()
    if ts:
        A(f"""s_lshl_b32 s60, s40, 2
              s_add_u32 s60, s60, s37
              s_lshl_b32 s60, s60, 8
              s_add_u32 s60, s60, {TSO}
              v_lshlrev_b32 v5, 2, v0
              buffer_store_dword v31, v5, s[4:7], s60 offen""")
    A("""s_or_b32 s60, s40, s37
         s_cmp_lg_u32 s60, 0
         s_cbranch_scc1 L_end""")
    flag_store("0")
    A("""L_end:
         s_endpgm""")
    assert nts[0] <= 21
    return A


HEAD = open("cdna_kernels/%s.s.ref" % NAME).read().split("; Override launch geometry")[0]

def emit(ts=False):
    A = gen(ts)
    body = pad(A.lines)
    k = NAME + "_kernel"
    out = [HEAD.rstrip("\n"), f"; @launch grid=(256,1,1) block=(256,1,1) lds={LDS_BYTES}",
           '.amdgcn_target "amdgcn-amd-amdhsa--gfx950"', ".text", f".globl {k}", ".p2align 8", f".type {k},@function", f"{k}:"]
    out += body
    out += ['.section .rodata,"a"', ".p2align 6", f".amdhsa_kernel {k}", "  .amdhsa_next_free_vgpr 512", "  .amdhsa_next_free_sgpr 96",
            "  .amdhsa_accum_offset 256", "  .amdhsa_group_segment_fixed_size 0", "  .amdhsa_kernarg_size 96", "  .amdhsa_user_sgpr_count 2",
            "  .amdhsa_user_sgpr_kernarg_segment_ptr 1", "  .amdhsa_system_sgpr_workgroup_id_x 1", "  .amdhsa_float_denorm_mode_32 3", ".end_amdhsa_kernel"]
    return "\n".join(out) + "\n"

if __name__ == "__main__":
    sys.stdout.write(emit(ts="ts" in sys.argv))
```

```python
import sys
from asmlib import Asm, pad

NAME = "interleave_layers__spectral_fnet__swiglu_ffn__prompt"
MB = 1 << 20
GF, CF, CFQ, ST, STQ, TSO = 0x1000, 0x10000, 0x18000, 0x2000000, 0x2080000, 0xA0000
NFAST = 24
Y, XN, X1, X2, W1F, W2F, H = 0x100000, 0x500000, 0x900000, 0xD00000, 0xF00000, 0x1200000, 0x1400000
HL = 0x580000
YB, ZB = 81664, 147200
RB2, IB = 98304, 147456
LDS_BYTES = 163840
SPIN = 400000
PREFETCH = 'nopf' not in sys.argv

def f2u(x):
    import struct
    return "0x%08x" % struct.unpack("<I", struct.pack("<f", x))[0]


def gen(ts=False):
    A = Asm()
    nts = [0]

    pend = []
    def TSflush():
        if not ts or not pend: return
        A("s_waitcnt lgkmcnt(0)"); A.lg = []
        A("s_mul_i32 s79, s39, 21")
        for k in pend:
            A(f"""s_add_u32 s78, s79, {k}
                  v_cmp_eq_u32 vcc, s78, v0
                  v_mov_b32 v28, s{80+2*(k%10)}
                  v_cndmask_b32 v31, v31, v28, vcc""")
        pend.clear()

    def TS(flush=False):
        if not ts: return
        k = nts[0]; nts[0] += 1
        A(f"s_memrealtime s[{80+2*(k%10)}:{81+2*(k%10)}]")
        pend.append(k)
        assert len(pend) <= 10
        if flush: TSflush()

    def poll(label, load, regs, mask=None, dual=None):
        TSflush()
        if mask: A(f"s_mov_b64 exec, {mask}")
        A("s_mov_b32 s70, 0")
        if dual:
            for dst, fast, delta in dual: A(f"s_mov_b32 {dst}, {fast}")
        A(f"{label}:")
        A(load)
        A("s_waitcnt vmcnt(0)")
        A(f"v_cmp_eq_u32 vcc, s38, v{regs[0]}")
        for k, r in enumerate(regs[1:]):
            A(f"v_cmp_eq_u32 s[{72+2*k}:{73+2*k}], s38, v{r}")
        for k, r in enumerate(regs[1:]):
            A(f"s_and_b64 vcc, vcc, s[{72+2*k}:{73+2*k}]")
        A(f"""s_cmp_eq_u64 vcc, exec
              s_cbranch_scc1 {label}_ok
              s_add_u32 s70, s70, 1""")
        if dual:
            A(f"""s_cmp_ge_u32 s70, {NFAST}
                  s_cselect_b32 s72, s70, 0
                  s_and_b32 s72, s72, 1""")
            for dst, fast, delta in dual:
                A(f"""s_mul_i32 s73, s72, {delta}
                      s_add_u32 {dst}, {fast}, s73""")
        A(f"""s_cmp_lt_u32 s70, {SPIN}
              s_cbranch_scc1 {label}
              {label}_ok:""")
        if mask: A("s_mov_b64 exec, -1")
        A.vm = []

    def flag_store(soff, dual=False):
        A("s_mov_b64 exec, 1")
        if dual:
            A(f"""buffer_store_dword v30, v29, s[4:7], {soff} offen
                  buffer_store_dword v30, v27, s[4:7], {soff} offen sc1""")
        else:
            A(f"buffer_store_dword v30, v29, s[4:7], {soff} offen sc1")
        A("s_mov_b64 exec, -1")

    def dma_items(vaddr, soff_reg, lds_reg, n, flags="sc1"):
        out = []
        for z in range(n):
            t = ""
            if z % 4 == 0:
                if z: t += f"s_add_u32 {lds_reg}, {lds_reg}, 4096\ns_add_u32 {soff_reg}, {soff_reg}, 4096\n"
                t += f"s_mov_b32 m0, {lds_reg}\n"
            t += f"buffer_load_dwordx4 {vaddr}, s[4:7], {soff_reg} offen offset:{(z % 4) * 1024} {flags} lds"
            out.append(t)
        return out

    def dma(vaddr, soff_reg, lds_expr_reg, n, gstep=1024, flags="", tag=None, alt=None):
        for z in range(n):
            if z % 4 == 0:
                if z: A(f"s_add_u32 {lds_expr_reg}, {lds_expr_reg}, 4096")
                A(f"s_mov_b32 m0, {lds_expr_reg}")
            va = vaddr if (alt is None or z % 2 == 0) else alt
            A(f"buffer_load_dwordx4 {va}, s[4:7], {soff_reg} offen offset:{(z % 4) * 1024} {flags} lds", tag)
            step = gstep - 1024 if z % 4 != 3 else gstep + 3072
            if z != n - 1 and step: A(f"s_add_u32 {soff_reg}, {soff_reg}, {step}")

    A(f"""s_cmp_ge_u32 s2, 256
          s_cbranch_scc1 L_end
          s_load_dwordx2 s[30:31], s[0:1], 0
          s_load_dwordx4 s[44:47], s[0:1], 48
          s_load_dwordx4 s[48:51], s[0:1], 64
          s_load_dwordx2 s[52:53], s[0:1], 88
          s_mov_b32 s39, 0
          s_and_b32 s60, s2, 7
          s_lshr_b32 s61, s2, 3
          s_and_b32 s33, s61, 15
          s_lshr_b32 s61, s61, 4
          s_lshl_b32 s32, s60, 1
          s_add_u32 s32, s32, s61
          s_lshr_b32 s34, s33, 3
          s_and_b32 s35, s33, 7
          s_lshl_b32 s40, s32, 4
          s_add_u32 s40, s40, s33
          s_sub_u32 s60, 32, s32
          s_cmp_eq_u32 s32, 0
          s_cselect_b32 s60, 16, s60
          s_cmp_eq_u32 s34, 0
          s_cselect_b32 s36, s32, s60
          v_lshrrev_b32 v5, 6, v0
          v_and_b32 v0, 63, v0
          v_readfirstlane_b32 s37, v5
          v_and_b32 v2, 15, v0
          v_lshrrev_b32 v3, 4, v0
          v_lshlrev_b32 v1, 4, v0
          v_mov_b32 v29, 0
          v_mov_b32 v31, 0
          s_lshr_b32 s60, s37, 1
          s_lshl_b32 s60, s60, 5
          s_add_u32 s60, s60, s36
          s_and_b32 s61, s37, 1
          s_lshl_b32 s61, s61, 10
          s_add_u32 s60, s60, s61
          s_lshl_b32 s60, s60, 10
          s_lshl_b32 s61, s35, 7
          s_add_u32 s60, s60, s61
          v_lshlrev_b32 v4, 16, v2
          v_lshl_add_u32 v4, v3, 4, v4
          v_add_u32 v4, s60, v4
          s_waitcnt lgkmcnt(0)
          s_load_dword s42, s[52:53], 0
          s_mov_b32 s8, s30
          s_mov_b32 s9, s31
          s_mov_b32 s10, {2*MB}
          s_mov_b32 s11, 0x20000""")
    A("""buffer_load_dwordx4 v[16:19], v4, s[8:11], 0 offen
         buffer_load_dwordx4 v[20:23], v4, s[8:11], 0 offen offset:64""", "res")
    A(f"""s_mov_b32 s4, s52
          s_mov_b32 s5, s53
          s_mov_b32 s6, {256*MB}
          s_mov_b32 s7, 0x20000
          s_add_u32 s12, s52, {X2}
          s_addc_u32 s13, s53, 0
          s_mov_b32 s14, {2*MB}
          s_mov_b32 s15, 0x20000
          s_mov_b32 s16, s44
          s_mov_b32 s17, s45
          s_mov_b32 s18, {512*2752}
          s_mov_b32 s19, 0x20000
          s_mov_b32 s20, s46
          s_mov_b32 s21, s47
          s_mov_b32 s22, {512*2752}
          s_mov_b32 s23, 0x20000
          s_mov_b32 s24, s48
          s_mov_b32 s25, s49
          s_mov_b32 s26, {1376*1024}
          s_mov_b32 s27, 0x20000""")
    A(f"""s_lshl_b32 s60, s32, 5
          s_lshl_b32 s61, s37, 3
          s_add_u32 s60, s60, s61
          v_add_u32 v5, s60, v3
          v_mul_u32_u24 v5, 2752, v5
          s_mul_i32 s61, s33, 11
          v_add_u32 v6, s61, v2
          v_lshl_add_u32 v7, v6, 4, v5
          v_cmp_gt_u32 vcc, 172, v6
          v_cmp_gt_u32 s[62:63], 11, v2
          v_mov_b32 v8, 0x7f000000
          s_and_b64 vcc, vcc, s[62:63]
          v_cndmask_b32 v7, v8, v7, vcc
          v_add_u32 v9, {4*2752}, v7""")
    A("""buffer_load_dwordx4 v[96:99], v7, s[16:19], 0 offen
         buffer_load_dwordx4 v[100:103], v7, s[20:23], 0 offen
         buffer_load_dwordx4 v[104:107], v9, s[16:19], 0 offen
         buffer_load_dwordx4 v[108:111], v9, s[20:23], 0 offen""")
    def w2load(G, dst, lab):
        A(f"""s_mul_i32 s60, {G}, 5958
              s_lshr_b32 s60, s60, 16
              s_mul_i32 s61, s60, 11
              s_sub_u32 s61, {G}, s61
              s_lshr_b32 s62, s60, 2
              s_and_b32 s60, s60, 3
              s_mul_i32 s60, s60, 352
              s_lshl_b32 s62, s62, 7
              s_lshr_b32 s63, s61, 1
              s_mul_i32 s63, s63, 88
              s_and_b32 s64, s61, 1
              s_lshl_b32 s64, s64, 5
              s_add_u32 s63, s63, s64
              s_lshl_b32 s64, s37, 1
              s_add_u32 s63, s63, s64
              s_lshl_b32 s64, s61, 2
              s_add_u32 s64, s64, s37
              s_sub_u32 s64, s64, 32
              s_mul_i32 s65, s64, 43
              s_lshr_b32 s65, s65, 7
              s_mul_i32 s65, s65, 64
              s_lshl_b32 s64, s64, 3
              s_add_u32 s64, s64, s65
              s_add_u32 s64, s64, 64
              s_cmp_ge_u32 s61, 8
              s_cselect_b32 s63, s64, s63
              s_cselect_b64 vcc, -1, 0
              s_add_u32 s60, s60, s63
              s_lshl_b32 s60, s60, 10
              s_add_u32 s60, s60, s62
              v_cndmask_b32 v7, v10, v11, vcc
              v_add_u32 v7, s60, v7
              buffer_load_dwordx4 v[{dst}:{dst+3}], v7, s[24:27], 0 offen""")
    A("""v_lshrrev_b32 v11, 3, v0
         v_lshrrev_b32 v10, 4, v0
         v_and_b32 v7, 1, v11
         v_lshl_add_u32 v10, v10, 3, v7
         v_and_b32 v6, 7, v0
         v_lshlrev_b32 v6, 4, v6
         v_lshl_add_u32 v10, v10, 10, v6
         v_lshl_add_u32 v11, v11, 10, v6
         s_add_u32 s54, s40, 256""")
    w2load("s40", 112, "a")
    w2load("s54", 116, "b")
    A(f"""s_lshl_b32 s60, s36, 13
          s_lshl_b32 s61, s35, 10
          s_add_u32 s60, s60, s61
          s_lshl_b32 s61, s37, 8
          s_add_u32 s60, s60, s61
          s_add_u32 s60, s60, {ST}
          v_and_b32 v5, 1, v0
          v_lshlrev_b32 v5, 7, v5
          v_and_b32 v6, 2, v0
          v_lshl_add_u32 v5, v6, 17, v5
          v_add_u32 v5, s60, v5
          s_lshl_b32 s60, s40, 7
          s_add_u32 s60, s60, {CF}
          v_mov_b32 v6, s60
          v_cmp_gt_u32 vcc, 4, v0
          v_mov_b32 v27, {CFQ - CF}
          v_cndmask_b32 v5, v6, v5, vcc
          s_mov_b64 exec, 31
          buffer_load_dword v120, v5, s[4:7], 0 offen sc1
          s_mov_b64 exec, -1""")
    if PREFETCH:
        A(f"""s_getpc_b64 s[60:61]
              L_pc:
              s_lshl_b32 s62, s37, 13
              v_lshlrev_b32 v5, 7, v0
              v_add_u32 v5, s62, v5
              v_min_u32 v5, L_end-L_pc, v5
              global_load_dword v121, v5, s[60:61]
              v_lshlrev_b32 v5, 20, v0
              s_mov_b64 exec, 0xffffffff
              buffer_load_dword v122, v5, s[4:7], 0 offen sc1
              s_mov_b64 exec, -1
              s_waitcnt vmcnt(9)""")
    else:
        A("s_waitcnt vmcnt(7)")
    A("""s_lshr_b32 s60, s33, 2
         s_and_b32 s60, s60, 1
         s_lshl_b32 s60, s60, 5
         s_add_u32 s43, s36, s60
         s_sub_u32 s60, 64, s43
         s_cmp_le_u32 s43, 31
         s_cselect_b32 s41, s43, s60
         s_and_b32 s41, s41, 31
         s_and_b32 s60, s33, 3
         s_lshl_b32 s60, s60, 9
         s_add_u32 s55, s43, s60
         s_waitcnt lgkmcnt(0)
         s_mul_i32 s38, s42, 0x9E3779B1
         s_add_u32 s38, s38, 0x7F4A7C15
         v_mov_b32 v30, s38""")
    for r in range(32, 48): A(f"v_mov_b32 v{r}, 0")
    A.vm = []; A.lg = []

    A("L_E:")
    TS()
    for z in range(8):
        A(f"""v_lshlrev_b32 v{6+2*(z&1)}, 16, v{16+z}
              v_and_b32 v{7+2*(z&1)}, 0xffff0000, v{16+z}
              v_pk_add_f32 v[{32+2*z}:{33+2*z}], v[{32+2*z}:{33+2*z}], v[{6+2*(z&1)}:{7+2*(z&1)}]""")
    for z in range(8):
        A(f"v_cvt_pk_bf16_f32 v{68+z}, v{32+2*z}, v{33+2*z}")
    A("""s_cmp_eq_u32 s39, 2
         s_cbranch_scc1 L_fin""")
    A("""v_pk_add_f32 v[6:7], v[32:33], v[34:35]
         v_pk_mul_f32 v[8:9], v[32:33], v[32:33]""")
    A("v_pk_fma_f32 v[8:9], v[34:35], v[34:35], v[8:9]")
    for z in range(2, 8):
        A(f"""v_pk_add_f32 v[6:7], v[6:7], v[{32+2*z}:{33+2*z}]
              v_pk_fma_f32 v[8:9], v[{32+2*z}:{33+2*z}], v[{32+2*z}:{33+2*z}], v[8:9]""")
    def qreduce(a, b, ta, tb):
        for sw in ("v_permlane32_swap_b32", "v_permlane16_swap_b32"):
            A(f"""v_mov_b32 v{ta}, v{a}
                  v_mov_b32 v{tb}, v{b}
                  {sw} v{a}, v{ta}
                  {sw} v{b}, v{tb}
                  v_add_f32 v{a}, v{a}, v{ta}
                  v_add_f32 v{b}, v{b}, v{tb}""")
    A("""v_add_f32 v48, v6, v7
         v_add_f32 v49, v8, v9
         v_mov_b32 v50, s38
         v_mov_b32 v51, s38""")
    qreduce(48, 49, 6, 7)
    A(f"""s_lshl_b32 s60, s39, 5
          s_add_u32 s60, s60, s36
          s_lshl_b32 s60, s60, 13
          s_lshl_b32 s61, s37, 8
          s_add_u32 s60, s60, s61
          s_add_u32 s56, s60, {ST}
          s_lshl_b32 s61, s35, 10
          s_add_u32 s61, s61, s56
          s_add_u32 s57, s56, 4096
          s_add_u32 s62, s61, {STQ - ST}
          s_mov_b64 exec, 0xffff
          buffer_store_dwordx4 v[48:51], v1, s[4:7], s61 offen
          buffer_store_dwordx4 v[48:51], v1, s[4:7], s62 offen sc1
          s_mov_b64 exec, -1""")
    A(f"""s_lshl_b32 s60, s37, 4
          v_add_u32 v5, s60, v2
          v_lshrrev_b32 v6, 1, v5
          v_cmp_eq_u32 vcc, 1, v5
          v_and_b32 v7, 1, v5
          v_cndmask_b32 v6, v6, 32, vcc
          v_cndmask_b32 v7, v7, 0, vcc
          v_and_b32 v11, 1, v6
          v_cvt_f32_u32 v6, v6
          v_cvt_f32_u32 v7, v7
          v_cvt_f32_u32 v8, v3
          v_mul_f32 v6, {f2u(1/64)}, v6
          v_mul_f32 v7, {f2u(0.25)}, v7
          v_mul_f32 v8, {f2u(8.0)}, v8
          v_fma_f32 v7, v6, v8, v7
          v_mul_u32_u24 v11, 0x8000, v11
          v_lshl_or_b32 v11, v11, 16, v11""")
    for ks in range(2):
        for pr in range(2):
            for b in range(2):
                A(f"""v_fmamk_f32 v{8+b}, v6, {f2u(float(ks + 2*(2*pr+b)))}, v7
                      v_cos_f32 v{8+b}, v{8+b}""")
            A(f"""v_cvt_pk_bf16_f32 v{60+4*ks+pr}, v8, v9
                  v_xor_b32 v{62+4*ks+pr}, v11, v{60+4*ks+pr}""")
    A(f"""v_lshlrev_b32 v5, 4, v2
          v_lshl_add_u32 v5, v3, 10, v5
          s_cmp_lg_u32 s39, 0
          s_cbranch_scc1 L_norelay
          s_mul_i32 s60, s37, 6144
          v_lshlrev_b32 v6, 5, v0
          v_add_u32 v6, s60, v6
          v_add_u32 v7, 2048, v6
          v_add_u32 v10, s60, v1
          v_lshrrev_b32 v8, 2, v2
          v_and_b32 v9, 3, v2
          v_lshlrev_b32 v12, 9, v8
          v_lshl_add_u32 v12, v3, 5, v12
          v_lshl_add_u32 v12, v9, 3, v12
          v_add_u32 v12, s60, v12
          v_lshlrev_b32 v8, 7, v8
          v_lshl_add_u32 v8, v9, 4, v8
          v_lshrrev_b32 v9, 1, v3
          v_lshl_add_u32 v8, v9, 6, v8
          v_and_b32 v9, 1, v3
          v_lshl_add_u32 v8, v9, 3, v8
          v_add_u32 v8, s60, v8
          s_mul_i32 s61, s33, 180224
          s_lshl_b32 s62, s37, 8
          s_add_u32 s61, s61, s62
          s_add_u32 s61, s61, {W1F}
          s_lshl_b32 s63, s32, 12
          s_add_u32 s63, s63, s61
          s_add_u32 s64, s63, 65536
          s_mul_i32 s65, s32, 3072
          s_add_u32 s65, s65, s61
          s_add_u32 s65, s65, 131072
          s_lshl_b32 s66, s40, 12
          s_add_u32 s66, s66, s62
          s_add_u32 s66, s66, {W2F}
          s_add_u32 s67, s66, {256*4096}
          s_waitcnt vmcnt({5 if PREFETCH else 3})""")
    for rq in range(2):
        for z in range(4):
            A(f"ds_write2_b32 v{6+rq}, v{96+8*rq+z}, v{100+8*rq+z} offset0:{2*z} offset1:{2*z+1}")
    A("""ds_write_b128 v10, v[112:115] offset:4096
         ds_write_b128 v10, v[116:119] offset:5120
         s_waitcnt lgkmcnt(0)""")
    for z in range(3):
        A(f"""ds_read_b64_tr_b16 v[{96+4*z}:{97+4*z}], v12 offset:{128*z}
              ds_read_b64_tr_b16 v[{98+4*z}:{99+4*z}], v12 offset:{128*z+2048}""")
    for z in range(2):
        A(f"""ds_read_b64_tr_b16 v[{108+4*z}:{109+4*z}], v8 offset:{4096+1024*z}
              ds_read_b64_tr_b16 v[{110+4*z}:{111+4*z}], v8 offset:{4096+1024*z+512}""")
    A("""s_waitcnt lgkmcnt(0)
         buffer_store_dwordx4 v[96:99], v5, s[4:7], s63 offen sc1
         buffer_store_dwordx4 v[100:103], v5, s[4:7], s64 offen sc1
         buffer_store_dwordx4 v[108:111], v5, s[4:7], s66 offen sc1
         s_mov_b32 exec_hi, 0xffff
         buffer_store_dwordx4 v[104:107], v5, s[4:7], s65 offen sc1
         s_mov_b32 exec_hi, -1
         s_cmp_ge_u32 s40, 96
         s_cbranch_scc1 L_norelay
         buffer_store_dwordx4 v[112:115], v5, s[4:7], s67 offen sc1
         L_norelay:""")
    TS()
    poll("L_pS", """buffer_load_dwordx4 v[52:55], v5, s[4:7], s60 offen sc1
                    buffer_load_dwordx4 v[56:59], v5, s[4:7], s61 offen sc1""", [54, 55, 58, 59],
         dual=[("s60", "s56", STQ - ST), ("s61", "s57", STQ - ST)])
    TS()
    A(f"""s_cmp_lg_u32 s39, 0
          s_cbranch_scc1 L_nogw
          s_lshl_b32 s60, s40, 7
          s_lshl_b32 s61, s37, 2
          s_add_u32 s60, s60, s61
          s_add_u32 s60, s60, {CFQ + 112}""")
    flag_store("s60")
    A("L_nogw:")
    A("""v_add_f32 v48, v52, v56
         v_add_f32 v49, v53, v57""")
    def finish_stats(s, ss, r, nmr):
        A(f"""v_mul_f32 v{s}, {f2u(1/512)}, v{s}
              v_mul_f32 v{nmr}, v{s}, v{s}
              v_fma_f32 v{ss}, v{ss}, s58, -v{nmr}
              v_max_f32 v{ss}, 0, v{ss}
              v_add_f32 v{ss}, {f2u(1e-5)}, v{ss}
              v_rsq_f32 v{r}, v{ss}
              s_nop 0
              v_mul_f32 v{nmr}, v{s}, v{r}""")
    A(f"s_mov_b32 s58, {f2u(1/512)}")
    qreduce(48, 49, 6, 7)
    finish_stats(48, 49, 50, 51)
    A(f"""s_mul_i32 s60, s37, {16*160}
          s_add_u32 s60, s60, {IB}
          v_mul_u32_u24 v5, 160, v2
          v_lshl_add_u32 v5, v3, 3, v5
          v_add_u32 v5, s60, v5""")
    for z in range(8):
        A(f"""v_fma_f32 v{32+2*z}, v{32+2*z}, v50, -v51
              v_fma_f32 v{33+2*z}, v{33+2*z}, v50, -v51
              v_cvt_pk_bf16_f32 v{16+z}, v{32+2*z}, v{33+2*z}""")
    for m in range(4):
        A(f"ds_write_b64 v5, v[{16+2*m}:{17+2*m}] offset:{32*m}")
    A(f"""v_lshrrev_b32 v6, 2, v2
          v_lshl_add_u32 v6, v3, 2, v6
          v_and_b32 v7, 3, v2
          v_mul_u32_u24 v8, 160, v6
          v_lshl_add_u32 v8, v7, 3, v8
          v_add_u32 v8, {IB}, v8
          s_waitcnt lgkmcnt(0)
          s_barrier""")
    A.lg = []
    for m in range(4):
        for ks in range(2):
            for hh in range(2):
                r = 96 + 8*m + 4*ks + 2*hh
                A(f"ds_read_b64_tr_b16 v[{r}:{r+1}], v8 offset:{ks*5120+hh*2560+32*m}", ("p1", m))
    A(f"""v_lshrrev_b32 v9, 1, v2
          v_lshlrev_b32 v9, 16, v9
          v_and_b32 v10, 1, v2
          v_lshl_add_u32 v9, v10, 10, v9
          v_lshl_add_u32 v9, v3, 4, v9
          s_lshl_b32 s60, s39, 21
          s_lshl_b32 s61, s37, 19
          s_add_u32 s60, s60, s61
          s_lshl_b32 s61, s36, 11
          s_add_u32 s60, s60, s61
          s_lshl_b32 s61, s35, 7
          s_add_u32 s60, s60, s61
          s_add_u32 s60, s60, {Y}""")
    for m in range(4):
        A.wait_lg(("p1", m))
        A(f"v_mfma_f32_16x16x32_bf16 v[{32+4*m}:{35+4*m}], v[{96+8*m}:{99+8*m}], v[60:63], 0")
        A(f"v_mfma_f32_16x16x32_bf16 v[{32+4*m}:{35+4*m}], v[{100+8*m}:{103+8*m}], v[64:67], v[{32+4*m}:{35+4*m}]")
    for z in range(8):
        A(f"v_cvt_pk_bf16_f32 v{16+z}, v{32+2*z}, v{33+2*z}")
    A("""buffer_store_dwordx4 v[16:19], v9, s[4:7], s60 offen sc1
         buffer_store_dwordx4 v[20:23], v9, s[4:7], s60 offen offset:64 sc1
         s_cmp_eq_u32 s39, 0
         s_cbranch_scc1 L_nostore
         buffer_store_dwordx4 v[68:71], v4, s[12:15], 0 offen sc1
         buffer_store_dwordx4 v[72:75], v4, s[12:15], 0 offen offset:64 sc1
         s_mov_b32 s8, s12
         s_mov_b32 s9, s13
         s_mov_b32 s12, s50
         s_mov_b32 s13, s51
         L_nostore:""")
    A(f"""s_lshl_b32 s59, s39, 14
          s_add_u32 s59, s59, {GF}
          s_lshl_b32 s60, s37, 12
          s_lshr_b32 s61, s35, 1
          s_lshl_b32 s61, s61, 10
          s_add_u32 s60, s60, s61
          s_lshr_b32 s61, s36, 2
          s_lshl_b32 s61, s61, 7
          s_add_u32 s60, s60, s61
          s_and_b32 s61, s36, 3
          s_lshl_b32 s61, s61, 3
          s_add_u32 s60, s60, s61
          s_and_b32 s61, s35, 1
          s_lshl_b32 s61, s61, 2
          s_add_u32 s60, s60, s61
          s_add_u32 s60, s60, s59""")
    A.vm0()
    flag_store("s60")
    TS()

    A(f"""s_cmp_lg_u32 s39, 0
          s_cbranch_scc1 L_nopre
          s_lshl_b32 s62, s33, 7
          s_add_u32 s62, s62, {CFQ + 112}
          v_lshlrev_b32 v5, 11, v0""")
    poll("L_pW", "buffer_load_dwordx4 v[6:9], v5, s[4:7], s62 offen sc1", [6, 7, 8, 9], mask="0xffff")
    A(f"""s_mul_i32 s60, s33, 180224
          s_add_u32 s60, s60, {W1F}
          s_mul_i32 s61, s37, {19*1024}
          s_add_u32 s60, s60, s61""")
    dma("v1", "s60", "s61", 19, flags="sc1")
    A("L_nopre:")

    B2, BA, TC, TSN, BB = 176, 184, 190, 198, 206
    A(f"""s_cmp_eq_u32 s43, 32
          s_cselect_b32 s62, 0, 1.0
          s_cselect_b32 s63, 1.0, 0
          s_cmp_gt_u32 s43, 32
          s_cselect_b32 s64, -1.0, 1.0
          s_and_b32 s60, s43, 31
          s_cmp_eq_u32 s60, 0
          s_cselect_b32 s64, 0, s64
          v_lshrrev_b32 v5, 1, v2
          v_lshlrev_b32 v5, 6, v5
          v_add_u32 v5, s55, v5
          v_cvt_f32_u32 v5, v5
          v_and_b32 v6, 1, v2
          v_cvt_f32_u32 v12, v6
          v_cvt_f32_u32 v7, v3
          v_cvt_f32_u32 v13, v2
          v_mul_f32 v5, {f2u(1/2048)}, v5
          v_mul_f32 v12, {f2u(0.25)}, v12
          v_add_f32 v8, v7, v7
          v_fma_f32 v12, v5, v8, v12
          v_mul_u32_u24 v6, 0x8000, v6
          v_lshl_or_b32 v6, v6, 16, v6
          v_mul_f32 v7, 4.0, v7""")
    for ks in range(2):
        for z in range(4):
            A(f"""v_fmamk_f32 v8, v5, {f2u(float(16*ks + 8*(z>>1) + (z&1)))}, v12
                  v_cos_f32 v9, v8
                  v_sin_f32 v10, v8
                  v_mul_f32 v11, s63, v9
                  v_mul_f32 v9, s62, v9
                  v_fma_f32 v10, v10, s64, v11
                  v_cvt_pk_bf16_f32 v{B2+4*ks+z}, v9, v10""")
    def sincos4(scale, cdst, sdst, add=0):
        A(f"""v_mul_f32 v5, {f2u(scale)}, v13
              v_mul_f32 v12, v5, v7""")
        for j in range(4):
            A(f"""v_fmamk_f32 v8, v5, {f2u(float(j+add))}, v12
                  v_cos_f32 v{cdst+j}, v8
                  v_sin_f32 v{sdst+j}, v8""")
    sincos4(1/16, 16, 20)
    A(f"""v_cvt_pk_bf16_f32 v{BA+2}, v16, v17
          v_cvt_pk_bf16_f32 v{BA+3}, v18, v19
          v_cvt_pk_bf16_f32 v{BA+4}, v20, v21
          v_cvt_pk_bf16_f32 v{BA+5}, v22, v23
          v_xor_b32 v{BA}, 0x80008000, v{BA+4}
          v_xor_b32 v{BA+1}, 0x80008000, v{BA+5}""")
    sincos4(1/512, TC, TSN)
    sincos4(1/512, TC+4, TSN+4, 16)
    sincos4(1/32, 16, 20)
    for ks in range(2):
        A(f"""v_cvt_pk_bf16_f32 v{BB+4*ks}, v{16+4*ks}, v{17+4*ks}
              v_cvt_pk_bf16_f32 v{BB+4*ks+1}, v{18+4*ks}, v{19+4*ks}
              v_xor_b32 v{BB+4*ks+2}, v6, v{BB+4*ks}
              v_xor_b32 v{BB+4*ks+3}, v6, v{BB+4*ks+1}""")
    for z in range(8):
        A(f"v_xor_b32 v{BB+8+z}, 0x80000000, v{BB+z}")
    A(f"""v_lshrrev_b32 v5, 3, v0
          v_and_b32 v6, 7, v0
          v_lshlrev_b32 v5, 7, v5
          v_lshl_add_u32 v5, v6, 2, v5
          s_lshr_b32 s60, s41, 3
          s_lshl_b32 s60, s60, 12
          s_lshl_b32 s61, s37, 10
          s_add_u32 s60, s60, s61
          s_add_u32 s59, s59, s60
          v_lshlrev_b32 v14, 1, v3
          v_xor_b32 v14, v14, v2
          v_lshlrev_b32 v14, 4, v14
          v_lshl_add_u32 v14, v3, 10, v14
          v_xor_b32 v15, 128, v14
          s_lshl_b32 s60, s39, 21
          s_lshl_b32 s61, s41, 16
          s_add_u32 s60, s60, s61
          s_lshl_b32 s61, s37, 8
          s_add_u32 s60, s60, s61
          s_add_u32 s60, s60, {Y}
          s_lshl_b32 s61, s37, 14
          s_add_u32 s61, s61, {YB}
          s_mov_b32 s65, s61""")
    TS()
    poll("L_pG", "buffer_load_dword v6, v5, s[4:7], s59 offen sc1", [6])
    TS()
    dma("v14", "s60", "s61", 16, gstep=4096, flags="sc1", tag="y", alt="v15")
    A(f"""s_barrier
          s_lshl_b32 s60, s37, 7
          s_add_u32 s60, s60, s55
          s_lshl_b32 s66, s60, 10
          s_add_u32 s67, s66, 65536
          v_lshlrev_b32 v10, 5, v2
          v_lshl_add_u32 v10, v3, 3, v10""")
    for r in range(2):
        for g in range(2):
            A(f"buffer_load_dwordx2 v[{16+4*r+2*g}:{17+4*r+2*g}], v10, s[8:11], s{66+r} offen offset:{512*g} sc1", "res")
    A.wait_vm("y")
    A(f"""v_lshrrev_b32 v5, 2, v2
          v_lshl_add_u32 v5, v3, 2, v5
          v_and_b32 v6, 7, v5
          v_and_b32 v7, 3, v2
          v_lshlrev_b32 v8, 8, v5
          v_lshl_add_u32 v8, v6, 5, v8
          v_lshl_add_u32 v8, v7, 3, v8
          v_add_u32 v8, s65, v8""")
    TS()
    A.lg = []
    for mt in range(8):
        A(f"v_xor_b32 v9, {32*mt}, v8")
        for ks in range(2):
            for hh in range(2):
                r = 96 + 8*mt + 4*ks + 2*hh
                A(f"ds_read_b64_tr_b16 v[{r}:{r+1}], v9 offset:{ks*8192+hh*4096}", ("p2", mt))
        if mt >= 3:
            m = mt - 3
            A.wait_lg(("p2", m))
            A(f"v_mfma_f32_16x16x32_bf16 v[{32+4*m}:{35+4*m}], v[{96+8*m}:{99+8*m}], v[{B2}:{B2+3}], 0")
            A(f"v_mfma_f32_16x16x32_bf16 v[{32+4*m}:{35+4*m}], v[{100+8*m}:{103+8*m}], v[{B2+4}:{B2+7}], v[{32+4*m}:{35+4*m}]")
    A(f"""v_mul_u32_u24 v11, 1032, v2
          v_lshl_add_u32 v11, v3, 3, v11
          s_lshl_b32 s60, s37, 8
          s_and_b32 s61, s37, 1
          s_lshl_b32 s61, s61, 5
          s_add_u32 s60, s60, {ZB}
          s_add_u32 s62, s60, s61
          s_xor_b32 s61, s61, 32
          s_add_u32 s63, s60, s61
          v_add_u32 v12, s63, v11
          v_add_u32 v11, s62, v11""")
    for m in range(5, 8):
        A.wait_lg(("p2", m))
        A(f"v_mfma_f32_16x16x32_bf16 v[{32+4*m}:{35+4*m}], v[{96+8*m}:{99+8*m}], v[{B2}:{B2+3}], 0")
        A(f"v_mfma_f32_16x16x32_bf16 v[{32+4*m}:{35+4*m}], v[{100+8*m}:{103+8*m}], v[{B2+4}:{B2+7}], v[{32+4*m}:{35+4*m}]")
    for m in range(8):
        A(f"""v_cvt_pk_bf16_f32 v{64+2*m}, v{32+4*m}, v{33+4*m}
              v_cvt_pk_bf16_f32 v{65+2*m}, v{34+4*m}, v{35+4*m}
              ds_write_b64 v{11+(m&1)}, v[{64+2*m}:{65+2*m}] offset:{64*(m>>1)}""")
    A(f"""v_and_b32 v6, 1, v3
          v_lshlrev_b32 v8, 6, v5
          v_lshl_add_u32 v8, v6, 5, v8
          v_lshl_add_u32 v8, v7, 3, v8
          s_mul_i32 s60, s37, 4128
          s_add_u32 s68, s60, {ZB}
          v_xor_b32 v9, 32, v8
          v_add_u32 v8, s68, v8
          v_add_u32 v9, s68, v9
          s_waitcnt lgkmcnt(0)
          s_barrier""")
    A.lg = []
    for r in range(2):
        for h in range(2):
            for cc in range(2):
                reg = 96 + 8*r + 4*h + 2*cc
                A(f"ds_read_b64_tr_b16 v[{reg}:{reg+1}], v{8+h} offset:{r*2064+cc*1032}", ("sa", r))
    A(f"""s_mul_i32 s62, s33, 180224
          s_add_u32 s62, s62, {W1F + 77824}
          s_mul_i32 s63, s37, {13*1024}
          s_add_u32 s62, s62, s63
          s_add_u32 s63, s63, 77824""")
    side = dma_items("v1", "s62", "s63", 13)
    mark = len(A.lines)
    for r in range(2):
        A.wait_lg(("sa", r))
        for h in range(2):
            for c2 in range(2):
                d = 32 + 16*r + 8*c2 + 4*h
                b = BA + 2 if c2 == 0 else BA
                A(f"v_mfma_f32_16x16x32_bf16 v[{d}:{d+3}], v[{96+8*r+4*h}:{99+8*r+4*h}], v[{b}:{b+3}], 0")
    for r in range(2):
        for z in range(4):
            ur, ui = 32 + 16*r + 2*z, 40 + 16*r + 2*z
            A(f"""v_pk_mul_f32 v[6:7], v[{ui}:{ui+1}], v[{TSN+2*z}:{TSN+2*z+1}]
                  v_pk_mul_f32 v[12:13], v[{ur}:{ur+1}], v[{TSN+2*z}:{TSN+2*z+1}]
                  v_pk_fma_f32 v[6:7], v[{ur}:{ur+1}], v[{TC+2*z}:{TC+2*z+1}], v[6:7]
                  v_pk_fma_f32 v[12:13], v[{ui}:{ui+1}], v[{TC+2*z}:{TC+2*z+1}], v[12:13] neg_lo:[0,0,1] neg_hi:[0,0,1]
                  v_cvt_pk_bf16_f32 v{112+8*r+z}, v6, v7
                  v_cvt_pk_bf16_f32 v{116+8*r+z}, v12, v13""")
        for g in range(2):
            d = 64 + 8*r + 4*g
            A(f"v_mfma_f32_16x16x32_bf16 v[{d}:{d+3}], v[{112+8*r}:{115+8*r}], v[{BB+8*g}:{BB+8*g+3}], 0")
            A(f"v_mfma_f32_16x16x32_bf16 v[{d}:{d+3}], v[{116+8*r}:{119+8*r}], v[{BB+8*g+4}:{BB+8*g+7}], v[{d}:{d+3}]")
    A("""RESWAIT
         v_add_u32 v11, s68, v10""")
    for r in range(2):
        for z in range(4):
            x = 64 + 8*r + 2*z
            A(f"""v_lshlrev_b32 v6, 16, v{16+4*r+z}
                  v_and_b32 v7, 0xffff0000, v{16+4*r+z}
                  v_pk_add_f32 v[{x}:{x+1}], v[{x}:{x+1}], v[6:7]
                  v_cvt_pk_bf16_f32 v{16+4*r+z}, v{x}, v{x+1}""")
        for g in range(2):
            A(f"ds_write_b64 v11, v[{16+4*r+2*g}:{17+4*r+2*g}] offset:{1024*r+512*g}")
        x = 64 + 8*r
        A(f"""v_pk_add_f32 v[{32+4*r}:{33+4*r}], v[{x}:{x+1}], v[{x+2}:{x+3}]
              v_pk_mul_f32 v[{34+4*r}:{35+4*r}], v[{x}:{x+1}], v[{x}:{x+1}]""")
        for z in range(1, 4):
            if z > 1: A(f"v_pk_add_f32 v[{32+4*r}:{33+4*r}], v[{32+4*r}:{33+4*r}], v[{x+2*z}:{x+2*z+1}]")
            A(f"v_pk_fma_f32 v[{34+4*r}:{35+4*r}], v[{x+2*z}:{x+2*z+1}], v[{x+2*z}:{x+2*z+1}], v[{34+4*r}:{35+4*r}]")
        A(f"""v_add_f32 v{40+2*r}, v{32+4*r}, v{33+4*r}
              v_add_f32 v{41+2*r}, v{34+4*r}, v{35+4*r}""")
    for sh in (8, 4, 2, 1):
        for k in range(4):
            A(f"v_add_f32_dpp v{40+k}, v{40+k}, v{40+k} row_ror:{sh} row_mask:0xf bank_mask:0xf")
    for sw in ("v_permlane32_swap_b32", "v_permlane16_swap_b32"):
        for k in range(4): A(f"v_mov_b32 v{44+k}, v{40+k}")
        for k in range(4): A(f"{sw} v{40+k}, v{44+k}")
        for k in range(4): A(f"v_add_f32 v{40+k}, v{40+k}, v{44+k}")
    A(f"""v_add_u32 v12, s68, v1
          s_waitcnt lgkmcnt(0)""")
    A.lg = []
    A("""ds_read_b128 v[48:51], v12
         ds_read_b128 v[52:55], v12 offset:1024""")
    for r in range(2):
        finish_stats(40+2*r, 41+2*r, 44+2*r, 45+2*r)
    for r in range(2):
        for z in range(4):
            x = 64 + 8*r + 2*z
            A(f"""v_fma_f32 v{x}, v{x}, v{44+2*r}, -v{45+2*r}
                  v_fma_f32 v{x+1}, v{x+1}, v{44+2*r}, -v{45+2*r}
                  v_cvt_pk_bf16_f32 v{16+4*r+z}, v{x}, v{x+1}""")
        for g in range(2):
            A(f"ds_write_b64 v11, v[{16+4*r+2*g}:{17+4*r+2*g}] offset:{2048+1024*r+512*g}")
    body = A.lines[mark:]; del A.lines[mark:]
    step = len(body) // (len(side) + 1); issued = 0
    for k, l in enumerate(body):
        if "RESWAIT" in l: A(f"s_waitcnt vmcnt({issued})"); continue
        A.lines.append(l)
        if k % step == 0 and side: A(side.pop(0)); issued += 1
    assert not side
    A(f"""s_lshl_b32 s60, s39, 21
          s_add_u32 s60, s60, {X1}
          s_add_u32 s66, s66, s60
          s_add_u32 s67, s67, s60
          v_and_b32 v5, 7, v0
          v_lshrrev_b32 v6, 3, v0
          v_lshrrev_b32 v7, 1, v5
          v_mul_u32_u24 v7, 4128, v7
          v_and_b32 v8, 1, v5
          v_lshl_add_u32 v7, v8, 10, v7
          v_lshl_add_u32 v7, v6, 4, v7
          s_lshl_b32 s61, s37, 8
          s_add_u32 s61, s61, {ZB + 2048}
          v_add_u32 v7, s61, v7
          v_lshlrev_b32 v6, 8, v6
          v_lshl_add_u32 v6, v5, 4, v6
          s_waitcnt lgkmcnt(0)
          buffer_store_dwordx4 v[48:51], v1, s[4:7], s66 offen sc1
          buffer_store_dwordx4 v[52:55], v1, s[4:7], s67 offen sc1
          s_barrier
          ds_read_b128 v[56:59], v7
          ds_read_b128 v[60:63], v7 offset:128
          s_lshl_b32 s60, s39, 21
          s_lshr_b32 s61, s40, 1
          s_lshl_b32 s61, s61, 14
          s_add_u32 s60, s60, s61
          s_and_b32 s61, s33, 1
          s_lshl_b32 s61, s61, 7
          s_add_u32 s60, s60, s61
          s_lshl_b32 s61, s37, 12
          s_add_u32 s60, s60, s61
          s_add_u32 s60, s60, {XN}
          s_waitcnt lgkmcnt(0)
          buffer_store_dwordx4 v[56:59], v6, s[4:7], s60 offen sc1
          buffer_store_dwordx4 v[60:63], v6, s[4:7], s60 offen offset:2048 sc1
          s_lshl_b32 s59, s39, 6
          s_add_u32 s59, s59, {CF}
          s_lshl_b32 s60, s40, 7
          s_add_u32 s69, s60, s59
          s_lshl_b32 s60, s37, 2
          s_add_u32 s69, s69, s60
          s_lshl_b32 s60, s32, 11
          s_lshl_b32 s61, s37, 9
          s_add_u32 s60, s60, s61
          s_add_u32 s59, s59, s60
          v_lshlrev_b32 v5, 7, v0""")
    TS()
    A.vm0(); A.lg = []
    flag_store("s69", dual=True)
    TS()
    poll("L_pC1", "buffer_load_dwordx4 v[6:9], v5, s[4:7], s60 offen sc1", [6, 7, 8, 9], mask="15", dual=[("s60", "s59", CFQ - CF)])
    TS()

    def xreg(n):
        return f"a[{176+4*n}:{179+4*n}]" if n < 20 else f"v[{128+4*(n-20)}:{131+4*(n-20)}]"
    A(f"""s_lshl_b32 s60, s39, 21
          s_lshl_b32 s61, s32, 17
          s_add_u32 s60, s60, s61
          s_lshl_b32 s61, s37, 15
          s_add_u32 s60, s60, s61
          s_add_u32 s60, s60, {XN}
          s_add_u32 s61, s60, 16384""")
    xq = []
    for kk in range(16):
        for T in range(2):
            t = f"s_add_u32 s{60+T}, s{60+T}, 4096\n" if (kk % 4 == 0 and kk) else ""
            xq.append((t + f"buffer_load_dwordx4 {xreg(2*kk+T)}, v1, s[4:7], s{60+T} offen offset:{(kk%4)*1024} sc1", ("xn", kk)))
    PRE = 10
    for t, tag in xq[:PRE]: A(t, tag)
    A(f"""s_barrier
          v_add_u32 v10, 65536, v1
          v_add_u32 v11, 131072, v1
          s_mul_i32 s64, s39, {HL}
          s_mul_i32 s65, s32, {8*45056}
          s_add_u32 s64, s64, s65
          s_add_u32 s71, s64, {H}
          s_mul_i32 s65, s37, {2*45056}
          s_add_u32 s64, s71, s65
          s_mul_i32 s65, s33, 2816
          s_add_u32 s62, s64, s65
          s_add_u32 s63, s62, 45056
          s_mul_i32 s64, s33, 180224
          s_add_u32 s66, s64, {W1F + 161792}
          s_add_u32 s64, s64, {W1F + 131072}
          s_lshl_b32 s65, s37, 13
          s_add_u32 s64, s64, s65
          s_add_u32 s65, s65, 131072
          s_mul_i32 s67, s37, 5120
          s_add_u32 s66, s66, s67
          s_add_u32 s67, s67, 77824
          s_lshl_b32 s68, s35, 2
          s_add_u32 s68, s68, s37
          s_mul_i32 s68, s68, 45056
          s_add_u32 s68, s68, {W2F}
          s_cmp_eq_u32 s39, 0
          s_cselect_b64 s[56:57], -1, 0
          s_lshl_b32 s72, s39, 21
          s_add_u32 s72, s72, {X1}""")

    frags = []
    for ps, nt in ((0, 4), (1, 4), (2, 3)):
        for kk in range(16):
            for t in range(nt):
                if ps == 0: addr = ("v1", kk*4096 + t*1024)
                elif ps == 1: addr = ("v10", kk*4096 + t*1024)
                elif kk < 10: addr = ("v11", kk*3072 + t*1024)
                else: addr = ("v10", 12288 + (kk-10)*3072 + t*1024)
                frags.append((ps, kk, t, addr))
    LOOK = 6
    def aread(n):
        ps, kk, t, (va, off) = frags[n]
        r = 96 + 4*(n % 8)
        A(f"ds_read_b128 v[{r}:{r+3}], {va} offset:{off}", ("af", n))
    def acc(ps, t, T):
        return 32 + 32*(ps & 1) + 8*t + 4*T
    LOG2E = f2u(-1.4426950408889634)
    def epi(ps, nt):
        out = []
        for T in range(2):
            for t in range(nt):
                a = acc(ps, t, T); t0 = 184 + 2*((2*t+T) & 1)
                out += [(4, f"v_mul_f32 v{t0}, {LOG2E}, v{a}"), (4, f"v_mul_f32 v{t0+1}, {LOG2E}, v{a+1}"),
                        (8, f"v_exp_f32 v{t0}, v{t0}"), (8, f"v_exp_f32 v{t0+1}, v{t0+1}"),
                        (4, f"v_mul_f32 v{a}, v{a}, v{a+2}"), (4, f"v_add_f32 v{t0}, 1.0, v{t0}"),
                        (4, f"v_add_f32 v{t0+1}, 1.0, v{t0+1}"), (8, f"v_rcp_f32 v{t0}, v{t0}"),
                        (8, f"v_rcp_f32 v{t0+1}, v{t0+1}"), (4, f"v_mul_f32 v{a+1}, v{a+1}, v{a+3}"),
                        (4, f"v_mul_f32 v{a}, v{a}, v{t0}"), (4, f"v_mul_f32 v{a+1}, v{a+1}, v{t0+1}"),
                        (4, f"v_cvt_pk_bf16_f32 v{176+4*T+t}, v{a}, v{a+1}")]
            if nt == 4:
                out.append((4, f"buffer_store_dwordx4 v[{176+4*T}:{179+4*T}], v1, s[4:7], s{62+T} offen offset:{1024*ps} sc1"))
        return out
    vq = list(xq[PRE:]) + [(t, "r0") for t in dma_items("v1", "s64", "s65", 8)]
    w2q = []
    for f in range(44):
        t = "s_add_u32 s68, s68, 4096\n" if (f % 4 == 0 and f) else ""
        w2q.append((t + f"s_mov_b64 exec, s[56:57]\nbuffer_load_dwordx4 a[{4*f}:{4*f+3}], v1, s[4:7], s68 offen offset:{(f%4)*1024} sc1\ns_mov_b64 exec, -1", "cond"))
    A.lg = []
    for n in range(LOOK): aread(n)
    fill, budget, nm = [], 0, 0
    for n, (ps, kk, t, _) in enumerate(frags):
        first = (kk == 0 and t == 0)
        if first and ps == 1:
            TS()
            assert not vq
            vq = w2q[:28]
            fill = epi(0, 4); budget = 0
        if ps == 1 and kk == 14 and t == 0:
            A.wait_vm("r0")
            A("s_barrier")
            vq = [(t_, "r1") for t_ in dma_items("v1", "s66", "s67", 5)] + vq
        if first and ps == 2:
            while fill: A(fill.pop(0)[1])
            TS()
            vq = vq + w2q[28:] + [("buffer_load_dwordx4 v[16:19], v4, s[4:7], s72 offen sc1", "res"),
                                  ("buffer_load_dwordx4 v[20:23], v4, s[4:7], s72 offen offset:64 sc1", "res")]
            fill = epi(1, 4); budget = 0
        if ps == 2 and kk == 8 and t == 0:
            A.wait_vm("r1")
            A("s_barrier")
        if ps == 0 and t == 0:
            A.wait_vm(("xn", kk))
        A.wait_lg(("af", n))
        r = 96 + 4*(n % 8)
        for T in range(2):
            a = acc(ps, t, T)
            c = "0" if kk == 0 else f"v[{a}:{a+3}]"
            A(f"v_mfma_f32_16x16x32_bf16 v[{a}:{a+3}], v[{r}:{r+3}], {xreg(2*kk+T)}, {c}")
            budget += 8; nm += 1
            if T == 0 and n + LOOK < len(frags):
                aread(n + LOOK); budget -= 4
            if nm % 4 == 0 and vq:
                t_, tag = vq.pop(0); A(t_, tag); budget -= 4
            while fill and budget >= fill[0][0]:
                budget -= fill[0][0]; A(fill.pop(0)[1])
            budget = min(budget, 8)
    while fill: A(fill.pop(0)[1])
    while vq:
        t_, tag = vq.pop(0); A(t_, tag)
    TS()
    for c_, t_ in epi(2, 3): A(t_)
    for T in range(2):
        b = 176 + 4*T
        A(f"""v_permlane32_swap_b32 v{b}, v{b+2}
              v_permlane32_swap_b32 v{b+1}, v{b+3}
              v_permlane16_swap_b32 v{b}, v{b+1}
              v_permlane16_swap_b32 v{b+2}, v{b+3}""")
    A("""s_mov_b32 exec_hi, 0xffff
         buffer_store_dwordx4 v[176:179], v1, s[4:7], s62 offen offset:2048 sc1
         buffer_store_dwordx4 v[180:183], v1, s[4:7], s63 offen offset:2048 sc1
         s_mov_b32 exec_hi, -1
         s_add_u32 s69, s69, 16
         s_lshl_b32 s60, s34, 3
         s_add_u32 s59, s59, s60
         s_add_u32 s59, s59, 16""")
    A(f"""s_mul_i32 s60, s34, {4*45056}
          s_add_u32 s71, s71, s60
          s_mul_i32 s60, s37, {4*2816}
          s_add_u32 s71, s71, s60""")
    for nu in range(4):
        A(f"""s_add_u32 s60, s37, {1+nu}
              s_and_b32 s60, s60, 3
              s_mul_i32 s61, s60, 45056
              s_add_u32 s{64+nu}, s71, s61""")
        if nu < 3:
            A(f"""s_mul_i32 s60, s60, 12288
                  s_add_u32 s60, s60, {RB2 + 4096*nu}
                  v_add_u32 v{12+nu}, s60, v1""")
    for k in range(3):
        A(f"""v_add_u32 v6, {4*k}, v3
              v_mul_u32_u24 v7, 43, v6
              v_lshrrev_b32 v7, 7, v7
              v_mul_u32_u24 v8, 3, v7
              v_sub_u32 v6, v6, v8
              v_mul_u32_u24 v7, 2816, v7
              v_lshl_add_u32 v7, v6, 8, v7
              v_lshl_add_u32 v{24+k}, v2, 4, v7""")
    TS()
    A.vm0()
    flag_store("s69", dual=True)
    TS()
    poll("L_pC2", "buffer_load_dwordx2 v[6:7], v5, s[4:7], s60 offen sc1", [6, 7], mask="15", dual=[("s60", "s59", CFQ - CF)])
    TS()

    order = [(ks, nu) for ks in range(8) for nu in range(4)] + [(ks, nu) for nu in range(4) for ks in range(8, 11)]
    def hreg(i):
        if i < 16: return f"v[{192+4*i}:{195+4*i}]"
        if i < 36: return f"a[{176+4*(i-16)}:{179+4*(i-16)}]"
        return f"v[{128+4*(i-36)}:{131+4*(i-36)}]"
    hq = []
    for i, (ks, nu) in enumerate(order):
        if ks < 8:
            t = f"s_add_u32 s{64+nu}, s{64+nu}, 2816\n" if (ks >= 2 and ks % 2 == 0) else ""
            hq.append((t + f"buffer_load_dwordx4 {hreg(i)}, v1, s[4:7], s{64+nu} offen offset:{(ks&1)*1024} sc1", ("h", i)))
        else:
            t = f"s_sub_u32 s{64+nu}, s{64+nu}, {3*2816}\n" if ks == 8 else ""
            hq.append((t + f"buffer_load_dwordx4 {hreg(i)}, v{24+ks-8}, s[4:7], s{64+nu} offen offset:2048 sc1", ("h", i)))
    for t, tag in hq[:PRE]: A(t, tag)
    hq = hq[PRE:]
    def acc2(nu, m): return 32 + 16*((nu+1) & 3) + 4*m
    pendw = []
    for i, (ks, nu) in enumerate(order):
        A.wait_vm(("h", i))
        for m in range(4):
            a = acc2(nu, m)
            c = "0" if ks == 0 else f"v[{a}:{a+3}]"
            f = 4*ks + m
            A(f"v_mfma_f32_16x16x32_bf16 v[{a}:{a+3}], a[{4*f}:{4*f+3}], {hreg(i)}, {c}")
            if m == 0 and hq:
                t, tag = hq.pop(0); A(t, tag)
            if pendw and ks > 8: A(pendw.pop(0))
        if ks == 10 and nu < 3:
            pendw = [f"ds_write_b128 v{12+nu}, v[{acc2(nu, m)}:{acc2(nu, m)+3}] offset:{1024*m}" for m in range(4)]
    assert not pendw
    TS()
    A(f"""s_mul_i32 s60, s37, 12288
          s_add_u32 s60, s60, {RB2}
          v_add_u32 v5, s60, v1
          s_waitcnt lgkmcnt(0)
          s_barrier""")
    A.lg = []
    for s_ in range(3):
        for m in range(4):
            r = 96 + 16*s_ + 4*m
            A(f"ds_read_b128 v[{r}:{r+3}], v5 offset:{4096*s_+1024*m}", ("rd", s_))
    for s_ in range(3):
        A.wait_lg(("rd", s_))
        for z in range(8):
            A(f"v_pk_add_f32 v[{32+2*z}:{33+2*z}], v[{32+2*z}:{33+2*z}], v[{96+16*s_+2*z}:{97+16*s_+2*z}]")
    A.vm0()
    TSflush()
    A("""s_add_u32 s39, s39, 1
         s_branch L_E
         L_fin:
         buffer_store_dwordx4 v[68:71], v4, s[12:15], 0 offen sc1
         buffer_store_dwordx4 v[72:75], v4, s[12:15], 0 offen offset:64 sc1""")
    if ts: pend.append(0)
    TS(True)
    if ts:
        A(f"""s_lshl_b32 s60, s40, 2
              s_add_u32 s60, s60, s37
              s_lshl_b32 s60, s60, 8
              s_add_u32 s60, s60, {TSO}
              v_lshlrev_b32 v5, 2, v0
              buffer_store_dword v31, v5, s[4:7], s60 offen""")
    A("""s_or_b32 s60, s40, s37
         s_cmp_lg_u32 s60, 0
         s_cbranch_scc1 L_end""")
    flag_store("0")
    A("""L_end:
         s_endpgm""")
    assert nts[0] <= 21
    return A


HEAD = open("cdna_kernels/%s.s.ref" % NAME).read().split("; Override launch geometry")[0]

def emit(ts=False):
    A = gen(ts)
    body = pad(A.lines)
    k = NAME + "_kernel"
    out = [HEAD.rstrip("\n"), f"; @launch grid=(256,1,1) block=(256,1,1) lds={LDS_BYTES}",
           '.amdgcn_target "amdgcn-amd-amdhsa--gfx950"', ".text", f".globl {k}", ".p2align 8", f".type {k},@function", f"{k}:"]
    out += body
    out += ['.section .rodata,"a"', ".p2align 6", f".amdhsa_kernel {k}", "  .amdhsa_next_free_vgpr 512", "  .amdhsa_next_free_sgpr 102",
            "  .amdhsa_accum_offset 256", "  .amdhsa_group_segment_fixed_size 0", "  .amdhsa_kernarg_size 96", "  .amdhsa_user_sgpr_count 2",
            "  .amdhsa_user_sgpr_kernarg_segment_ptr 1", "  .amdhsa_system_sgpr_workgroup_id_x 1", "  .amdhsa_float_denorm_mode_32 3", ".end_amdhsa_kernel"]
    return "\n".join(out) + "\n"

if __name__ == "__main__":
    sys.stdout.write(emit(ts="ts" in sys.argv))
```

```python
import sys
from asmlib import Asm, pad

NAME = "interleave_layers__spectral_fnet__swiglu_ffn__prompt"
MB = 1 << 20
GF, CF, CFQ, ST, STQ, TSO = 0x1000, 0x10000, 0x18000, 0x2000000, 0x2080000, 0xA0000
NFAST = 24
Y, XN, X1, X2, W1F, W2F, H = 0x100000, 0x500000, 0x900000, 0xD00000, 0xF00000, 0x1200000, 0x1400000
HL = 0x580000
YB, ZB = 81664, 147200
RB2, IB = 98304, 147456
LDS_BYTES = 163840
SPIN = 400000
PREFETCH = 'nopf' not in sys.argv

def f2u(x):
    import struct
    return "0x%08x" % struct.unpack("<I", struct.pack("<f", x))[0]


def gen(ts=False):
    A = Asm()
    nts = [0]

    pend = []
    def TSflush():
        if not ts or not pend: return
        A("s_waitcnt lgkmcnt(0)"); A.lg = []
        A("s_mul_i32 s79, s39, 20")
        for k in pend:
            A(f"""s_add_u32 s78, s79, {k}
                  v_cmp_eq_u32 vcc, s78, v0
                  v_mov_b32 v28, s{80+2*(k%7)}
                  v_cndmask_b32 v31, v31, v28, vcc""")
        pend.clear()

    def TS(flush=False):
        if not ts: return
        k = nts[0]; nts[0] += 1
        A(f"s_memrealtime s[{80+2*(k%7)}:{81+2*(k%7)}]")
        pend.append(k)
        assert len(pend) <= 7
        if flush: TSflush()

    def poll(label, load, regs, mask=None, dual=None):
        TSflush()
        if mask: A(f"s_mov_b64 exec, {mask}")
        A("s_mov_b32 s70, 0")
        if dual:
            for dst, fast, delta in dual: A(f"s_mov_b32 {dst}, {fast}")
        A(f"{label}:")
        A(load)
        A("s_waitcnt vmcnt(0)")
        A(f"v_cmp_eq_u32 vcc, s38, v{regs[0]}")
        for k, r in enumerate(regs[1:]):
            A(f"v_cmp_eq_u32 s[{72+2*k}:{73+2*k}], s38, v{r}")
        for k, r in enumerate(regs[1:]):
            A(f"s_and_b64 vcc, vcc, s[{72+2*k}:{73+2*k}]")
        A(f"""s_cmp_eq_u64 vcc, exec
              s_cbranch_scc1 {label}_ok
              s_add_u32 s70, s70, 1""")
        if dual:
            A(f"""s_cmp_ge_u32 s70, {NFAST}
                  s_cselect_b32 s72, s70, 0
                  s_and_b32 s72, s72, 1""")
            for dst, fast, delta in dual:
                A(f"""s_mul_i32 s73, s72, {delta}
                      s_add_u32 {dst}, {fast}, s73""")
        A(f"""s_cmp_lt_u32 s70, {SPIN}
              s_cbranch_scc1 {label}
              {label}_ok:""")
        if mask: A("s_mov_b64 exec, -1")
        A.vm = []

    def flag_store(soff, dual=False):
        A("s_mov_b64 exec, 1")
        if dual:
            A(f"""buffer_store_dword v30, v29, s[4:7], {soff} offen
                  buffer_store_dword v30, v27, s[4:7], {soff} offen sc1""")
        else:
            A(f"buffer_store_dword v30, v29, s[4:7], {soff} offen sc1")
        A("s_mov_b64 exec, -1")

    def dma_items(vaddr, soff_reg, lds_reg, n, flags="sc1"):
        out = []
        for z in range(n):
            t = ""
            if z % 4 == 0:
                if z: t += f"s_add_u32 {lds_reg}, {lds_reg}, 4096\ns_add_u32 {soff_reg}, {soff_reg}, 4096\n"
                t += f"s_mov_b32 m0, {lds_reg}\n"
            t += f"buffer_load_dwordx4 {vaddr}, s[4:7], {soff_reg} offen offset:{(z % 4) * 1024} {flags} lds"
            out.append(t)
        return out

    def dma(vaddr, soff_reg, lds_expr_reg, n, gstep=1024, flags="", tag=None, alt=None):
        for z in range(n):
            if z % 4 == 0:
                if z: A(f"s_add_u32 {lds_expr_reg}, {lds_expr_reg}, 4096")
                A(f"s_mov_b32 m0, {lds_expr_reg}")
            va = vaddr if (alt is None or z % 2 == 0) else alt
            A(f"buffer_load_dwordx4 {va}, s[4:7], {soff_reg} offen offset:{(z % 4) * 1024} {flags} lds", tag)
            step = gstep - 1024 if z % 4 != 3 else gstep + 3072
            if z != n - 1 and step: A(f"s_add_u32 {soff_reg}, {soff_reg}, {step}")

    TOUCH = "" if "notouch" in sys.argv else """s_lshr_b32 s62, s2, 3
          s_lshl_b32 s62, s62, 2
          s_add_u32 s62, s62, s37
          s_mul_i32 s63, s62, 3450
          s_lshr_b32 s63, s63, 16
          s_mul_i32 s63, s63, 19
          s_sub_u32 s62, s62, s63
          s_lshl_b32 s62, s62, 21
          s_add_u32 s62, s52, s62
          s_addc_u32 s63, s53, 0
          s_load_dword s76, s[62:63], 0
          s_cmp_eq_u32 s37, 1
          s_cselect_b32 s62, s46, s44
          s_cselect_b32 s63, s47, s45
          s_cmp_eq_u32 s37, 2
          s_cselect_b32 s62, s48, s62
          s_cselect_b32 s63, s49, s63
          s_cmp_eq_u32 s37, 3
          s_cselect_b32 s62, s50, s62
          s_cselect_b32 s63, s51, s63
          s_load_dword s77, s[62:63], 0"""
    if ts: A("s_memrealtime s[94:95]")
    A(f"""s_cmp_ge_u32 s2, 256
          s_cbranch_scc1 L_end
          s_load_dwordx2 s[30:31], s[0:1], 0
          s_load_dwordx4 s[44:47], s[0:1], 48
          s_load_dwordx4 s[48:51], s[0:1], 64
          s_load_dwordx2 s[52:53], s[0:1], 88
          s_mov_b32 s39, 0
          s_and_b32 s60, s2, 7
          s_lshr_b32 s61, s2, 3
          s_and_b32 s33, s61, 15
          s_lshr_b32 s61, s61, 4
          s_lshl_b32 s32, s60, 1
          s_add_u32 s32, s32, s61
          s_lshr_b32 s34, s33, 3
          s_and_b32 s35, s33, 7
          s_lshl_b32 s40, s32, 4
          s_add_u32 s40, s40, s33
          s_sub_u32 s60, 32, s32
          s_cmp_eq_u32 s32, 0
          s_cselect_b32 s60, 16, s60
          s_cmp_eq_u32 s34, 0
          s_cselect_b32 s36, s32, s60
          v_lshrrev_b32 v5, 6, v0
          v_and_b32 v0, 63, v0
          v_readfirstlane_b32 s37, v5
          v_and_b32 v2, 15, v0
          v_lshrrev_b32 v3, 4, v0
          v_lshlrev_b32 v1, 4, v0
          v_mov_b32 v29, 0
          v_mov_b32 v31, 0
          s_lshr_b32 s60, s37, 1
          s_lshl_b32 s60, s60, 5
          s_add_u32 s60, s60, s36
          s_and_b32 s61, s37, 1
          s_lshl_b32 s61, s61, 10
          s_add_u32 s60, s60, s61
          s_lshl_b32 s60, s60, 10
          s_lshl_b32 s61, s35, 7
          s_add_u32 s60, s60, s61
          v_lshlrev_b32 v4, 16, v2
          v_lshl_add_u32 v4, v3, 4, v4
          v_add_u32 v4, s60, v4
          s_waitcnt lgkmcnt(0)
          {"s_memrealtime s[96:97]" if ts else ""}
          s_load_dword s42, s[52:53], 0
          {TOUCH}
          s_mov_b32 s8, s30
          s_mov_b32 s9, s31
          s_mov_b32 s10, {2*MB}
          s_mov_b32 s11, 0x20000""")
    A("""buffer_load_dwordx4 v[16:19], v4, s[8:11], 0 offen
         buffer_load_dwordx4 v[20:23], v4, s[8:11], 0 offen offset:64""", "res")
    A(f"""s_mov_b32 s4, s52
          s_mov_b32 s5, s53
          s_mov_b32 s6, {256*MB}
          s_mov_b32 s7, 0x20000
          s_add_u32 s12, s52, {X2}
          s_addc_u32 s13, s53, 0
          s_mov_b32 s14, {2*MB}
          s_mov_b32 s15, 0x20000
          s_mov_b32 s16, s44
          s_mov_b32 s17, s45
          s_mov_b32 s18, {512*2752}
          s_mov_b32 s19, 0x20000
          s_mov_b32 s20, s46
          s_mov_b32 s21, s47
          s_mov_b32 s22, {512*2752}
          s_mov_b32 s23, 0x20000
          s_mov_b32 s24, s48
          s_mov_b32 s25, s49
          s_mov_b32 s26, {1376*1024}
          s_mov_b32 s27, 0x20000""")
    A(f"""s_lshl_b32 s60, s32, 5
          s_lshl_b32 s61, s37, 3
          s_add_u32 s60, s60, s61
          v_add_u32 v5, s60, v3
          v_mul_u32_u24 v5, 2752, v5
          s_mul_i32 s61, s33, 11
          v_add_u32 v6, s61, v2
          v_lshl_add_u32 v7, v6, 4, v5
          v_cmp_gt_u32 vcc, 172, v6
          v_cmp_gt_u32 s[62:63], 11, v2
          v_mov_b32 v8, 0x7f000000
          s_and_b64 vcc, vcc, s[62:63]
          v_cndmask_b32 v7, v8, v7, vcc
          v_add_u32 v9, {4*2752}, v7""")
    A("""buffer_load_dwordx4 v[96:99], v7, s[16:19], 0 offen
         buffer_load_dwordx4 v[100:103], v7, s[20:23], 0 offen
         buffer_load_dwordx4 v[104:107], v9, s[16:19], 0 offen
         buffer_load_dwordx4 v[108:111], v9, s[20:23], 0 offen""")
    def w2load(G, dst, lab):
        A(f"""s_mul_i32 s60, {G}, 5958
              s_lshr_b32 s60, s60, 16
              s_mul_i32 s61, s60, 11
              s_sub_u32 s61, {G}, s61
              s_lshr_b32 s62, s60, 2
              s_and_b32 s60, s60, 3
              s_mul_i32 s60, s60, 352
              s_lshl_b32 s62, s62, 7
              s_lshr_b32 s63, s61, 1
              s_mul_i32 s63, s63, 88
              s_and_b32 s64, s61, 1
              s_lshl_b32 s64, s64, 5
              s_add_u32 s63, s63, s64
              s_lshl_b32 s64, s37, 1
              s_add_u32 s63, s63, s64
              s_lshl_b32 s64, s61, 2
              s_add_u32 s64, s64, s37
              s_sub_u32 s64, s64, 32
              s_mul_i32 s65, s64, 43
              s_lshr_b32 s65, s65, 7
              s_mul_i32 s65, s65, 64
              s_lshl_b32 s64, s64, 3
              s_add_u32 s64, s64, s65
              s_add_u32 s64, s64, 64
              s_cmp_ge_u32 s61, 8
              s_cselect_b32 s63, s64, s63
              s_cselect_b64 vcc, -1, 0
              s_add_u32 s60, s60, s63
              s_lshl_b32 s60, s60, 10
              s_add_u32 s60, s60, s62
              v_cndmask_b32 v7, v10, v11, vcc
              v_add_u32 v7, s60, v7
              buffer_load_dwordx4 v[{dst}:{dst+3}], v7, s[24:27], 0 offen""")
    A("""v_lshrrev_b32 v11, 3, v0
         v_lshrrev_b32 v10, 4, v0
         v_and_b32 v7, 1, v11
         v_lshl_add_u32 v10, v10, 3, v7
         v_and_b32 v6, 7, v0
         v_lshlrev_b32 v6, 4, v6
         v_lshl_add_u32 v10, v10, 10, v6
         v_lshl_add_u32 v11, v11, 10, v6
         s_add_u32 s54, s40, 256""")
    w2load("s40", 112, "a")
    w2load("s54", 116, "b")
    A(f"""s_lshl_b32 s60, s36, 13
          s_lshl_b32 s61, s35, 10
          s_add_u32 s60, s60, s61
          s_lshl_b32 s61, s37, 8
          s_add_u32 s60, s60, s61
          s_add_u32 s60, s60, {ST}
          v_and_b32 v5, 1, v0
          v_lshlrev_b32 v5, 7, v5
          v_and_b32 v6, 2, v0
          v_lshl_add_u32 v5, v6, 17, v5
          v_add_u32 v5, s60, v5
          s_lshl_b32 s60, s40, 7
          s_add_u32 s60, s60, {CF}
          v_mov_b32 v6, s60
          v_cmp_gt_u32 vcc, 4, v0
          v_mov_b32 v27, {CFQ - CF}
          v_cndmask_b32 v5, v6, v5, vcc
          s_mov_b64 exec, 31
          buffer_load_dword v120, v5, s[4:7], 0 offen sc1
          s_mov_b64 exec, -1""")
    if PREFETCH:
        A(f"""s_getpc_b64 s[60:61]
              L_pc:
              s_lshl_b32 s62, s37, 13
              v_lshlrev_b32 v5, 7, v0
              v_add_u32 v5, s62, v5
              v_min_u32 v5, L_end-L_pc, v5
              global_load_dword v121, v5, s[60:61]
              s_waitcnt vmcnt(8)""")
    else:
        A("s_waitcnt vmcnt(7)")
    A("""s_lshr_b32 s60, s33, 2
         s_and_b32 s60, s60, 1
         s_lshl_b32 s60, s60, 5
         s_add_u32 s43, s36, s60
         s_sub_u32 s60, 64, s43
         s_cmp_le_u32 s43, 31
         s_cselect_b32 s41, s43, s60
         s_and_b32 s41, s41, 31
         s_and_b32 s60, s33, 3
         s_lshl_b32 s60, s60, 9
         s_add_u32 s55, s43, s60
         s_waitcnt lgkmcnt(0)
         s_mul_i32 s38, s42, 0x9E3779B1
         s_add_u32 s38, s38, 0x7F4A7C15
         v_mov_b32 v30, s38""")
    for r in range(32, 48): A(f"v_mov_b32 v{r}, 0")
    if ts:
        for lane, sr in ((62, 94), (63, 96)):
            A(f"v_writelane_b32 v31, s{sr}, {lane}")
    A.vm = []; A.lg = []

    A("L_E:")
    TS()
    for z in range(8):
        A(f"""v_lshlrev_b32 v{6+2*(z&1)}, 16, v{16+z}
              v_and_b32 v{7+2*(z&1)}, 0xffff0000, v{16+z}
              v_pk_add_f32 v[{32+2*z}:{33+2*z}], v[{32+2*z}:{33+2*z}], v[{6+2*(z&1)}:{7+2*(z&1)}]""")
    for z in range(8):
        A(f"v_cvt_pk_bf16_f32 v{68+z}, v{32+2*z}, v{33+2*z}")
    A("""s_cmp_eq_u32 s39, 2
         s_cbranch_scc1 L_fin""")
    A("""v_pk_add_f32 v[6:7], v[32:33], v[34:35]
         v_pk_mul_f32 v[8:9], v[32:33], v[32:33]""")
    A("v_pk_fma_f32 v[8:9], v[34:35], v[34:35], v[8:9]")
    for z in range(2, 8):
        A(f"""v_pk_add_f32 v[6:7], v[6:7], v[{32+2*z}:{33+2*z}]
              v_pk_fma_f32 v[8:9], v[{32+2*z}:{33+2*z}], v[{32+2*z}:{33+2*z}], v[8:9]""")
    def qreduce(a, b, ta, tb):
        for sw in ("v_permlane32_swap_b32", "v_permlane16_swap_b32"):
            A(f"""v_mov_b32 v{ta}, v{a}
                  v_mov_b32 v{tb}, v{b}
                  {sw} v{a}, v{ta}
                  {sw} v{b}, v{tb}
                  v_add_f32 v{a}, v{a}, v{ta}
                  v_add_f32 v{b}, v{b}, v{tb}""")
    A("""v_add_f32 v48, v6, v7
         v_add_f32 v49, v8, v9
         v_mov_b32 v50, s38
         v_mov_b32 v51, s38""")
    qreduce(48, 49, 6, 7)
    A(f"""s_lshl_b32 s60, s39, 5
          s_add_u32 s60, s60, s36
          s_lshl_b32 s60, s60, 13
          s_lshl_b32 s61, s37, 8
          s_add_u32 s60, s60, s61
          s_add_u32 s56, s60, {ST}
          s_lshl_b32 s61, s35, 10
          s_add_u32 s61, s61, s56
          s_add_u32 s57, s56, 4096
          s_add_u32 s62, s61, {STQ - ST}
          s_mov_b64 exec, 0xffff
          buffer_store_dwordx4 v[48:51], v1, s[4:7], s61 offen
          buffer_store_dwordx4 v[48:51], v1, s[4:7], s62 offen sc1
          s_mov_b64 exec, -1""")
    A(f"""s_lshl_b32 s60, s37, 4
          v_add_u32 v5, s60, v2
          v_lshrrev_b32 v6, 1, v5
          v_cmp_eq_u32 vcc, 1, v5
          v_and_b32 v7, 1, v5
          v_cndmask_b32 v6, v6, 32, vcc
          v_cndmask_b32 v7, v7, 0, vcc
          v_and_b32 v11, 1, v6
          v_cvt_f32_u32 v6, v6
          v_cvt_f32_u32 v7, v7
          v_cvt_f32_u32 v8, v3
          v_mul_f32 v6, {f2u(1/64)}, v6
          v_mul_f32 v7, {f2u(0.25)}, v7
          v_mul_f32 v8, {f2u(8.0)}, v8
          v_fma_f32 v7, v6, v8, v7
          v_mul_u32_u24 v11, 0x8000, v11
          v_lshl_or_b32 v11, v11, 16, v11""")
    for ks in range(2):
        for pr in range(2):
            for b in range(2):
                A(f"""v_fmamk_f32 v{8+b}, v6, {f2u(float(ks + 2*(2*pr+b)))}, v7
                      v_cos_f32 v{8+b}, v{8+b}""")
            A(f"""v_cvt_pk_bf16_f32 v{60+4*ks+pr}, v8, v9
                  v_xor_b32 v{62+4*ks+pr}, v11, v{60+4*ks+pr}""")
    A(f"""v_lshlrev_b32 v5, 4, v2
          v_lshl_add_u32 v5, v3, 10, v5
          s_cmp_lg_u32 s39, 0
          s_cbranch_scc1 L_norelay
          s_mul_i32 s60, s37, 6144
          v_lshlrev_b32 v6, 5, v0
          v_add_u32 v6, s60, v6
          v_add_u32 v7, 2048, v6
          v_add_u32 v10, s60, v1
          v_lshrrev_b32 v8, 2, v2
          v_and_b32 v9, 3, v2
          v_lshlrev_b32 v12, 9, v8
          v_lshl_add_u32 v12, v3, 5, v12
          v_lshl_add_u32 v12, v9, 3, v12
          v_add_u32 v12, s60, v12
          v_lshlrev_b32 v8, 7, v8
          v_lshl_add_u32 v8, v9, 4, v8
          v_lshrrev_b32 v9, 1, v3
          v_lshl_add_u32 v8, v9, 6, v8
          v_and_b32 v9, 1, v3
          v_lshl_add_u32 v8, v9, 3, v8
          v_add_u32 v8, s60, v8
          s_mul_i32 s61, s33, 180224
          s_lshl_b32 s62, s37, 8
          s_add_u32 s61, s61, s62
          s_add_u32 s61, s61, {W1F}
          s_lshl_b32 s63, s32, 12
          s_add_u32 s63, s63, s61
          s_add_u32 s64, s63, 65536
          s_mul_i32 s65, s32, 3072
          s_add_u32 s65, s65, s61
          s_add_u32 s65, s65, 131072
          s_lshl_b32 s66, s40, 12
          s_add_u32 s66, s66, s62
          s_add_u32 s66, s66, {W2F}
          s_add_u32 s67, s66, {256*4096}
          s_waitcnt vmcnt({4 if PREFETCH else 3})
          {"s_memrealtime s[98:99]" if ts else ""}""")
    for rq in range(2):
        for z in range(4):
            A(f"ds_write2_b32 v{6+rq}, v{96+8*rq+z}, v{100+8*rq+z} offset0:{2*z} offset1:{2*z+1}")
    A("""ds_write_b128 v10, v[112:115] offset:4096
         ds_write_b128 v10, v[116:119] offset:5120
         s_waitcnt lgkmcnt(0)""")
    for z in range(3):
        A(f"""ds_read_b64_tr_b16 v[{96+4*z}:{97+4*z}], v12 offset:{128*z}
              ds_read_b64_tr_b16 v[{98+4*z}:{99+4*z}], v12 offset:{128*z+2048}""")
    for z in range(2):
        A(f"""ds_read_b64_tr_b16 v[{108+4*z}:{109+4*z}], v8 offset:{4096+1024*z}
              ds_read_b64_tr_b16 v[{110+4*z}:{111+4*z}], v8 offset:{4096+1024*z+512}""")
    if ts: A("s_waitcnt lgkmcnt(0)\nv_writelane_b32 v31, s98, 61")
    A("""s_waitcnt lgkmcnt(0)
         buffer_store_dwordx4 v[96:99], v5, s[4:7], s63 offen sc1
         buffer_store_dwordx4 v[100:103], v5, s[4:7], s64 offen sc1
         buffer_store_dwordx4 v[108:111], v5, s[4:7], s66 offen sc1
         s_mov_b32 exec_hi, 0xffff
         buffer_store_dwordx4 v[104:107], v5, s[4:7], s65 offen sc1
         s_mov_b32 exec_hi, -1
         s_cmp_ge_u32 s40, 96
         s_cbranch_scc1 L_norelay
         buffer_store_dwordx4 v[112:115], v5, s[4:7], s67 offen sc1
         L_norelay:""")
    TS()
    poll("L_pS", """buffer_load_dwordx4 v[52:55], v5, s[4:7], s60 offen sc1
                    buffer_load_dwordx4 v[56:59], v5, s[4:7], s61 offen sc1""", [54, 55, 58, 59],
         dual=[("s60", "s56", STQ - ST), ("s61", "s57", STQ - ST)])
    TS()
    A(f"""s_cmp_lg_u32 s39, 0
          s_cbranch_scc1 L_nogw
          s_lshl_b32 s60, s40, 7
          s_lshl_b32 s61, s37, 2
          s_add_u32 s60, s60, s61
          s_add_u32 s60, s60, {CFQ + 112}""")
    flag_store("s60")
    A("L_nogw:")
    A("""v_add_f32 v48, v52, v56
         v_add_f32 v49, v53, v57""")
    def finish_stats(s, ss, r, nmr):
        A(f"""v_mul_f32 v{s}, {f2u(1/512)}, v{s}
              v_mul_f32 v{nmr}, v{s}, v{s}
              v_fma_f32 v{ss}, v{ss}, s58, -v{nmr}
              v_max_f32 v{ss}, 0, v{ss}
              v_add_f32 v{ss}, {f2u(1e-5)}, v{ss}
              v_rsq_f32 v{r}, v{ss}
              s_nop 0
              v_mul_f32 v{nmr}, v{s}, v{r}""")
    A(f"s_mov_b32 s58, {f2u(1/512)}")
    qreduce(48, 49, 6, 7)
    finish_stats(48, 49, 50, 51)
    A(f"""s_mul_i32 s60, s37, {16*160}
          s_add_u32 s60, s60, {IB}
          v_mul_u32_u24 v5, 160, v2
          v_lshl_add_u32 v5, v3, 3, v5
          v_add_u32 v5, s60, v5""")
    for z in range(8):
        A(f"""v_fma_f32 v{32+2*z}, v{32+2*z}, v50, -v51
              v_fma_f32 v{33+2*z}, v{33+2*z}, v50, -v51
              v_cvt_pk_bf16_f32 v{16+z}, v{32+2*z}, v{33+2*z}""")
    for m in range(4):
        A(f"ds_write_b64 v5, v[{16+2*m}:{17+2*m}] offset:{32*m}")
    A(f"""v_lshrrev_b32 v6, 2, v2
          v_lshl_add_u32 v6, v3, 2, v6
          v_and_b32 v7, 3, v2
          v_mul_u32_u24 v8, 160, v6
          v_lshl_add_u32 v8, v7, 3, v8
          v_add_u32 v8, {IB}, v8
          s_waitcnt lgkmcnt(0)
          s_barrier""")
    A.lg = []
    for m in range(4):
        for ks in range(2):
            for hh in range(2):
                r = 96 + 8*m + 4*ks + 2*hh
                A(f"ds_read_b64_tr_b16 v[{r}:{r+1}], v8 offset:{ks*5120+hh*2560+32*m}", ("p1", m))
    A(f"""v_lshrrev_b32 v9, 1, v2
          v_lshlrev_b32 v9, 16, v9
          v_and_b32 v10, 1, v2
          v_lshl_add_u32 v9, v10, 10, v9
          v_lshl_add_u32 v9, v3, 4, v9
          s_lshl_b32 s60, s39, 21
          s_lshl_b32 s61, s37, 19
          s_add_u32 s60, s60, s61
          s_lshl_b32 s61, s36, 11
          s_add_u32 s60, s60, s61
          s_lshl_b32 s61, s35, 7
          s_add_u32 s60, s60, s61
          s_add_u32 s60, s60, {Y}""")
    for m in range(4):
        A.wait_lg(("p1", m))
        A(f"v_mfma_f32_16x16x32_bf16 v[{32+4*m}:{35+4*m}], v[{96+8*m}:{99+8*m}], v[60:63], 0")
        A(f"v_mfma_f32_16x16x32_bf16 v[{32+4*m}:{35+4*m}], v[{100+8*m}:{103+8*m}], v[64:67], v[{32+4*m}:{35+4*m}]")
    for z in range(8):
        A(f"v_cvt_pk_bf16_f32 v{16+z}, v{32+2*z}, v{33+2*z}")
    A("""buffer_store_dwordx4 v[16:19], v9, s[4:7], s60 offen sc1
         buffer_store_dwordx4 v[20:23], v9, s[4:7], s60 offen offset:64 sc1
         s_cmp_eq_u32 s39, 0
         s_cbranch_scc1 L_nostore
         buffer_store_dwordx4 v[68:71], v4, s[12:15], 0 offen sc1
         buffer_store_dwordx4 v[72:75], v4, s[12:15], 0 offen offset:64 sc1
         s_mov_b32 s8, s12
         s_mov_b32 s9, s13
         s_mov_b32 s12, s50
         s_mov_b32 s13, s51
         L_nostore:""")
    A(f"""s_lshl_b32 s59, s39, 14
          s_add_u32 s59, s59, {GF}
          s_lshl_b32 s60, s37, 12
          s_lshr_b32 s61, s35, 1
          s_lshl_b32 s61, s61, 10
          s_add_u32 s60, s60, s61
          s_lshr_b32 s61, s36, 2
          s_lshl_b32 s61, s61, 7
          s_add_u32 s60, s60, s61
          s_and_b32 s61, s36, 3
          s_lshl_b32 s61, s61, 3
          s_add_u32 s60, s60, s61
          s_and_b32 s61, s35, 1
          s_lshl_b32 s61, s61, 2
          s_add_u32 s60, s60, s61
          s_add_u32 s60, s60, s59""")
    A.vm0()
    flag_store("s60")
    TS()

    TSflush()
    A(f"""s_cmp_lg_u32 s39, 0
          s_cbranch_scc1 L_nopre
          s_lshl_b32 s62, s33, 7
          s_add_u32 s62, s62, {CFQ + 112}
          v_lshlrev_b32 v5, 11, v0""")
    poll("L_pW", "buffer_load_dwordx4 v[6:9], v5, s[4:7], s62 offen sc1", [6, 7, 8, 9], mask="0xffff")
    A(f"""s_mul_i32 s60, s33, 180224
          s_add_u32 s60, s60, {W1F}
          s_mul_i32 s61, s37, {19*1024}
          s_add_u32 s60, s60, s61""")
    dma("v1", "s60", "s61", 19, flags="sc1")
    A("L_nopre:")

    B2, BA, TC, TSN, BB = 176, 184, 190, 198, 206
    A(f"""s_cmp_eq_u32 s43, 32
          s_cselect_b32 s62, 0, 1.0
          s_cselect_b32 s63, 1.0, 0
          s_cmp_gt_u32 s43, 32
          s_cselect_b32 s64, -1.0, 1.0
          s_and_b32 s60, s43, 31
          s_cmp_eq_u32 s60, 0
          s_cselect_b32 s64, 0, s64
          v_lshrrev_b32 v5, 1, v2
          v_lshlrev_b32 v5, 6, v5
          v_add_u32 v5, s55, v5
          v_cvt_f32_u32 v5, v5
          v_and_b32 v6, 1, v2
          v_cvt_f32_u32 v12, v6
          v_cvt_f32_u32 v7, v3
          v_cvt_f32_u32 v13, v2
          v_mul_f32 v5, {f2u(1/2048)}, v5
          v_mul_f32 v12, {f2u(0.25)}, v12
          v_add_f32 v8, v7, v7
          v_fma_f32 v12, v5, v8, v12
          v_mul_u32_u24 v6, 0x8000, v6
          v_lshl_or_b32 v6, v6, 16, v6
          v_mul_f32 v7, 4.0, v7""")
    for ks in range(2):
        for z in range(4):
            A(f"""v_fmamk_f32 v8, v5, {f2u(float(16*ks + 8*(z>>1) + (z&1)))}, v12
                  v_cos_f32 v9, v8
                  v_sin_f32 v10, v8
                  v_mul_f32 v11, s63, v9
                  v_mul_f32 v9, s62, v9
                  v_fma_f32 v10, v10, s64, v11
                  v_cvt_pk_bf16_f32 v{B2+4*ks+z}, v9, v10""")
    def sincos4(scale, cdst, sdst, add=0):
        A(f"""v_mul_f32 v5, {f2u(scale)}, v13
              v_mul_f32 v12, v5, v7""")
        for j in range(4):
            A(f"""v_fmamk_f32 v8, v5, {f2u(float(j+add))}, v12
                  v_cos_f32 v{cdst+j}, v8
                  v_sin_f32 v{sdst+j}, v8""")
    sincos4(1/16, 16, 20)
    A(f"""v_cvt_pk_bf16_f32 v{BA+2}, v16, v17
          v_cvt_pk_bf16_f32 v{BA+3}, v18, v19
          v_cvt_pk_bf16_f32 v{BA+4}, v20, v21
          v_cvt_pk_bf16_f32 v{BA+5}, v22, v23
          v_xor_b32 v{BA}, 0x80008000, v{BA+4}
          v_xor_b32 v{BA+1}, 0x80008000, v{BA+5}""")
    sincos4(1/512, TC, TSN)
    sincos4(1/512, TC+4, TSN+4, 16)
    sincos4(1/32, 16, 20)
    for ks in range(2):
        A(f"""v_cvt_pk_bf16_f32 v{BB+4*ks}, v{16+4*ks}, v{17+4*ks}
              v_cvt_pk_bf16_f32 v{BB+4*ks+1}, v{18+4*ks}, v{19+4*ks}
              v_xor_b32 v{BB+4*ks+2}, v6, v{BB+4*ks}
              v_xor_b32 v{BB+4*ks+3}, v6, v{BB+4*ks+1}""")
    for z in range(8):
        A(f"v_xor_b32 v{BB+8+z}, 0x80000000, v{BB+z}")
    A(f"""v_lshrrev_b32 v5, 3, v0
          v_and_b32 v6, 7, v0
          v_lshlrev_b32 v5, 7, v5
          v_lshl_add_u32 v5, v6, 2, v5
          s_lshr_b32 s60, s41, 3
          s_lshl_b32 s60, s60, 12
          s_lshl_b32 s61, s37, 10
          s_add_u32 s60, s60, s61
          s_add_u32 s59, s59, s60
          v_lshlrev_b32 v14, 1, v3
          v_xor_b32 v14, v14, v2
          v_lshlrev_b32 v14, 4, v14
          v_lshl_add_u32 v14, v3, 10, v14
          v_xor_b32 v15, 128, v14
          s_lshl_b32 s60, s39, 21
          s_lshl_b32 s61, s41, 16
          s_add_u32 s60, s60, s61
          s_lshl_b32 s61, s37, 8
          s_add_u32 s60, s60, s61
          s_add_u32 s60, s60, {Y}
          s_lshl_b32 s61, s37, 14
          s_add_u32 s61, s61, {YB}
          s_mov_b32 s65, s61""")
    TS()
    poll("L_pG", "buffer_load_dword v6, v5, s[4:7], s59 offen sc1", [6])
    TS()
    dma("v14", "s60", "s61", 16, gstep=4096, flags="sc1", tag="y", alt="v15")
    A(f"""s_barrier
          s_lshl_b32 s60, s37, 7
          s_add_u32 s60, s60, s55
          s_lshl_b32 s66, s60, 10
          s_add_u32 s67, s66, 65536
          v_lshlrev_b32 v10, 5, v2
          v_lshl_add_u32 v10, v3, 3, v10""")
    for r in range(2):
        for g in range(2):
            A(f"buffer_load_dwordx2 v[{16+4*r+2*g}:{17+4*r+2*g}], v10, s[8:11], s{66+r} offen offset:{512*g} sc1", "res")
    A.wait_vm("y")
    A(f"""v_lshrrev_b32 v5, 2, v2
          v_lshl_add_u32 v5, v3, 2, v5
          v_and_b32 v6, 7, v5
          v_and_b32 v7, 3, v2
          v_lshlrev_b32 v8, 8, v5
          v_lshl_add_u32 v8, v6, 5, v8
          v_lshl_add_u32 v8, v7, 3, v8
          v_add_u32 v8, s65, v8""")
    TS()
    A.lg = []
    for mt in range(8):
        A(f"v_xor_b32 v9, {32*mt}, v8")
        for ks in range(2):
            for hh in range(2):
                r = 96 + 8*mt + 4*ks + 2*hh
                A(f"ds_read_b64_tr_b16 v[{r}:{r+1}], v9 offset:{ks*8192+hh*4096}", ("p2", mt))
        if mt >= 3:
            m = mt - 3
            A.wait_lg(("p2", m))
            A(f"v_mfma_f32_16x16x32_bf16 v[{32+4*m}:{35+4*m}], v[{96+8*m}:{99+8*m}], v[{B2}:{B2+3}], 0")
            A(f"v_mfma_f32_16x16x32_bf16 v[{32+4*m}:{35+4*m}], v[{100+8*m}:{103+8*m}], v[{B2+4}:{B2+7}], v[{32+4*m}:{35+4*m}]")
    A(f"""v_mul_u32_u24 v11, 1032, v2
          v_lshl_add_u32 v11, v3, 3, v11
          s_lshl_b32 s60, s37, 8
          s_and_b32 s61, s37, 1
          s_lshl_b32 s61, s61, 5
          s_add_u32 s60, s60, {ZB}
          s_add_u32 s62, s60, s61
          s_xor_b32 s61, s61, 32
          s_add_u32 s63, s60, s61
          v_add_u32 v12, s63, v11
          v_add_u32 v11, s62, v11""")
    for m in range(5, 8):
        A.wait_lg(("p2", m))
        A(f"v_mfma_f32_16x16x32_bf16 v[{32+4*m}:{35+4*m}], v[{96+8*m}:{99+8*m}], v[{B2}:{B2+3}], 0")
        A(f"v_mfma_f32_16x16x32_bf16 v[{32+4*m}:{35+4*m}], v[{100+8*m}:{103+8*m}], v[{B2+4}:{B2+7}], v[{32+4*m}:{35+4*m}]")
    for m in range(8):
        A(f"""v_cvt_pk_bf16_f32 v{64+2*m}, v{32+4*m}, v{33+4*m}
              v_cvt_pk_bf16_f32 v{65+2*m}, v{34+4*m}, v{35+4*m}
              ds_write_b64 v{11+(m&1)}, v[{64+2*m}:{65+2*m}] offset:{64*(m>>1)}""")
    A(f"""v_and_b32 v6, 1, v3
          v_lshlrev_b32 v8, 6, v5
          v_lshl_add_u32 v8, v6, 5, v8
          v_lshl_add_u32 v8, v7, 3, v8
          s_mul_i32 s60, s37, 4128
          s_add_u32 s68, s60, {ZB}
          v_xor_b32 v9, 32, v8
          v_add_u32 v8, s68, v8
          v_add_u32 v9, s68, v9
          s_waitcnt lgkmcnt(0)
          s_barrier""")
    A.lg = []
    for r in range(2):
        for h in range(2):
            for cc in range(2):
                reg = 96 + 8*r + 4*h + 2*cc
                A(f"ds_read_b64_tr_b16 v[{reg}:{reg+1}], v{8+h} offset:{r*2064+cc*1032}", ("sa", r))
    A(f"""s_mul_i32 s62, s33, 180224
          s_add_u32 s62, s62, {W1F + 77824}
          s_mul_i32 s63, s37, {13*1024}
          s_add_u32 s62, s62, s63
          s_add_u32 s63, s63, 77824""")
    side = dma_items("v1", "s62", "s63", 13)
    mark = len(A.lines)
    for r in range(2):
        A.wait_lg(("sa", r))
        for h in range(2):
            for c2 in range(2):
                d = 32 + 16*r + 8*c2 + 4*h
                b = BA + 2 if c2 == 0 else BA
                A(f"v_mfma_f32_16x16x32_bf16 v[{d}:{d+3}], v[{96+8*r+4*h}:{99+8*r+4*h}], v[{b}:{b+3}], 0")
    for r in range(2):
        for z in range(4):
            ur, ui = 32 + 16*r + 2*z, 40 + 16*r + 2*z
            A(f"""v_pk_mul_f32 v[6:7], v[{ui}:{ui+1}], v[{TSN+2*z}:{TSN+2*z+1}]
                  v_pk_mul_f32 v[12:13], v[{ur}:{ur+1}], v[{TSN+2*z}:{TSN+2*z+1}]
                  v_pk_fma_f32 v[6:7], v[{ur}:{ur+1}], v[{TC+2*z}:{TC+2*z+1}], v[6:7]
                  v_pk_fma_f32 v[12:13], v[{ui}:{ui+1}], v[{TC+2*z}:{TC+2*z+1}], v[12:13] neg_lo:[0,0,1] neg_hi:[0,0,1]
                  v_cvt_pk_bf16_f32 v{112+8*r+z}, v6, v7
                  v_cvt_pk_bf16_f32 v{116+8*r+z}, v12, v13""")
        for g in range(2):
            d = 64 + 8*r + 4*g
            A(f"v_mfma_f32_16x16x32_bf16 v[{d}:{d+3}], v[{112+8*r}:{115+8*r}], v[{BB+8*g}:{BB+8*g+3}], 0")
            A(f"v_mfma_f32_16x16x32_bf16 v[{d}:{d+3}], v[{116+8*r}:{119+8*r}], v[{BB+8*g+4}:{BB+8*g+7}], v[{d}:{d+3}]")
    A("""RESWAIT
         v_add_u32 v11, s68, v10""")
    for r in range(2):
        for z in range(4):
            x = 64 + 8*r + 2*z
            A(f"""v_lshlrev_b32 v6, 16, v{16+4*r+z}
                  v_and_b32 v7, 0xffff0000, v{16+4*r+z}
                  v_pk_add_f32 v[{x}:{x+1}], v[{x}:{x+1}], v[6:7]
                  v_cvt_pk_bf16_f32 v{16+4*r+z}, v{x}, v{x+1}""")
        for g in range(2):
            A(f"ds_write_b64 v11, v[{16+4*r+2*g}:{17+4*r+2*g}] offset:{1024*r+512*g}")
        x = 64 + 8*r
        A(f"""v_pk_add_f32 v[{32+4*r}:{33+4*r}], v[{x}:{x+1}], v[{x+2}:{x+3}]
              v_pk_mul_f32 v[{34+4*r}:{35+4*r}], v[{x}:{x+1}], v[{x}:{x+1}]""")
        for z in range(1, 4):
            if z > 1: A(f"v_pk_add_f32 v[{32+4*r}:{33+4*r}], v[{32+4*r}:{33+4*r}], v[{x+2*z}:{x+2*z+1}]")
            A(f"v_pk_fma_f32 v[{34+4*r}:{35+4*r}], v[{x+2*z}:{x+2*z+1}], v[{x+2*z}:{x+2*z+1}], v[{34+4*r}:{35+4*r}]")
        A(f"""v_add_f32 v{40+2*r}, v{32+4*r}, v{33+4*r}
              v_add_f32 v{41+2*r}, v{34+4*r}, v{35+4*r}""")
    for sh in (8, 4, 2, 1):
        for k in range(4):
            A(f"v_add_f32_dpp v{40+k}, v{40+k}, v{40+k} row_ror:{sh} row_mask:0xf bank_mask:0xf")
    for sw in ("v_permlane32_swap_b32", "v_permlane16_swap_b32"):
        for k in range(4): A(f"v_mov_b32 v{44+k}, v{40+k}")
        for k in range(4): A(f"{sw} v{40+k}, v{44+k}")
        for k in range(4): A(f"v_add_f32 v{40+k}, v{40+k}, v{44+k}")
    A(f"""v_add_u32 v12, s68, v1
          s_waitcnt lgkmcnt(0)""")
    A.lg = []
    A("""ds_read_b128 v[48:51], v12
         ds_read_b128 v[52:55], v12 offset:1024""")
    for r in range(2):
        finish_stats(40+2*r, 41+2*r, 44+2*r, 45+2*r)
    for r in range(2):
        for z in range(4):
            x = 64 + 8*r + 2*z
            A(f"""v_fma_f32 v{x}, v{x}, v{44+2*r}, -v{45+2*r}
                  v_fma_f32 v{x+1}, v{x+1}, v{44+2*r}, -v{45+2*r}
                  v_cvt_pk_bf16_f32 v{16+4*r+z}, v{x}, v{x+1}""")
        for g in range(2):
            A(f"ds_write_b64 v11, v[{16+4*r+2*g}:{17+4*r+2*g}] offset:{2048+1024*r+512*g}")
    body = A.lines[mark:]; del A.lines[mark:]
    step = len(body) // (len(side) + 1); issued = 0
    for k, l in enumerate(body):
        if "RESWAIT" in l: A(f"s_waitcnt vmcnt({issued})"); continue
        A.lines.append(l)
        if k % step == 0 and side: A(side.pop(0)); issued += 1
    assert not side
    A(f"""s_lshl_b32 s60, s39, 21
          s_add_u32 s60, s60, {X1}
          s_add_u32 s66, s66, s60
          s_add_u32 s67, s67, s60
          v_and_b32 v5, 7, v0
          v_lshrrev_b32 v6, 3, v0
          v_lshrrev_b32 v7, 1, v5
          v_mul_u32_u24 v7, 4128, v7
          v_and_b32 v8, 1, v5
          v_lshl_add_u32 v7, v8, 10, v7
          v_lshl_add_u32 v7, v6, 4, v7
          s_lshl_b32 s61, s37, 8
          s_add_u32 s61, s61, {ZB + 2048}
          v_add_u32 v7, s61, v7
          v_lshlrev_b32 v6, 8, v6
          v_lshl_add_u32 v6, v5, 4, v6
          s_waitcnt lgkmcnt(0)
          buffer_store_dwordx4 v[48:51], v1, s[4:7], s66 offen sc1
          buffer_store_dwordx4 v[52:55], v1, s[4:7], s67 offen sc1
          s_barrier
          ds_read_b128 v[56:59], v7
          ds_read_b128 v[60:63], v7 offset:128
          s_lshl_b32 s60, s39, 21
          s_lshr_b32 s61, s40, 1
          s_lshl_b32 s61, s61, 14
          s_add_u32 s60, s60, s61
          s_and_b32 s61, s33, 1
          s_lshl_b32 s61, s61, 7
          s_add_u32 s60, s60, s61
          s_lshl_b32 s61, s37, 12
          s_add_u32 s60, s60, s61
          s_add_u32 s60, s60, {XN}
          s_waitcnt lgkmcnt(0)
          buffer_store_dwordx4 v[56:59], v6, s[4:7], s60 offen sc1
          buffer_store_dwordx4 v[60:63], v6, s[4:7], s60 offen offset:2048 sc1
          s_lshl_b32 s59, s39, 6
          s_add_u32 s59, s59, {CF}
          s_lshl_b32 s60, s40, 7
          s_add_u32 s69, s60, s59
          s_lshl_b32 s60, s37, 2
          s_add_u32 s69, s69, s60
          s_lshl_b32 s60, s32, 11
          s_lshl_b32 s61, s37, 9
          s_add_u32 s60, s60, s61
          s_add_u32 s59, s59, s60
          v_lshlrev_b32 v5, 7, v0""")
    TS()
    A.vm0(); A.lg = []
    flag_store("s69", dual=True)
    TS()
    poll("L_pC1", "buffer_load_dwordx4 v[6:9], v5, s[4:7], s60 offen sc1", [6, 7, 8, 9], mask="15", dual=[("s60", "s59", CFQ - CF)])
    TS()

    def xreg(n):
        return f"a[{176+4*n}:{179+4*n}]" if n < 20 else f"v[{128+4*(n-20)}:{131+4*(n-20)}]"
    A(f"""s_lshl_b32 s60, s39, 21
          s_lshl_b32 s61, s32, 17
          s_add_u32 s60, s60, s61
          s_lshl_b32 s61, s37, 15
          s_add_u32 s60, s60, s61
          s_add_u32 s60, s60, {XN}
          s_add_u32 s61, s60, 16384""")
    xq = []
    for kk in range(16):
        for T in range(2):
            t = f"s_add_u32 s{60+T}, s{60+T}, 4096\n" if (kk % 4 == 0 and kk) else ""
            xq.append((t + f"buffer_load_dwordx4 {xreg(2*kk+T)}, v1, s[4:7], s{60+T} offen offset:{(kk%4)*1024} sc1", ("xn", kk)))
    PRE = 10
    for t, tag in xq[:PRE]: A(t, tag)
    A(f"""s_barrier
          v_add_u32 v10, 65536, v1
          v_add_u32 v11, 131072, v1
          s_mul_i32 s64, s39, {HL}
          s_mul_i32 s65, s32, {8*45056}
          s_add_u32 s64, s64, s65
          s_add_u32 s71, s64, {H}
          s_mul_i32 s65, s37, {2*45056}
          s_add_u32 s64, s71, s65
          s_mul_i32 s65, s33, 2816
          s_add_u32 s62, s64, s65
          s_add_u32 s63, s62, 45056
          s_mul_i32 s64, s33, 180224
          s_add_u32 s66, s64, {W1F + 161792}
          s_add_u32 s64, s64, {W1F + 131072}
          s_lshl_b32 s65, s37, 13
          s_add_u32 s64, s64, s65
          s_add_u32 s65, s65, 131072
          s_mul_i32 s67, s37, 5120
          s_add_u32 s66, s66, s67
          s_add_u32 s67, s67, 77824
          s_lshl_b32 s68, s35, 2
          s_add_u32 s68, s68, s37
          s_mul_i32 s68, s68, 45056
          s_add_u32 s68, s68, {W2F}
          s_cmp_eq_u32 s39, 0
          s_cselect_b64 s[56:57], -1, 0
          s_lshl_b32 s72, s39, 21
          s_add_u32 s72, s72, {X1}""")

    frags = []
    for ps, nt in ((0, 4), (1, 4), (2, 3)):
        for kk in range(16):
            for t in range(nt):
                if ps == 0: addr = ("v1", kk*4096 + t*1024)
                elif ps == 1: addr = ("v10", kk*4096 + t*1024)
                elif kk < 10: addr = ("v11", kk*3072 + t*1024)
                else: addr = ("v10", 12288 + (kk-10)*3072 + t*1024)
                frags.append((ps, kk, t, addr))
    LOOK = 6
    def aread(n):
        ps, kk, t, (va, off) = frags[n]
        r = 96 + 4*(n % 8)
        A(f"ds_read_b128 v[{r}:{r+3}], {va} offset:{off}", ("af", n))
    def acc(ps, t, T):
        return 32 + 32*(ps & 1) + 8*t + 4*T
    LOG2E = f2u(-1.4426950408889634)
    def epi(ps, nt):
        out = []
        for T in range(2):
            for t in range(nt):
                a = acc(ps, t, T); t0 = 184 + 2*((2*t+T) & 1)
                out += [(4, f"v_mul_f32 v{t0}, {LOG2E}, v{a}"), (4, f"v_mul_f32 v{t0+1}, {LOG2E}, v{a+1}"),
                        (8, f"v_exp_f32 v{t0}, v{t0}"), (8, f"v_exp_f32 v{t0+1}, v{t0+1}"),
                        (4, f"v_mul_f32 v{a}, v{a}, v{a+2}"), (4, f"v_add_f32 v{t0}, 1.0, v{t0}"),
                        (4, f"v_add_f32 v{t0+1}, 1.0, v{t0+1}"), (8, f"v_rcp_f32 v{t0}, v{t0}"),
                        (8, f"v_rcp_f32 v{t0+1}, v{t0+1}"), (4, f"v_mul_f32 v{a+1}, v{a+1}, v{a+3}"),
                        (4, f"v_mul_f32 v{a}, v{a}, v{t0}"), (4, f"v_mul_f32 v{a+1}, v{a+1}, v{t0+1}"),
                        (4, f"v_cvt_pk_bf16_f32 v{176+4*T+t}, v{a}, v{a+1}")]
            if nt == 4:
                out.append((4, f"buffer_store_dwordx4 v[{176+4*T}:{179+4*T}], v1, s[4:7], s{62+T} offen offset:{1024*ps} sc1"))
        return out
    vq = list(xq[PRE:]) + [(t, "r0") for t in dma_items("v1", "s64", "s65", 8)]
    w2q = []
    for f in range(44):
        t = "s_add_u32 s68, s68, 4096\n" if (f % 4 == 0 and f) else ""
        w2q.append((t + f"s_mov_b64 exec, s[56:57]\nbuffer_load_dwordx4 a[{4*f}:{4*f+3}], v1, s[4:7], s68 offen offset:{(f%4)*1024} sc1\ns_mov_b64 exec, -1", "cond"))
    A.lg = []
    for n in range(LOOK): aread(n)
    fill, budget, nm = [], 0, 0
    for n, (ps, kk, t, _) in enumerate(frags):
        first = (kk == 0 and t == 0)
        if first and ps == 1:
            TS()
            assert not vq
            vq = w2q[:28]
            fill = epi(0, 4); budget = 0
        if ps == 1 and kk == 14 and t == 0:
            A.wait_vm("r0")
            A("s_barrier")
            vq = [(t_, "r1") for t_ in dma_items("v1", "s66", "s67", 5)] + vq
        if first and ps == 2:
            while fill: A(fill.pop(0)[1])
            TS()
            vq = vq + w2q[28:] + [("buffer_load_dwordx4 v[16:19], v4, s[4:7], s72 offen sc1", "res"),
                                  ("buffer_load_dwordx4 v[20:23], v4, s[4:7], s72 offen offset:64 sc1", "res")]
            fill = epi(1, 4); budget = 0
        if ps == 2 and kk == 8 and t == 0:
            A.wait_vm("r1")
            A("s_barrier")
        if ps == 0 and t == 0:
            A.wait_vm(("xn", kk))
        A.wait_lg(("af", n))
        r = 96 + 4*(n % 8)
        for T in range(2):
            a = acc(ps, t, T)
            c = "0" if kk == 0 else f"v[{a}:{a+3}]"
            A(f"v_mfma_f32_16x16x32_bf16 v[{a}:{a+3}], v[{r}:{r+3}], {xreg(2*kk+T)}, {c}")
            budget += 8; nm += 1
            if T == 0 and n + LOOK < len(frags):
                aread(n + LOOK); budget -= 4
            if nm % 4 == 0 and vq:
                t_, tag = vq.pop(0); A(t_, tag); budget -= 4
            while fill and budget >= fill[0][0]:
                budget -= fill[0][0]; A(fill.pop(0)[1])
            budget = min(budget, 8)
    while fill: A(fill.pop(0)[1])
    while vq:
        t_, tag = vq.pop(0); A(t_, tag)
    TS()
    for c_, t_ in epi(2, 3): A(t_)
    for T in range(2):
        b = 176 + 4*T
        A(f"""v_permlane32_swap_b32 v{b}, v{b+2}
              v_permlane32_swap_b32 v{b+1}, v{b+3}
              v_permlane16_swap_b32 v{b}, v{b+1}
              v_permlane16_swap_b32 v{b+2}, v{b+3}""")
    A("""s_mov_b32 exec_hi, 0xffff
         buffer_store_dwordx4 v[176:179], v1, s[4:7], s62 offen offset:2048 sc1
         buffer_store_dwordx4 v[180:183], v1, s[4:7], s63 offen offset:2048 sc1
         s_mov_b32 exec_hi, -1
         s_add_u32 s69, s69, 16
         s_lshl_b32 s60, s34, 3
         s_add_u32 s59, s59, s60
         s_add_u32 s59, s59, 16""")
    A(f"""s_mul_i32 s60, s34, {4*45056}
          s_add_u32 s71, s71, s60
          s_mul_i32 s60, s37, {4*2816}
          s_add_u32 s71, s71, s60""")
    for nu in range(4):
        A(f"""s_add_u32 s60, s37, {1+nu}
              s_and_b32 s60, s60, 3
              s_mul_i32 s61, s60, 45056
              s_add_u32 s{64+nu}, s71, s61""")
        if nu < 3:
            A(f"""s_mul_i32 s60, s60, 12288
                  s_add_u32 s60, s60, {RB2 + 4096*nu}
                  v_add_u32 v{12+nu}, s60, v1""")
    for k in range(3):
        A(f"""v_add_u32 v6, {4*k}, v3
              v_mul_u32_u24 v7, 43, v6
              v_lshrrev_b32 v7, 7, v7
              v_mul_u32_u24 v8, 3, v7
              v_sub_u32 v6, v6, v8
              v_mul_u32_u24 v7, 2816, v7
              v_lshl_add_u32 v7, v6, 8, v7
              v_lshl_add_u32 v{24+k}, v2, 4, v7""")
    TS()
    A.vm0()
    flag_store("s69", dual=True)
    TS()
    poll("L_pC2", "buffer_load_dwordx2 v[6:7], v5, s[4:7], s60 offen sc1", [6, 7], mask="15", dual=[("s60", "s59", CFQ - CF)])
    TS()

    order = [(ks, nu) for ks in range(8) for nu in range(4)] + [(ks, nu) for nu in range(4) for ks in range(8, 11)]
    def hreg(i):
        if i < 16: return f"v[{192+4*i}:{195+4*i}]"
        if i < 36: return f"a[{176+4*(i-16)}:{179+4*(i-16)}]"
        return f"v[{128+4*(i-36)}:{131+4*(i-36)}]"
    hq = []
    for i, (ks, nu) in enumerate(order):
        if ks < 8:
            t = f"s_add_u32 s{64+nu}, s{64+nu}, 2816\n" if (ks >= 2 and ks % 2 == 0) else ""
            hq.append((t + f"buffer_load_dwordx4 {hreg(i)}, v1, s[4:7], s{64+nu} offen offset:{(ks&1)*1024} sc1", ("h", i)))
        else:
            t = f"s_sub_u32 s{64+nu}, s{64+nu}, {3*2816}\n" if ks == 8 else ""
            hq.append((t + f"buffer_load_dwordx4 {hreg(i)}, v{24+ks-8}, s[4:7], s{64+nu} offen offset:2048 sc1", ("h", i)))
    for t, tag in hq[:PRE]: A(t, tag)
    hq = hq[PRE:]
    def acc2(nu, m): return 32 + 16*((nu+1) & 3) + 4*m
    pendw = []
    for i, (ks, nu) in enumerate(order):
        A.wait_vm(("h", i))
        for m in range(4):
            a = acc2(nu, m)
            c = "0" if ks == 0 else f"v[{a}:{a+3}]"
            f = 4*ks + m
            A(f"v_mfma_f32_16x16x32_bf16 v[{a}:{a+3}], a[{4*f}:{4*f+3}], {hreg(i)}, {c}")
            if m == 0 and hq:
                t, tag = hq.pop(0); A(t, tag)
            if pendw and ks > 8: A(pendw.pop(0))
        if ks == 10 and nu < 3:
            pendw = [f"ds_write_b128 v{12+nu}, v[{acc2(nu, m)}:{acc2(nu, m)+3}] offset:{1024*m}" for m in range(4)]
    assert not pendw
    TS()
    A(f"""s_mul_i32 s60, s37, 12288
          s_add_u32 s60, s60, {RB2}
          v_add_u32 v5, s60, v1
          s_waitcnt lgkmcnt(0)
          s_barrier""")
    A.lg = []
    for s_ in range(3):
        for m in range(4):
            r = 96 + 16*s_ + 4*m
            A(f"ds_read_b128 v[{r}:{r+3}], v5 offset:{4096*s_+1024*m}", ("rd", s_))
    for s_ in range(3):
        A.wait_lg(("rd", s_))
        for z in range(8):
            A(f"v_pk_add_f32 v[{32+2*z}:{33+2*z}], v[{32+2*z}:{33+2*z}], v[{96+16*s_+2*z}:{97+16*s_+2*z}]")
    A.vm0()
    TSflush()
    A("""s_add_u32 s39, s39, 1
         s_branch L_E
         L_fin:
         buffer_store_dwordx4 v[68:71], v4, s[12:15], 0 offen sc1
         buffer_store_dwordx4 v[72:75], v4, s[12:15], 0 offen offset:64 sc1""")
    if ts: pend.append(0)
    TS(True)
    if ts:
        A(f"""s_lshl_b32 s60, s40, 2
              s_add_u32 s60, s60, s37
              s_lshl_b32 s60, s60, 8
              s_add_u32 s60, s60, {TSO}
              v_lshlrev_b32 v5, 2, v0
              buffer_store_dword v31, v5, s[4:7], s60 offen""")
    A("""s_or_b32 s60, s40, s37
         s_cmp_lg_u32 s60, 0
         s_cbranch_scc1 L_end""")
    flag_store("0")
    A("""L_end:
         s_endpgm""")
    assert nts[0] <= 20
    return A


HEAD = open("cdna_kernels/%s.s.ref" % NAME).read().split("; Override launch geometry")[0]

def emit(ts=False):
    A = gen(ts)
    body = pad(A.lines)
    k = NAME + "_kernel"
    out = [HEAD.rstrip("\n"), f"; @launch grid=(256,1,1) block=(256,1,1) lds={LDS_BYTES}",
           '.amdgcn_target "amdgcn-amd-amdhsa--gfx950"', ".text", f".globl {k}", ".p2align 8", f".type {k},@function", f"{k}:"]
    out += body
    out += ['.section .rodata,"a"', ".p2align 6", f".amdhsa_kernel {k}", "  .amdhsa_next_free_vgpr 512", "  .amdhsa_next_free_sgpr 102",
            "  .amdhsa_accum_offset 256", "  .amdhsa_group_segment_fixed_size 0", "  .amdhsa_kernarg_size 96", "  .amdhsa_user_sgpr_count 2",
            "  .amdhsa_user_sgpr_kernarg_segment_ptr 1", "  .amdhsa_system_sgpr_workgroup_id_x 1", "  .amdhsa_float_denorm_mode_32 3", ".end_amdhsa_kernel"]
    return "\n".join(out) + "\n"

if __name__ == "__main__":
    sys.stdout.write(emit(ts="ts" in sys.argv))
```

```python
import os, sys, struct
from asmlib import Asm, pad

NAME = "interleave_layers__spectral_fnet__swiglu_ffn__prompt"
MB = 1 << 20
GF, CF, CX, TSO = 0x1000, 0x10000, 0x18000, 0xA0000
ST, STQ = 0x20000, 0xC0000
Y, XN, X1, X2, W1F, W2F, H = 0x100000, 0x500000, 0x900000, 0xD00000, 0xF00000, 0x1200000, 0x1400000
HL = 0x580000
PR = X1
YB, ZB, RB, IB, LDS_BYTES = 81664, 147200, 98304, 147456, 163840
SPIN, NFAST = 400000, 24
LW, LY, LX, LH = [os.environ.get(k, 'sc1').replace('none', '').replace('+', ' ') for k in ('LW', 'LY', 'LX', 'LH')]
def P(name, default): return int(os.environ.get(name, default))
GPB, AGGA, AGGR, LSTEP, EVL, BURSTR = P('GPB', 0), P('AGGA', 0), P('AGGR', 0), P('LSTEP', 5), P('EVL', 16), P('BURSTR', 2)
EVA, EVP, EVC, NPRE, EVR, GR, GF_B = P('EVA', 14), P('EVP', 32), P('EVC', 48), P('NPRE', 7), P('EVR', 15), P('GR', 10), P('GFB', 11)
NC1, NC1B, NSIDE1 = P('NC1', 10), P('NC1B', 0), P('NSIDE1', 13)
ROTW, ROTH = P('ROTW', 0), P('ROTH', 0)
POLLB, GB, BURST, WLAT, NSIDE0, W1EARLY, W2LATE = P('POLLB', 26), P('GB', 24), P('BURST', 9), P('WLAT', 22), P('NSIDE0', 17), P('W1EARLY', 1), P('W2LATE', 8)
LOG2E = 1.4426950408889634
TSG = [int(x) for x in os.environ.get('TSG', '').split('_') if x]
HSC = ['' if c == 'p' else 'sc1' for c in os.environ.get('HPLAIN', 'sss')]
CLK = 's_memtime' if 'cyc' in sys.argv else 's_memrealtime'
MF = "v_mfma_f32_16x16x32_bf16"


def f2u(x):
    return "0x%08x" % struct.unpack("<I", struct.pack("<f", x))[0]


def gen(ts=False, slow=False):
    A = Asm()
    nts, pend = [0], []

    cur = [0]
    def TSflush():
        if not ts or not pend: return
        A("s_waitcnt lgkmcnt(0)"); A.lg = []
        for n, k in enumerate(pend): A(f"v_writelane_b32 v190, s{TSR[n]}, {k}")
        pend.clear()

    TSR = (16, 18, 20, 22, 100, 94)
    def TS(k=None):
        if not ts: return
        if k is None:
            k = nts[0]; nts[0] += 1
        A(f"{CLK} s[{TSR[len(pend)]}:{TSR[len(pend)]+1}]")
        pend.append(20*cur[0] + k)

    def vpoll(label, load, regs, mask=None, dual=None, late=None):
        TSflush()
        if mask: A(f"s_mov_b64 exec, {mask}")
        A("s_mov_b32 s82, 0")
        if dual:
            for dst, fast, delta in dual: A(f"s_mov_b32 {dst}, {fast}")
        A(f"{label}:")
        A(load)
        A("s_waitcnt vmcnt(0)")
        A(f"v_cmp_eq_u32 vcc, s28, v{regs[0]}")
        for k, r in enumerate(regs[1:]):
            A(f"v_cmp_eq_u32 s[{84+2*k}:{85+2*k}], s28, v{r}")
        for k, r in enumerate(regs[1:]):
            A(f"s_and_b64 vcc, vcc, s[{84+2*k}:{85+2*k}]")
        A(f"""s_cmp_eq_u64 vcc, exec
              s_cbranch_scc1 {label}_ok
              s_add_u32 s82, s82, 1""")
        if late:
            A(f"""s_cmp_lg_u32 s82, {NFAST // 2}
                  s_cbranch_scc1 {label}_nl
                  {late}
                  {label}_nl:""")
        if dual:
            A(f"""s_cmp_ge_u32 s82, {NFAST}
                  s_cselect_b32 s84, s82, 0
                  s_and_b32 s84, s84, 1""")
            for dst, fast, delta in dual:
                A(f"""s_mul_i32 s85, s84, {delta}
                      s_add_u32 {dst}, {fast}, s85""")
        A(f"""s_cmp_lt_u32 s82, {SPIN}
              s_cbranch_scc1 {label}
              {label}_ok:""")
        if late: A(late)
        if mask: A("s_mov_b64 exec, -1")
        A.vm = []

    tails = []
    def cpoll_load(vaddr, off):
        return ([], f"buffer_load_dword v240, {vaddr}, s[4:7], s76 offen offset:{off} sc1", "poll")

    def check(label, tag, reg, load):
        A.wait_vm(tag)
        A(f"""v_cmp_ne_u32 vcc, s28, {reg}
              s_cbranch_vccnz {label}_re
              {label}_ok:""")
        tails.append(f"""{label}_re:
              s_mov_b32 s82, 0
              {label}_lp:
              {load}
              s_add_u32 s82, s82, 1
              s_cmp_gt_u32 s82, {SPIN}
              s_cbranch_scc1 {label}_ok
              s_waitcnt vmcnt(0)
              v_cmp_ne_u32 vcc, s28, {reg}
              s_cbranch_vccnz {label}_lp
              s_branch {label}_ok""")

    def cpoll_check(label, vaddr, off):
        check(label, "poll", "v240", cpoll_load(vaddr, off)[1])

    def witem(j, base="s47"):
        lds, va = (4096*j, "v242") if j < 40 else (81920 + 4096*(j - 40), "v243")
        return ([f"s_add_u32 m0, {base}, {lds}"], f"buffer_load_dwordx4 {va}, s[4:7], m0 offen {LW} lds", ("W", j))

    def wgroup(lo, hi, ra, rb):
        n = hi - lo; h = n // 2
        if not ROTW: return [witem(j) for j in range(lo, hi)]
        A(f"""s_and_b32 s82, s32, 1
              s_mul_i32 {ra}, s82, {4096*h}
              s_add_u32 {ra}, {ra}, s47
              s_mul_i32 {rb}, s82, {4096*(n - h)}
              s_sub_u32 {rb}, s47, {rb}""")
        return [witem(j, ra if j - lo + h < n else rb) for j in range(lo, hi)]

    def cflag(off):
        A("s_mov_b64 exec, s[60:61]")
        A(f"buffer_store_dword v30, off, s[4:7], s74 offset:{off}")
        A("s_mov_b64 exec, s[62:63]")
        A(f"buffer_store_dword v30, off, s[4:7], s74 offset:{off} sc1", "cond")
        A("s_mov_b64 exec, -1")

    def gflag(soff):
        A(f"""s_mov_b64 exec, 1
              buffer_store_dword v30, off, s[4:7], {soff} sc1
              s_mov_b64 exec, -1""")

    def put(item):
        if item is None: return
        for p in item[0]: A(p)
        A(item[1], item[2])

    def qreduce(a, b):
        A(f"""v_permlane32_swap_b32 v{a}, v{b}
              v_add_f32 v{a}, v{a}, v{b}
              v_mov_b32 v{b}, v{a}
              v_permlane16_swap_b32 v{a}, v{b}
              v_add_f32 v{a}, v{a}, v{b}""")

    def finish_stats(s, ss, r, scale=None):
        out = [f"v_mul_f32 v{s}, s64, v{s}", f"v_mul_f32 v{r+1}, v{s}, v{s}", f"v_fma_f32 v{ss}, v{ss}, s64, -v{r+1}",
               f"v_max_f32 v{ss}, 0, v{ss}", f"v_add_f32 v{ss}, {f2u(1e-5)}, v{ss}", f"v_rsq_f32 v{r}, v{ss}"]
        if scale: out.append(f"v_mul_f32 v{r}, {f2u(scale)}, v{r}")
        out.append(f"v_mul_f32 v{r+1}, v{s}, v{r}")
        return out

    def normalize(x, r):
        return f"v_pk_fma_f32 v[{x}:{x+1}], v[{x}:{x+1}], v[{r}:{r+1}], v[{r}:{r+1}] op_sel:[0,0,1] op_sel_hi:[1,0,1] neg_lo:[0,0,1] neg_hi:[0,0,1]"

    XLOAD = """buffer_load_dwordx4 v[128:131], v4, s[8:11], 0 offen
               buffer_load_dwordx4 v[132:135], v4, s[8:11], 0 offen offset:64"""
    if ts: A(f"{CLK} s[100:101]")
    A(f"""s_cmp_ge_u32 s2, 256
          s_cbranch_scc1 L_end
          s_load_dwordx2 s[30:31], s[0:1], 0
          s_load_dwordx4 s[44:47], s[0:1], 48
          s_load_dwordx4 s[48:51], s[0:1], 64
          s_load_dwordx2 s[52:53], s[0:1], 88
          s_and_b32 s82, s2, 7
          s_lshr_b32 s83, s2, 3
          s_and_b32 s33, s83, 15
          s_lshr_b32 s83, s83, 4
          s_lshl_b32 s32, s82, 1
          s_add_u32 s32, s32, s83
          s_lshr_b32 s34, s33, 3
          s_and_b32 s35, s33, 7
          s_lshl_b32 s40, s32, 4
          s_add_u32 s40, s40, s33
          s_sub_u32 s82, 32, s32
          s_cmp_eq_u32 s32, 0
          s_cselect_b32 s82, 16, s82
          s_cmp_eq_u32 s34, 0
          s_cselect_b32 s36, s32, s82
          v_lshrrev_b32 v5, 6, v0
          v_and_b32 v0, 63, v0
          v_readfirstlane_b32 s37, v5
          v_and_b32 v2, 15, v0
          v_lshrrev_b32 v3, 4, v0
          v_lshlrev_b32 v1, 4, v0
          s_lshr_b32 s82, s37, 1
          s_lshl_b32 s82, s82, 5
          s_add_u32 s82, s82, s36
          s_and_b32 s83, s37, 1
          s_lshl_b32 s83, s83, 10
          s_add_u32 s82, s82, s83
          s_lshl_b32 s82, s82, 10
          s_lshl_b32 s83, s35, 7
          s_add_u32 s82, s82, s83
          v_lshlrev_b32 v4, 16, v2
          v_lshl_add_u32 v4, v3, 4, v4
          v_add_u32 v4, s82, v4
          s_mov_b32 s10, {2*MB}
          s_mov_b32 s11, 0x20000
          s_waitcnt lgkmcnt(0)
          s_load_dword s42, s[52:53], 0
          s_mov_b32 s8, s30
          s_mov_b32 s9, s31
          {XLOAD}
          s_mov_b32 s4, s52
          s_mov_b32 s5, s53
          s_mov_b32 s6, {256*MB}
          s_mov_b32 s7, 0x20000
          s_mov_b32 s12, s44
          s_mov_b32 s13, s45
          s_mov_b32 s14, {512*2752}
          s_mov_b32 s15, 0x20000
          s_mov_b32 s96, s46
          s_mov_b32 s97, s47
          s_mov_b32 s98, {512*2752}
          s_mov_b32 s99, 0x20000
          s_mov_b32 s24, s48
          s_mov_b32 s25, s49
          s_mov_b32 s26, {1376*1024}
          s_mov_b32 s27, 0x20000""")
    def w1addr():
        A(f"""s_lshl_b32 s82, s32, 5
          s_lshl_b32 s83, s37, 3
          s_add_u32 s82, s82, s83
          v_add_u32 v170, s82, v3
          v_mul_u32_u24 v170, 2752, v170
          s_mul_i32 s83, s33, 11
          v_add_u32 v171, s83, v2
          v_lshl_add_u32 v174, v171, 4, v170
          v_cmp_gt_u32 vcc, 172, v171
          v_cmp_gt_u32 s[84:85], 11, v2
          v_mov_b32 v172, 0x7f000000
          s_and_b64 vcc, vcc, s[84:85]
          v_cndmask_b32 v174, v172, v174, vcc
          v_add_u32 v175, {4*2752}, v174""")
    def w2addr():
        A("""v_lshrrev_b32 v41, 3, v0
             v_and_b32 v42, 1, v41
             v_lshl_add_u32 v40, v3, 3, v42
             v_and_b32 v42, 7, v0
             v_lshlrev_b32 v42, 4, v42
             v_lshl_add_u32 v40, v40, 10, v42
             v_lshl_add_u32 v41, v41, 10, v42
             s_add_u32 s2, s40, 256""")
        for G, dst in (("s40", 46), ("s2", 47)):
            A(f"""s_mul_i32 s82, {G}, 5958
                  s_lshr_b32 s82, s82, 16
                  s_mul_i32 s83, s82, 11
                  s_sub_u32 s83, {G}, s83
                  s_lshr_b32 s84, s82, 2
                  s_and_b32 s82, s82, 3
                  s_mul_i32 s82, s82, 352
                  s_lshl_b32 s84, s84, 7
                  s_lshr_b32 s85, s83, 1
                  s_mul_i32 s85, s85, 88
                  s_and_b32 s86, s83, 1
                  s_lshl_b32 s86, s86, 5
                  s_add_u32 s85, s85, s86
                  s_lshl_b32 s86, s37, 1
                  s_add_u32 s85, s85, s86
                  s_lshl_b32 s86, s83, 2
                  s_add_u32 s86, s86, s37
                  s_sub_u32 s86, s86, 32
                  s_mul_i32 s87, s86, 43
                  s_lshr_b32 s87, s87, 7
                  s_mul_i32 s87, s87, 64
                  s_lshl_b32 s86, s86, 3
                  s_add_u32 s86, s86, s87
                  s_add_u32 s86, s86, 64
                  s_cmp_ge_u32 s83, 8
                  s_cselect_b32 s85, s86, s85
                  s_cselect_b64 vcc, -1, 0
                  s_add_u32 s82, s82, s85
                  s_lshl_b32 s82, s82, 10
                  s_add_u32 s82, s82, s84
                  v_cndmask_b32 v{dst}, v40, v41, vcc
                  v_add_u32 v{dst}, s82, v{dst}""")
    A(f"""s_lshl_b32 s82, s36, 13
          s_lshl_b32 s83, s37, 8
          s_add_u32 s82, s82, s83
          s_add_u32 s66, s82, {ST}
          s_lshl_b32 s82, s37, 19
          s_lshl_b32 s83, s36, 11
          s_add_u32 s82, s82, s83
          s_lshl_b32 s83, s35, 7
          s_add_u32 s82, s82, s83
          s_add_u32 s67, s82, {Y}
          s_lshl_b32 s82, s37, 12
          s_lshr_b32 s83, s35, 1
          s_lshl_b32 s83, s83, 10
          s_add_u32 s82, s82, s83
          s_lshr_b32 s83, s36, 2
          s_lshl_b32 s83, s83, 7
          s_add_u32 s82, s82, s83
          s_and_b32 s83, s36, 3
          s_lshl_b32 s83, s83, 3
          s_add_u32 s82, s82, s83
          s_and_b32 s83, s35, 1
          s_lshl_b32 s83, s83, 2
          s_add_u32 s82, s82, s83
          s_add_u32 s68, s82, {GF}
          s_lshr_b32 s82, s33, 2
          s_and_b32 s82, s82, 1
          s_lshl_b32 s82, s82, 5
          s_add_u32 s43, s36, s82
          s_sub_u32 s82, 64, s43
          s_cmp_le_u32 s43, 31
          s_cselect_b32 s41, s43, s82
          s_and_b32 s41, s41, 31
          s_and_b32 s82, s33, 3
          s_lshl_b32 s82, s82, 9
          s_add_u32 s55, s43, s82
          s_lshr_b32 s82, s41, 3
          s_lshl_b32 s82, s82, 12
          s_lshl_b32 s83, s37, 10
          s_add_u32 s82, s82, s83
          s_add_u32 s69, s82, {GF}
          s_lshl_b32 s82, s41, 16
          s_lshl_b32 s83, s37, 8
          s_add_u32 s82, s82, s83
          s_add_u32 s70, s82, {Y}
          s_lshl_b32 s82, s37, 7
          s_add_u32 s82, s82, s55
          s_lshl_b32 s71, s82, 10
          s_add_u32 s80, s71, 65536
          s_lshl_b32 s82, s32, 3
          s_lshl_b32 s83, s34, 2
          s_add_u32 s82, s82, s83
          s_add_u32 s82, s82, s37
          s_lshl_b32 s82, s82, 14
          s_lshl_b32 s83, s35, 11
          s_add_u32 s82, s82, s83
          s_add_u32 s72, s82, {XN}
          s_lshl_b32 s82, s32, 13
          s_lshl_b32 s83, s34, 12
          s_add_u32 s82, s82, s83
          s_lshl_b32 s83, s37, 10
          s_add_u32 s82, s82, s83
          s_add_u32 s77, s82, {PR}
          s_lshl_b32 s82, s40, 9
          s_lshl_b32 s83, s37, 7
          s_add_u32 s82, s82, s83
          s_add_u32 s0, s82, {PR}
          s_lshr_b32 s82, s40, 1
          s_lshl_b32 s82, s82, 14
          s_and_b32 s83, s33, 1
          s_lshl_b32 s83, s83, 7
          s_add_u32 s81, s82, s83
          s_lshl_b32 s83, s37, 12
          s_add_u32 s82, s81, s83
          s_add_u32 s73, s82, {XN}
          s_lshl_b32 s82, s40, 7
          s_lshl_b32 s83, s37, 4
          s_add_u32 s82, s82, s83
          s_add_u32 s74, s82, {CF}
          s_lshl_b32 s82, s32, 11
          s_lshl_b32 s83, s37, 9
          s_add_u32 s82, s82, s83
          s_add_u32 s76, s82, {CF}
          s_lshl_b32 s82, s32, 17
          s_lshl_b32 s83, s37, 15
          s_add_u32 s82, s82, s83
          s_add_u32 s75, s82, {XN}
          s_mul_i32 s82, s32, {8*45056}
          s_add_u32 s82, s82, {H}
          s_mul_i32 s83, s37, {2*45056}
          s_add_u32 s78, s82, s83
          s_mul_i32 s83, s33, 2816
          s_add_u32 s78, s78, s83
          s_mul_i32 s83, s34, {4*45056}
          s_add_u32 s82, s82, s83
          s_mul_i32 s83, s37, {4*2816}
          s_add_u32 s79, s82, s83
          s_mul_i32 s54, s33, 180224
          s_add_u32 s54, s54, {W1F}
          s_mov_b32 s64, {f2u(1/512)}
          s_mov_b32 s65, {f2u(LOG2E*LOG2E)}
          s_mov_b32 s30, s65
          s_mov_b32 s31, s65""")
    A(f"""s_lshl_b32 s82, s35, 10
          s_add_u32 s82, s82, s66
          v_and_b32 v5, 1, v0
          v_lshlrev_b32 v5, 7, v5
          v_and_b32 v6, 2, v0
          v_lshl_add_u32 v5, v6, 17, v5
          v_add_u32 v5, s82, v5
          v_mov_b32 v6, s74
          v_cmp_gt_u32 vcc, 4, v0
          s_getpc_b64 s[82:83]
          L_pc:
          v_cndmask_b32 v5, v6, v5, vcc
          s_mov_b64 exec, 31
          buffer_load_dword v168, v5, s[4:7], 0 offen sc1
          s_mov_b64 exec, -1
          s_lshl_b32 s84, s37, 13
          v_lshlrev_b32 v5, 7, v0
          v_add_u32 v5, s84, v5
          v_min_u32 v5, L_end-L_pc, v5
          global_load_dword v169, v5, s[82:83]""")
    A(f"""v_lshlrev_b32 v5, 4, v2
          v_lshl_add_u32 v5, v3, 10, v5
          s_mul_i32 s82, s37, {16*160}
          s_add_u32 s82, s82, {IB}
          v_mul_u32_u24 v6, 160, v2
          v_lshl_add_u32 v6, v3, 3, v6
          v_add_u32 v6, s82, v6
          v_lshrrev_b32 v32, 2, v2
          v_lshl_add_u32 v33, v3, 2, v32
          v_and_b32 v34, 3, v2
          v_mul_u32_u24 v7, 160, v33
          v_lshl_add_u32 v7, v34, 3, v7
          v_add_u32 v7, {IB}, v7
          v_lshrrev_b32 v8, 1, v2
          v_lshlrev_b32 v8, 16, v8
          v_and_b32 v35, 1, v2
          v_lshl_add_u32 v8, v35, 10, v8
          v_lshl_add_u32 v8, v3, 4, v8
          v_lshrrev_b32 v36, 3, v0
          v_and_b32 v37, 7, v0
          v_lshlrev_b32 v9, 7, v36
          v_lshl_add_u32 v9, v37, 2, v9
          v_add_u32 v10, 65536, v1
          v_add_u32 v11, 114688, v1""")
    for nu in range(3):
        A(f"""s_add_u32 s82, s37, {1+nu}
              s_and_b32 s82, s82, 3
              s_mul_i32 s82, s82, 12288
              s_add_u32 s82, s82, {RB + 4096*nu}
              v_add_u32 v{12+nu}, s82, v1""")
    A(f"""s_mul_i32 s82, s37, 12288
          s_add_u32 s82, s82, {RB}
          v_add_u32 v15, s82, v1
          v_lshlrev_b32 v16, 1, v3
          v_xor_b32 v16, v16, v2
          v_lshlrev_b32 v16, 4, v16
          v_lshl_add_u32 v16, v3, 10, v16
          v_xor_b32 v17, 128, v16
          s_lshl_b32 s82, s37, 14
          s_add_u32 s82, s82, {YB}
          v_and_b32 v38, 7, v33
          v_lshlrev_b32 v18, 8, v33
          v_lshl_add_u32 v18, v38, 5, v18
          v_lshl_add_u32 v18, v34, 3, v18
          v_add_u32 v18, s82, v18
          v_mul_u32_u24 v19, 1032, v2
          v_lshl_add_u32 v19, v3, 3, v19
          s_lshl_b32 s82, s37, 8
          s_and_b32 s83, s37, 1
          s_lshl_b32 s83, s83, 5
          s_add_u32 s82, s82, {ZB}
          s_add_u32 s84, s82, s83
          s_xor_b32 s83, s83, 32
          s_add_u32 s85, s82, s83
          v_add_u32 v20, s85, v19
          v_add_u32 v19, s84, v19
          v_and_b32 v38, 1, v3
          v_lshlrev_b32 v21, 6, v33
          v_lshl_add_u32 v21, v38, 5, v21
          v_lshl_add_u32 v21, v34, 3, v21
          s_mul_i32 s82, s37, 4128
          s_add_u32 s82, s82, {ZB}
          v_xor_b32 v22, 32, v21
          v_add_u32 v21, s82, v21
          v_add_u32 v22, s82, v22
          v_lshrrev_b32 v39, 1, v3
          v_lshl_add_u32 v39, v2, 1, v39
          v_lshl_add_u32 v23, v38, 5, v39
          v_lshlrev_b32 v23, 4, v23
          v_and_b32 v27, 1, v32
          v_xor_b32 v27, v27, v39
          v_lshlrev_b32 v27, 4, v27
          v_lshl_add_u32 v27, v38, 3, v27
          v_add_u32 v27, s82, v27
          v_lshrrev_b32 v28, 1, v37
          v_mul_u32_u24 v28, 4128, v28
          v_and_b32 v38, 1, v37
          v_lshl_add_u32 v28, v38, 10, v28
          v_lshl_add_u32 v28, v36, 4, v28
          s_lshl_b32 s82, s37, 8
          s_add_u32 s82, s82, {ZB}
          v_add_u32 v28, s82, v28
          v_xor_b32 v31, 16, v28
          v_lshlrev_b32 v29, 8, v36
          v_lshl_add_u32 v29, v37, 4, v29
          v_lshlrev_b32 v238, 7, v3
          v_lshl_add_u32 v239, v35, 4, v238
          s_lshl_b32 s82, s34, 5
          v_add_u32 v239, s82, v239
          v_lshl_add_u32 v238, v34, 4, v238
          v_lshrrev_b32 v37, 5, v0
          v_lshlrev_b32 v245, 4, v2
          v_lshl_add_u32 v245, v37, 3, v245
          v_lshrrev_b32 v241, 1, v2
          v_lshlrev_b32 v241, 7, v241
          v_lshl_add_u32 v241, v35, 3, v241
          v_add_u32 v242, s54, v1
          v_add_u32 v243, 81920, v242
          s_lshl_b32 s47, s37, 10""")
    for k in range(3):
        A(f"""v_add_u32 v36, {4*k}, v3
              v_mul_u32_u24 v37, 43, v36
              v_lshrrev_b32 v37, 7, v37
              v_mul_u32_u24 v38, 3, v37
              v_sub_u32 v36, v36, v38
              v_mul_u32_u24 v37, 2816, v37
              v_lshl_add_u32 v37, v36, 8, v37
              v_lshl_add_u32 v{24+k}, v2, 4, v37""")
    A(f"""s_getreg_b32 s3, hwreg(HW_REG_XCC_ID, 0, 4)
          s_waitcnt lgkmcnt(0)
          s_mul_i32 s28, s42, 0x9E3779B1
          s_add_u32 s28, s28, 0x7F4A7C15
          s_mov_b32 s29, s28
          s_add_u32 s3, s3, s28
          v_mov_b32 v30, s28
          v_mov_b32 v236, s3
          s_lshl_b32 s82, s40, 7
          s_add_u32 s38, s82, {CX}""")
    if ts:
        A("v_mov_b32 v190, 0\nv_writelane_b32 v190, s100, 62")

    def seq_consts():
        A(f"""s_lshl_b32 s82, s37, 4
              v_add_u32 v60, s82, v2
              v_lshrrev_b32 v61, 1, v60
              v_cmp_eq_u32 vcc, 1, v60
              v_and_b32 v62, 1, v60
              v_cvt_f32_u32 v63, v3
              v_cndmask_b32 v61, v61, 32, vcc
              v_cndmask_b32 v62, v62, 0, vcc
              v_and_b32 v60, 1, v61
              v_cvt_f32_u32 v61, v61
              v_cvt_f32_u32 v62, v62
              v_mul_f32 v61, {f2u(1/64)}, v61
              v_mul_f32 v62, {f2u(0.25)}, v62
              v_mul_f32 v63, {f2u(8.0)}, v63
              v_fma_f32 v62, v61, v63, v62
              v_mul_u32_u24 v60, 0x8000, v60
              v_lshl_or_b32 v60, v60, 16, v60""")
        for ks in range(2):
            for pr in range(2):
                for b in range(2):
                    A(f"""v_fmamk_f32 v{136+b}, v61, {f2u(float(ks + 2*(2*pr+b)))}, v62
                          v_cos_f32 v{136+b}, v{136+b}""")
                A(f"""v_cvt_pk_bf16_f32 v{88+4*ks+pr}, v136, v137
                      v_xor_b32 v{90+4*ks+pr}, v60, v{88+4*ks+pr}""")

    def tile_stats():
        A("""v_pk_add_f32 v[60:61], v[64:65], v[66:67]
             v_pk_mul_f32 v[62:63], v[64:65], v[64:65]
             v_pk_fma_f32 v[62:63], v[66:67], v[66:67], v[62:63]""")
        for z in range(2, 8):
            A(f"""v_pk_add_f32 v[60:61], v[60:61], v[{64+2*z}:{65+2*z}]
                  v_pk_fma_f32 v[62:63], v[{64+2*z}:{65+2*z}], v[{64+2*z}:{65+2*z}], v[62:63]""")
        A("""v_add_f32 v48, v60, v61
             v_add_f32 v49, v62, v63""")
        qreduce(48, 49)
        A("v_mov_b32 v49, s28")

    def seq_pass1(extra_stores=None):
        A("""v_add_f32 v48, v52, v56
             v_add_f32 v49, v54, v58""")
        qreduce(48, 49)
        A("""v_mov_b32 v49, v48
             v_permlane32_swap_b32 v48, v49""")
        for l in finish_stats(48, 49, 60): A(l)
        for z in range(8):
            A(normalize(64+2*z, 60))
            A(f"v_cvt_pk_bf16_f32 v{128+z}, v{64+2*z}, v{65+2*z}")
            if z & 1: A(f"ds_write_b64 v6, v[{127+z}:{128+z}] offset:{32*(z>>1)}")
        A("""s_waitcnt lgkmcnt(0)
             s_barrier""")
        A.lg = []
        for m in range(4):
            for ks in range(2):
                for hh in range(2):
                    r = 96 + 8*m + 4*ks + 2*hh
                    A(f"ds_read_b64_tr_b16 v[{r}:{r+1}], v7 offset:{ks*5120+hh*2560+32*m}", ("p1", m))
        if extra_stores: extra_stores()
        for m in range(4):
            A.wait_lg(("p1", m))
            A(f"{MF} v[{32+4*m}:{35+4*m}], v[{96+8*m}:{99+8*m}], v[88:91], 0")
            A(f"{MF} v[{32+4*m}:{35+4*m}], v[{100+8*m}:{103+8*m}], v[92:95], v[{32+4*m}:{35+4*m}]")
        for z in range(8):
            A(f"v_cvt_pk_bf16_f32 v{128+z}, v{32+2*z}, v{33+2*z}")
            if z == 3: A("buffer_store_dwordx4 v[128:131], v8, s[4:7], s67 offen sc1")
        A("buffer_store_dwordx4 v[132:135], v8, s[4:7], s67 offen offset:64 sc1")

    seq_consts()
    def first_stats():
        TS(0)
        for z in range(8):
            A(f"""v_lshlrev_b32 v{64+2*z}, 16, v{128+z}
                  v_and_b32 v{65+2*z}, 0xffff0000, v{128+z}""")
        tile_stats()
        A(f"""s_lshl_b32 s83, s35, 10
              s_add_u32 s83, s83, s66
              s_add_u32 s93, s83, {STQ - ST}
              s_mov_b32 exec_lo, 0xffff
              s_mov_b32 exec_hi, 0xffff
              buffer_store_dwordx2 v[48:49], v245, s[4:7], s83 offen
              s_mov_b64 exec, -1""")
    w1addr()
    A("s_waitcnt vmcnt(2)")
    first_stats()
    A("s_add_u32 s92, s66, 4096")
    TS(1)
    vpoll("L_pS0", """buffer_load_dwordx4 v[52:55], v5, s[4:7], s90 offen sc1
                      buffer_load_dwordx4 v[56:59], v5, s[4:7], s91 offen sc1""", [53, 55, 57, 59],
          dual=[("s90", "s66", STQ - ST), ("s91", "s92", STQ - ST)],
          late="""s_mov_b32 exec_lo, 0xffff
                  s_mov_b32 exec_hi, 0xffff
                  buffer_store_dwordx2 v[48:49], v245, s[4:7], s93 offen sc1
                  s_mov_b64 exec, -1""")
    TS(2)
    W1LOAD = """buffer_load_dwordx4 v[144:147], v174, s[12:15], 0 offen
                buffer_load_dwordx4 v[148:151], v174, s[96:99], 0 offen
                buffer_load_dwordx4 v[152:155], v175, s[12:15], 0 offen
                buffer_load_dwordx4 v[156:159], v175, s[96:99], 0 offen"""
    if W1EARLY: A(W1LOAD)
    A("""s_cmp_eq_u32 s37, 0
         s_cselect_b64 exec, 1, 0
         buffer_store_dword v236, off, s[4:7], s38 offset:16 sc1
         s_mov_b64 exec, -1""")
    seq_pass1()
    if not W1EARLY: A(W1LOAD)
    w2addr()
    A("""v_lshrrev_b32 v32, 2, v2
         v_and_b32 v34, 3, v2""")
    A(f"s_waitcnt vmcnt({0 if W1EARLY else 4})")
    gflag("s68")
    TS(3)
    A("""buffer_load_dwordx4 v[176:179], v46, s[24:27], 0 offen
         buffer_load_dwordx4 v[180:183], v47, s[24:27], 0 offen""")
    A(f"""s_lshl_b32 s82, s37, 12
          v_lshlrev_b32 v40, 5, v0
          v_add_u32 v40, s82, v40
          v_lshlrev_b32 v43, 9, v32
          v_lshl_add_u32 v43, v3, 5, v43
          v_lshl_add_u32 v43, v34, 3, v43
          v_add_u32 v43, s82, v43
          s_lshl_b32 s84, s37, 8
          s_add_u32 s83, s54, s84
          s_lshl_b32 s85, s32, 12
          s_add_u32 s85, s85, s83
          s_add_u32 s86, s85, 114688
          s_mul_i32 s87, s32, 3072
          s_add_u32 s87, s87, s83
          s_add_u32 s87, s87, 65536""")
    for rq in range(2):
        b = 144 + 8*rq
        A(f"""s_waitcnt vmcnt({5 - 2*rq})
              v_swap_b32 v{b+1}, v{b+4}
              v_swap_b32 v{b+3}, v{b+5}
              v_swap_b32 v{b+2}, v{b+4}
              v_swap_b32 v{b+5}, v{b+6}
              ds_write_b128 v40, v[{b}:{b+3}] offset:{2048*rq}
              ds_write_b128 v40, v[{b+4}:{b+7}] offset:{2048*rq+16}""")
    A("s_waitcnt lgkmcnt(0)")
    for z in range(3):
        A(f"""ds_read_b64_tr_b16 v[{144+4*z}:{145+4*z}], v43 offset:{128*z}
              ds_read_b64_tr_b16 v[{146+4*z}:{147+4*z}], v43 offset:{128*z+2048}""")
    A("""s_waitcnt lgkmcnt(4)
         buffer_store_dwordx4 v[144:147], v5, s[4:7], s85 offen sc1
         s_waitcnt lgkmcnt(2)
         buffer_store_dwordx4 v[148:151], v5, s[4:7], s86 offen sc1
         s_waitcnt lgkmcnt(0)
         s_mov_b32 exec_hi, 0xffff
         buffer_store_dwordx4 v[152:155], v5, s[4:7], s87 offen sc1
         s_mov_b32 exec_hi, -1""")
    A(f"""s_lshl_b32 s82, s37, 2
          s_add_u32 s1, s82, s38
          s_mov_b32 s12, s50
          s_mov_b32 s13, s51
          s_mov_b32 s14, {2*MB}""")

    def layer(L):
        nts[0] = 4
        B2, BA, TC, TSN, BB = 192, 200, 206, 214, 222
        A(f"""s_cmp_eq_u32 s43, 32
              s_cselect_b32 s84, 0, 1.0
              s_cselect_b32 s85, 1.0, 0
              s_cmp_gt_u32 s43, 32
              s_cselect_b32 s86, -1.0, 1.0
              s_and_b32 s82, s43, 31
              s_cmp_eq_u32 s82, 0
              s_cselect_b32 s86, 0, s86
              v_lshrrev_b32 v32, 1, v2
              v_lshlrev_b32 v32, 6, v32
              v_add_u32 v32, s55, v32
              v_cvt_f32_u32 v32, v32
              v_and_b32 v33, 1, v2
              v_cvt_f32_u32 v39, v33
              v_cvt_f32_u32 v34, v3
              v_cvt_f32_u32 v40, v2
              v_mul_f32 v32, {f2u(1/2048)}, v32
              v_mul_f32 v39, {f2u(0.25)}, v39
              v_add_f32 v35, v34, v34
              v_fma_f32 v39, v32, v35, v39
              v_mul_u32_u24 v33, 0x8000, v33
              v_lshl_or_b32 v33, v33, 16, v33
              v_mul_f32 v34, 4.0, v34""")
        for ks in range(2):
            for z in range(4):
                A(f"""v_fmamk_f32 v35, v32, {f2u(float(16*ks + 8*(z>>1) + (z&1)))}, v39
                      v_cos_f32 v36, v35
                      v_sin_f32 v37, v35
                      v_mul_f32 v38, s85, v36
                      v_mul_f32 v36, s84, v36
                      v_fma_f32 v37, v37, s86, v38
                      v_cvt_pk_bf16_f32 v{B2+4*ks+z}, v36, v37""")
        def sincos4(scale, cdst, sdst, add=0):
            A(f"""v_mul_f32 v32, {f2u(scale)}, v40
                  v_mul_f32 v39, v32, v34""")
            for j in range(4):
                A(f"""v_fmamk_f32 v35, v32, {f2u(float(j+add))}, v39
                      v_cos_f32 v{cdst+j}, v35
                      v_sin_f32 v{sdst+j}, v35""")
        sincos4(1/16, 44, 48)
        A(f"""v_cvt_pk_bf16_f32 v{BA+2}, v44, v45
              v_cvt_pk_bf16_f32 v{BA+3}, v46, v47
              v_cvt_pk_bf16_f32 v{BA+4}, v48, v49
              v_cvt_pk_bf16_f32 v{BA+5}, v50, v51
              v_xor_b32 v{BA}, 0x80008000, v{BA+4}
              v_xor_b32 v{BA+1}, 0x80008000, v{BA+5}""")
        sincos4(1/512, TC, TSN)
        sincos4(1/512, TC+4, TSN+4, 16)
        sincos4(1/32, 44, 48)
        for ks in range(2):
            A(f"""v_cvt_pk_bf16_f32 v{BB+4*ks}, v{44+4*ks}, v{45+4*ks}
                  v_cvt_pk_bf16_f32 v{BB+4*ks+1}, v{46+4*ks}, v{47+4*ks}
                  v_xor_b32 v{BB+4*ks+2}, v33, v{BB+4*ks}
                  v_xor_b32 v{BB+4*ks+3}, v33, v{BB+4*ks+1}""")
        for z in range(8):
            A(f"v_xor_b32 v{BB+8+z}, 0x80000000, v{BB+z}")
        for mt in range(1, 8):
            A(f"v_xor_b32 v{168+mt}, {32*mt}, v18")
        A(f"""s_mov_b32 s90, s70
              s_lshl_b32 s91, s37, 14
              s_add_u32 s91, s91, {YB}
              s_mov_b32 m0, s91
              s_lshl_b32 s92, s32, 11
              s_add_u32 s92, s92, {CX + 16}
              v_lshlrev_b32 v41, 7, v2""")
        if L == 0:
            A(f"""v_add_u32 v42, s91, v1
                  v_lshrrev_b32 v44, 2, v2
                  v_and_b32 v45, 3, v2
                  v_lshlrev_b32 v44, 7, v44
                  v_lshl_add_u32 v44, v45, 4, v44
                  v_lshrrev_b32 v45, 1, v3
                  v_lshl_add_u32 v44, v45, 6, v44
                  v_and_b32 v45, 1, v3
                  v_lshl_add_u32 v44, v45, 3, v44
                  v_add_u32 v44, s91, v44
                  s_waitcnt vmcnt(3)
                  ds_write_b128 v42, v[176:179]
                  ds_write_b128 v42, v[180:183] offset:1024
                  s_waitcnt lgkmcnt(0)
                  ds_read_b64_tr_b16 v[176:177], v44
                  ds_read_b64_tr_b16 v[178:179], v44 offset:512
                  ds_read_b64_tr_b16 v[180:181], v44 offset:1024
                  ds_read_b64_tr_b16 v[182:183], v44 offset:1536
                  s_waitcnt lgkmcnt(0)""")
            A(f"""s_lshl_b32 s93, s33, 7
                  s_add_u32 s93, s93, {CX}
                  v_lshlrev_b32 v184, 11, v2
                  v_lshl_add_u32 v184, v3, 2, v184
                  s_waitcnt vmcnt(0)""")
            gflag("s1")
        TS()
        vpoll(f"L_pG{L}", "buffer_load_dword v36, v9, s[4:7], s69 offen sc1", [36])
        TS()
        for z in range(16):
            if z and z % 4 == 0: A("s_add_u32 m0, m0, 4096")
            A(f"buffer_load_dwordx4 v{16+(z&1)}, s[4:7], s90 offen offset:{(z%4)*1024} {LY} lds", ("y", z >> 3))
            if z < 15: A(f"s_add_u32 s90, s90, {3072 if z % 4 != 3 else 7168}")
        A("s_barrier")
        for r in range(2):
            A(f"buffer_load_dwordx4 v[{160+4*r}:{163+4*r}], v23, s[8:11], s{71 if r == 0 else 80} offen sc1", "res")
        if L == 0:
            A("buffer_load_dword v168, v41, s[4:7], s92 offen sc1", "res")
            A("buffer_load_dword v185, v184, s[4:7], s93 offen sc1", "gw")
        A.wait_vm(("y", 0))
        TS()
        A.lg = []
        def p2addr(mt): return "v18" if mt == 0 else f"v{168+mt}"
        for ks in range(2):
            if ks == 1:
                A.wait_vm(("y", 1))
                if L == 0:
                    A(f"""s_lshl_b32 s82, s40, 12
                          s_lshl_b32 s83, s37, 8
                          s_add_u32 s82, s82, s83
                          s_add_u32 s82, s82, {W2F}
                          s_add_u32 s83, s82, {256*4096}""")
                    A("buffer_store_dwordx4 v[176:179], v5, s[4:7], s82 offen sc1", "w2s")
                    A("""s_cmp_lt_u32 s40, 96
                         s_cselect_b64 exec, -1, 0""")
                    A("buffer_store_dwordx4 v[180:183], v5, s[4:7], s83 offen sc1", "cond")
                    A("s_mov_b64 exec, -1")
            for mt in range(8):
                if ks == 1:
                    A.wait_lg(("p2", 0, mt))
                    A(f"{MF} v[{32+4*mt}:{35+4*mt}], v[{96+8*mt}:{99+8*mt}], v[{B2}:{B2+3}], 0")
                for hh in range(2):
                    r = 96 + 8*mt + 4*ks + 2*hh
                    A(f"ds_read_b64_tr_b16 v[{r}:{r+1}], {p2addr(mt)} offset:{ks*8192+hh*4096}", ("p2", ks, mt))
        for mt in range(8):
            A.wait_lg(("p2", 1, mt))
            A(f"{MF} v[{32+4*mt}:{35+4*mt}], v[{100+8*mt}:{103+8*mt}], v[{B2+4}:{B2+7}], v[{32+4*mt}:{35+4*mt}]")
            if mt >= 3:
                m = mt - 3
                A(f"""v_cvt_pk_bf16_f32 v{64+2*m}, v{32+4*m}, v{33+4*m}
                      v_cvt_pk_bf16_f32 v{65+2*m}, v{34+4*m}, v{35+4*m}""")
                A(f"ds_write_b64 v{19+(m&1)}, v[{64+2*m}:{65+2*m}] offset:{64*(m>>1)}")
        for m in range(5, 8):
            A(f"""v_cvt_pk_bf16_f32 v{64+2*m}, v{32+4*m}, v{33+4*m}
                  v_cvt_pk_bf16_f32 v{65+2*m}, v{34+4*m}, v{35+4*m}
                  ds_write_b64 v{19+(m&1)}, v[{64+2*m}:{65+2*m}] offset:{64*(m>>1)}""")
        if L == 0: check("L_pW", "gw", "v185", "buffer_load_dword v185, v184, s[4:7], s93 offen sc1")
        A("""s_waitcnt lgkmcnt(0)
             s_barrier""")
        A.lg = []
        TS()
        for r in range(2):
            for h in range(2):
                for cc in range(2):
                    reg = 96 + 8*r + 4*h + 2*cc
                    A(f"ds_read_b64_tr_b16 v[{reg}:{reg+1}], v{21+h} offset:{r*2064+cc*1032}", ("sa", r))
        wnext = 0 if L == 0 else 19
        side = wgroup(wnext, wnext + (NSIDE0 if L == 0 else NSIDE1), "s90", "s91")
        wnext += len(side)
        mark = len(A.lines)
        for r in range(2):
            A.wait_lg(("sa", r))
            for h in range(2):
                for c2 in range(2):
                    d = 32 + 16*r + 8*c2 + 4*h
                    b = BA + 2 if c2 == 0 else BA
                    A(f"{MF} v[{d}:{d+3}], v[{96+8*r+4*h}:{99+8*r+4*h}], v[{b}:{b+3}], 0")
        A("RESWAIT")
        nres = A.vm_count("res")
        for r in range(2):
            A(f"""v_permlane16_swap_b32 v{160+4*r}, v{162+4*r}
                  v_permlane16_swap_b32 v{161+4*r}, v{163+4*r}""")
        for r in range(2):
            for z in range(4):
                A(f"""v_lshlrev_b32 v{80+8*r+2*z}, 16, v{160+4*r+z}
                      v_and_b32 v{81+8*r+2*z}, 0xffff0000, v{160+4*r+z}""")
        for r in range(2):
            for z in range(4):
                ur, ui = 32 + 16*r + 2*z, 40 + 16*r + 2*z
                A(f"""v_pk_mul_f32 v[64:65], v[{ui}:{ui+1}], v[{TSN+2*z}:{TSN+2*z+1}]
                      v_pk_mul_f32 v[66:67], v[{ur}:{ur+1}], v[{TSN+2*z}:{TSN+2*z+1}]
                      v_pk_fma_f32 v[64:65], v[{ur}:{ur+1}], v[{TC+2*z}:{TC+2*z+1}], v[64:65]
                      v_pk_fma_f32 v[66:67], v[{ui}:{ui+1}], v[{TC+2*z}:{TC+2*z+1}], v[66:67] neg_lo:[0,0,1] neg_hi:[0,0,1]
                      v_cvt_pk_bf16_f32 v{112+8*r+z}, v64, v65
                      v_cvt_pk_bf16_f32 v{116+8*r+z}, v66, v67""")
            for g in range(2):
                d = 80 + 8*r + 4*g
                A(f"{MF} v[{d}:{d+3}], v[{112+8*r}:{115+8*r}], v[{BB+8*g}:{BB+8*g+3}], v[{d}:{d+3}]")
            for g in range(2):
                d = 80 + 8*r + 4*g
                A(f"{MF} v[{d}:{d+3}], v[{116+8*r}:{119+8*r}], v[{BB+8*g+4}:{BB+8*g+7}], v[{d}:{d+3}]")
        if L == 0:
            A(f"""v_cmp_ne_u32 vcc, s3, v168
                  s_cmp_eq_u64 vcc, {-2 if slow else 0}
                  s_cselect_b64 s[60:61], 1, 0
                  s_cselect_b64 s[62:63], 0, 1
                  s_cselect_b32 s56, 0xffff, 0
                  s_cselect_b32 s57, 0xffff, 0
                  s_cselect_b32 s58, 0, 0xffff
                  s_cselect_b32 s59, 0, 0xffff""")
        for r in range(2):
            x = 80 + 8*r
            A(f"""v_pk_add_f32 v[{32+4*r}:{33+4*r}], v[{x}:{x+1}], v[{x+2}:{x+3}]
                  v_pk_mul_f32 v[{34+4*r}:{35+4*r}], v[{x}:{x+1}], v[{x}:{x+1}]""")
            for z in range(1, 4):
                if z > 1: A(f"v_pk_add_f32 v[{32+4*r}:{33+4*r}], v[{32+4*r}:{33+4*r}], v[{x+2*z}:{x+2*z+1}]")
                A(f"v_pk_fma_f32 v[{34+4*r}:{35+4*r}], v[{x+2*z}:{x+2*z+1}], v[{x+2*z}:{x+2*z+1}], v[{34+4*r}:{35+4*r}]")
            A(f"""v_add_f32 v{40+2*r}, v{32+4*r}, v{33+4*r}
                  v_add_f32 v{41+2*r}, v{34+4*r}, v{35+4*r}""")
        A("""v_permlane32_swap_b32 v40, v42
             v_permlane32_swap_b32 v41, v43
             v_add_f32 v40, v40, v42
             v_add_f32 v41, v41, v43
             v_permlane16_swap_b32 v40, v41
             v_add_f32 v40, v40, v41""")
        for sh in (8, 4, 2, 1):
            A(f"v_add_f32_dpp v40, v40, v40 row_ror:{sh} row_mask:0xf bank_mask:0xf")
        A("""v_mov_b32 v41, v40
             v_permlane16_swap_b32 v40, v41""")
        for l in finish_stats(40, 41, 44, LOG2E): A(l)
        A("""v_mov_b32 v48, v44
             v_mov_b32 v49, v45
             v_rcp_f32 v46, v44
             v_permlane32_swap_b32 v44, v48
             v_permlane32_swap_b32 v45, v49
             v_mov_b32 v47, v40""")
        for r in range(2):
            for z in range(4):
                x = 80 + 8*r + 2*z
                A(normalize(x, 44+4*r))
                A(f"v_cvt_pk_bf16_f32 v{64+4*r+z}, v{x}, v{x+1}")
                if z & 1: A(f"ds_write_b64 v27, v[{63+4*r+z}:{64+4*r+z}] offset:{1024*r+512*(z>>1)}")
        body = A.lines[mark:]; del A.lines[mark:]
        step = (len(body) - 16) // len(side); issued = 0
        for k, l in enumerate(body):
            if "RESWAIT" in l: A(f"s_waitcnt vmcnt({issued + nres})"); continue
            A.lines.append(l)
            if k % step == 2 and side and "s_cmp" not in l and "s_cselect" not in l: put(side.pop(0)); issued += 1
        assert not side
        if L == 0:
            A.wait_vm("w2s")
            A("s_add_u32 s1, s1, 32")
            gflag("s1")
        A(f"""s_mov_b32 exec_lo, 1
              s_mov_b32 exec_hi, 1
              buffer_store_dwordx2 v[46:47], v245, s[4:7], s0 offen sc1
              s_mov_b64 exec, -1
              s_waitcnt lgkmcnt(0)
              s_barrier
              ds_read_b128 v[48:51], v28
              ds_read_b128 v[52:55], v31 offset:128
              s_waitcnt lgkmcnt(1)
              buffer_store_dwordx4 v[48:51], v29, s[4:7], s73 offen sc1
              s_waitcnt lgkmcnt(0)
              buffer_store_dwordx4 v[52:55], v29, s[4:7], s73 offen offset:2048 sc1""")
        TS()
        TSflush()
        A(f"""s_mov_b32 s44, s75
              s_add_u32 s45, s75, 16384
              s_add_u32 s46, s78, 45056
              """)
        for nu in range(4):
            A(f"""s_add_u32 s82, s37, {1+nu}
                  s_and_b32 s82, s82, 3
                  s_mul_i32 s82, s82, 45056
                  s_add_u32 s{96+nu}, s79, s82""")
        if L == 0:
            A(f"""s_lshl_b32 s82, s35, 2
                  s_add_u32 s82, s82, s37
                  s_mul_i32 s82, s82, 11
                  v_min_u32 v196, 10, v2
                  v_add_u32 v196, s82, v196
                  v_and_b32 v196, 255, v196
                  v_lshlrev_b32 v196, 7, v196
                  v_lshl_add_u32 v196, v3, 2, v196
                  s_mov_b32 s2, {CX + 32}""")
        A(f"""s_lshl_b32 s82, s32, 1
              s_add_u32 s82, s82, s34
              s_add_u32 s82, s82, s35
              s_and_b32 s42, s82, {3 if ROTH else 0}
              s_mul_i32 s83, s42, 2816""")
        for nu in range(4): A(f"s_add_u32 s{96+nu}, s{96+nu}, s83")
        for k in range(1, 4):
            A(f"""s_add_u32 s82, s42, {k}
                  s_cmp_eq_u32 s82, 4
                  s_cselect_b32 s82, -3, 1
                  s_mul_i32 s{83+k}, s82, 2816""")
        A(f"""s_add_u32 s82, s42, 3
              s_and_b32 s82, s82, 3
              s_mul_i32 s87, s82, 2816
              s_mov_b32 s88, s83""")
        A.vm0(); A.lg = []
        cflag(0)
        for _ in range(NC1 if L == 0 else NC1B): put(witem(wnext)); wnext += 1
        assert wnext <= 35
        put(cpoll_load("v238", 0))
        cpoll_check(f"L_pC1{L}", "v238", 0)
        if "g2" not in sys.argv: TS()

        def xreg(n):
            return f"a[{176+4*n}:{179+4*n}]" if n < 20 else f"v[{128+4*(n-20)}:{131+4*(n-20)}]"
        xq = []
        for kk in range(16):
            for T in range(2):
                pre = [f"s_add_u32 s{44+T}, s{44+T}, 4096"] if (kk % 4 == 0 and kk) else []
                xq.append((pre, f"buffer_load_dwordx4 {xreg(2*kk+T)}, v1, s[4:7], s{44+T} offen offset:{(kk%4)*1024} {LX}", ("xn", kk)))
        PRE = 10
        for it in xq[:PRE]: put(it)
        A("s_barrier")
        frags = []
        for ps, nt in ((0, 4), (1, 3), (2, 4)):
            for kk in range(16):
                for t in range(nt):
                    if ps == 0: addr = ("v1", kk*4096 + t*1024)
                    elif ps == 1: addr = ("v10", kk*3072 + t*1024)
                    elif kk < 12: addr = ("v11", kk*4096 + t*1024)
                    else: addr = ("v10", 16384 + (kk-12)*4096 + t*1024)
                    frags.append((ps, kk, t, addr))
        NF, LOOK = len(frags), 6
        def aread(n):
            ps, kk, t, (va, off) = frags[n]
            r = 96 + 4*(n % 8)
            A(f"ds_read_b128 v[{r}:{r+3}], {va} offset:{off}", ("af", n))
        def acc(ps, t, T): return 32 + 32*(ps & 1) + 8*t + 4*T

        def epi(ps, nt, together=False, packed=False):
            ops, tmp_last, k = [], {}, 0
            for T in range(2):
                cv = []
                for t in range(nt):
                    a = acc(ps, t, T); e = 184 + 2*(k % 3); k += 1
                    b = len(ops); w = tmp_last.get(e, [])
                    if packed:
                        ops += [["t", f"v_exp_f32 v{e}, -v{a}", w], ["t", f"v_exp_f32 v{e+1}, -v{a+1}", w],
                                ["v", f"v_pk_mul_f32 v[{a}:{a+1}], v[{a}:{a+1}], v[{a+2}:{a+3}]", [b, b+1]],
                                ["v", f"v_pk_fma_f32 v[{e}:{e+1}], v[{e}:{e+1}], s[30:31], s[30:31]", [b, b+1]],
                                ["t", f"v_rcp_f32 v{e}, v{e}", [b+3]], ["t", f"v_rcp_f32 v{e+1}, v{e+1}", [b+3]],
                                ["v", f"v_pk_mul_f32 v[{a}:{a+1}], v[{a}:{a+1}], v[{e}:{e+1}]", [b+2, b+4, b+5]],
                                ["v", f"v_cvt_pk_bf16_f32 v{176+4*T+t}, v{a}, v{a+1}", [b+6]]]
                        tmp_last[e] = [b+6]; cv.append(b+7)
                        continue
                    ops += [["t", f"v_exp_f32 v{e}, -v{a}", w], ["t", f"v_exp_f32 v{e+1}, -v{a+1}", w],
                            ["v", f"v_mul_f32 v{a}, v{a}, v{a+2}", [b]], ["v", f"v_mul_f32 v{a+1}, v{a+1}, v{a+3}", [b+1]],
                            ["v", f"v_fma_f32 v{e}, v{e}, s65, s65", [b]], ["v", f"v_fma_f32 v{e+1}, v{e+1}, s65, s65", [b+1]],
                            ["t", f"v_rcp_f32 v{e}, v{e}", [b+4]], ["t", f"v_rcp_f32 v{e+1}, v{e+1}", [b+5]],
                            ["v", f"v_mul_f32 v{a}, v{a}, v{e}", [b+2, b+6]], ["v", f"v_mul_f32 v{a+1}, v{a+1}, v{e+1}", [b+3, b+7]],
                            ["v", f"v_cvt_pk_bf16_f32 v{176+4*T+t}, v{a}, v{a+1}", [b+8, b+9]]]
                    tmp_last[e] = [b+8, b+9]; cv.append(b+10)
                b, so = 176 + 4*T, 78 if T == 0 else 46
                if nt == 4:
                    ops.append(["m", f"buffer_store_dwordx4 v[{b}:{b+3}], v1, s[4:7], s{so} offen offset:{512*ps} {HSC[ps]}", cv])
                else:
                    n0 = len(ops)
                    ops += [["t", f"v_permlane32_swap_b32 v{b}, v{b+2}", cv], ["t", f"v_permlane32_swap_b32 v{b+1}, v{b+3}", cv],
                            ["t", f"v_permlane16_swap_b32 v{b}, v{b+1}", [n0, n0+1]], ["t", f"v_permlane16_swap_b32 v{b+2}, v{b+3}", [n0, n0+1]],
                            ["m", f"s_mov_b32 exec_hi, 0xffff\nbuffer_store_dwordx4 v[{b}:{b+3}], v1, s[4:7], s{so} offen offset:2048 {HSC[ps]}\ns_mov_b32 exec_hi, -1", [n0+2, n0+3]]]
            if together:
                ms = [o for o in ops if o[0] == "m"]
                ms[0][2] = ms[0][2] + ms[1][2]
            return ops

        class Fill:
            def __init__(s, ops, tag): s.ops, s.done, s.tag, s.now = ops, {}, tag, 0
            def left(s): return len(s.done) < len(s.ops)
            def take(s, kind):
                for i, (k, text, deps) in enumerate(s.ops):
                    if i in s.done or k != kind: continue
                    if all(d in s.done and s.done[d] < s.now for d in deps):
                        s.done[i] = s.now; A(text, s.tag if k == "m" else None); return True
                return False
            def drain(s, between=None):
                n = 0
                while s.left():
                    s.now += 1
                    if not (s.take("m") or s.take("t") or s.take("v")): raise SystemExit("stuck")
                    s.take("v")
                    n += 1
                    if between: between(n)

        def wait_for(n, vmtag=None):
            parts = []
            if vmtag is not None and vmtag in A.vm: parts.append(f"vmcnt({A.vm_count(vmtag)})")
            if ("af", n) in A.lg: parts.append(f"lgkmcnt({A.lg_count(('af', n))})")
            if parts: A("s_waitcnt " + " ".join(parts))

        def wneed(n):
            ps, kk, t, _ = frags[n]
            return ((0, 65536, 114688)[ps] + kk*(4096, 3072, 4096)[ps] + 1024*t) // 4096
        W = {"vis": wnext - 1, "at": {}}
        N1, N2 = 64, 112
        NFREE = N1 + 34

        def stream(lo, hi, vq, fill, events, extra=False, dense=False, agg=0):
            lastm = lo - 2
            for n in range(lo, hi):
                ps, kk, t, _ = frags[n]
                r = 96 + 4*(n % 8)
                for T in range(2):
                    a = acc(ps, t, T)
                    A(f"{MF} v[{a}:{a+3}], v[{r}:{r+3}], {xreg(2*kk+T)}, " + ("0" if kk == 0 else f"v[{a}:{a+3}]"))
                    if fill: fill.now += 1
                    if T == 0:
                        if vq and vq[0][0]: A(vq[0][0].pop(0))
                        if n + LOOK < NF: aread(n + LOOK)
                        if fill and n >= lo + 2:
                            fill.take("v")
                            if agg & 1: fill.take("v")
                    else:
                        if n + 1 < NF:
                            nps, nkk, nt_, _ = frags[n+1]
                            xt = ("xn", nkk) if (nps == 0 and nt_ == 0) else None
                            need = wneed(n + 1 + LOOK) if n + 1 + LOOK < NF else -1
                            if need > W["vis"] or n + 1 == NFREE:
                                tgt = max([need, W["vis"]] + [j for j, at in W["at"].items() if at <= n - WLAT])
                                assert tgt <= W["vis"] or tgt in W["at"], (L, n, tgt)
                                tags = [t_ for t_ in (xt, ("W", tgt) if tgt > W["vis"] else None) if t_ in A.vm]
                                wait_for(n + 1, min(tags, key=A.vm_count) if tags else None)
                                A("s_barrier"); W["vis"] = tgt
                                if n + 1 == NFREE:
                                    k = max([q + 1 for q, it in enumerate(vq) if isinstance(it[2], tuple) and it[2][0] == "W"] + [0])
                                    vq[k:k] = [witem(j) for j in range(40, 44)]
                            else: wait_for(n + 1, xt)
                            ev = events.get(n + 1)
                            if ev: ev(n + 1)
                        if fill and n >= lo + 2 and n - lastm >= 2 and fill.take("m"): lastm = n
                        elif vq and not vq[0][0] and n - lastm >= (1 if dense and len(vq) > (hi - n) // 2 else 2) and (not fill or not fill.left() or vq[0][2] != "late"):
                            it = vq.pop(0); put(it); lastm = n
                            if isinstance(it[2], tuple) and it[2][0] == "W": W["at"][it[2][1]] = n
                            if extra and fill: fill.take("t") or fill.take("v")
                        elif fill and n >= lo + 2:
                            if not fill.take("t"):
                                fill.take("v"); fill.take("v")
                            elif agg & 2: fill.take("v")
                            if agg & 4: fill.take("t")

        A.lg = []
        for n in range(LOOK): aread(n)
        wait_for(0, ("xn", 0))
        vq = list(xq[PRE:]) + [witem(j) for j in range(wnext, 40)]
        if L == 0: vq.insert(8, ([], "buffer_load_dword v197, v196, s[4:7], s2 offen sc1", "gw2"))
        stream(0, N1, vq, None, {})
        if "g2" not in sys.argv: TS()
        order = [(ks, nu) for ks in (0, 2, 4, 6, 8, 9, 10) for nu in range(4)] + [(ks, nu) for nu in range(4) for ks in (1, 3, 5, 7)]
        def hreg(i):
            if i < 11: return f"v[{192+4*i}:{195+4*i}]"
            if i < 15: return f"v[{160+4*(i-11)}:{163+4*(i-11)}]"
            if i < 16: return "v[96:99]"
            if i < 36: return f"a[{176+4*(i-16)}:{179+4*(i-16)}]"
            return f"v[{128+4*(i-36)}:{131+4*(i-36)}]"
        def hitem(i):
            ks, nu = order[i]; s = f"s{96+nu}"
            if ks < 8:
                return ([f"s_add_u32 {s}, {s}, s{83 + (ks >> 1)}"] if ks >= 2 else ([f"s_add_u32 {s}, {s}, s88"] if ks == 1 else []),
                        f"buffer_load_dwordx4 {hreg(i)}, v1, s[4:7], {s} offen offset:{(ks&1)*1024} {LH}", ("h", i))
            return ([f"s_sub_u32 {s}, {s}, s87"] if ks == 8 else [],
                    f"buffer_load_dwordx4 {hreg(i)}, v{24+ks-8}, s[4:7], {s} offen offset:2048 {LH}", ("h", i))
        w2q = []
        if L == 0:
            A(f"""s_lshl_b32 s49, s35, 2
                  s_add_u32 s49, s49, s37
                  s_mul_i32 s49, s49, 45056
                  s_add_u32 s49, s49, {W2F}
                  s_add_u32 s89, s49, 4096""")
            check("L_pW2", "gw2", "v197", "buffer_load_dword v197, v196, s[4:7], s2 offen sc1")
            for ks in (0, 2, 4, 6, 8, 9, 10, 1, 3, 5, 7):
                for m in range(4):
                    f = 4*ks + m
                    pre = [] if m else [f"s_add_u32 s48, s49, {4096*ks}"]
                    if m == 0 and ks < 8:
                        pre = [f"s_add_u32 s48, s42, {ks >> 1}", "s_and_b32 s48, s48, 3", "s_lshl_b32 s48, s48, 13", f"s_add_u32 s48, s48, s{49 if ks % 2 == 0 else 89}"]
                    w2q.append((pre,
                                f"buffer_load_dwordx4 a[{4*f}:{4*f+3}], v1, s[4:7], s48 offen offset:{m*1024} {LW}", "w2"))
        w2late = w2q[44 - W2LATE:]; w2q = w2q[:44 - W2LATE]
        vq += w2q
        fill = Fill(epi(0, 4), "hA")
        stream(N1, N2, vq, fill, {}, extra=(L == 0), agg=AGGA)
        fill.drain()
        if "g2" not in sys.argv: TS()
        k = max([q + 1 for q, it in enumerate(vq) if isinstance(it[2], tuple) and it[2][0] == "W"] + [0])
        vq[k:k] = [([], "buffer_load_dwordx2 v[246:247], v241, s[4:7], s77 offen sc1", "res"),
                   ([], "buffer_load_dwordx4 v[248:251], v1, s[4:7], s72 offen sc1", "res"),
                   ([], "buffer_load_dwordx4 v[252:255], v1, s[4:7], s72 offen offset:1024 sc1", "res")]
        def evA(n): A.wait_vm("hA"); cflag(4)
        def evP(n): vq.insert(0, cpoll_load("v239", 4))
        def evC(n):
            cpoll_check(f"L_pA{L}", "v239", 4)
            assert not any(it[2] == "res" for it in vq)
            cv = [k for k, o in enumerate(fill.ops) if o[1].startswith("v_cvt")]
            for z in range(8):
                b = len(fill.ops)
                fill.ops += [["v", f"v_lshlrev_b32 v{64+2*z}, 16, v{248+z}", cv], ["v", f"v_and_b32 v{65+2*z}, 0xffff0000, v{248+z}", cv],
                             ["v", f"v_fma_f32 v{64+2*z}, v{64+2*z}, v246, v247", [b]], ["v", f"v_fma_f32 v{65+2*z}, v{65+2*z}, v246, v247", [b+1]]]
            vq.extend(hitem(i) for i in range(NPRE))
        fill = Fill(epi(1, 3, True), "hR")
        ev = {N2 + EVA: evA, N2 + EVP: evP, N2 + EVC: evC}
        if EVR < 0: ev[NF + EVR] = lambda n: (A.wait_vm("hR"), cflag(8))
        stream(N2, NF, vq, fill, ev, extra=(L == 0), dense=(L == 0), agg=AGGR)
        fill.drain()
        while vq: put(vq.pop(0))
        TS()

        hq = [hitem(i) for i in range(NPRE, 44)]
        fill = Fill(epi(2, 4, True, True), "hB")
        def feed(n):
            if n >= EVL and (n - EVL) % LSTEP == 0 and hq[0][2][1] < 16: put(hq.pop(0))
            if n == EVR: A.wait_vm("hR"); cflag(8)
            if sum(1 for i, o in enumerate(fill.ops) if i not in fill.done and o[0] != "m") == 0 and "pollR" not in seen:
                seen.add("pollR"); put(cpoll_load("v239", 8))
        seen = set()
        fill.drain(feed)
        if "g2" not in sys.argv: TS()
        def acc2(nu, m): return (32, 48, 80, 64)[nu] + 4*m
        pendw = []
        early = [(s_, mm) for mm in range(4) for s_ in range(2)]
        A.wait_vm(("h", 0))
        for i, (ks, nu) in enumerate(order):
            if i in TSG: TS()
            for m in range(4):
                a = acc2(nu, m)
                c = "0" if (ks == 0 and nu < 3) else f"v[{a}:{a+3}]"
                f = 4*ks + m
                A(f"{MF} v[{a}:{a+3}], a[{4*f}:{4*f+3}], {hreg(i)}, {c}")
                if m == 0 and hq:
                    nxt = hq[0][2][1]
                    if nxt == 16 and i == GR:
                        if "g2" in sys.argv and not TSG: TS()
                        cpoll_check(f"L_pR{L}", "v239", 8)
                        if "g2" in sys.argv and not TSG: TS()
                        for _ in range(BURSTR): put(hq.pop(0))
                    if nxt == 28 and i == GB:
                        if "g2" in sys.argv and not TSG: TS()
                        cpoll_check(f"L_pB{L}", "v239", 12)
                        if "g2" in sys.argv and not TSG: TS()
                        for _ in range(BURST): put(hq.pop(0))
                    if not ((nxt == 16 and i < GR) or (nxt == 28 and i < GB)): put(hq.pop(0))
                    elif nxt == 16 and w2late: put(w2late.pop(0))
                if m == 2 and hq and hq[0][2][1] == 16 and w2late and i < GR: put(w2late.pop(0))
                if m == 1 and hq:
                    for p in hq[0][0]: A(p)
                    hq[0][0].clear()
                if m == 2 and hq and hq[0][2][1] == POLLB and i >= GPB and "pollB" not in seen:
                    seen.add("pollB"); put(cpoll_load("v239", 12))
                if i == 40 and m == 0:
                    A("s_waitcnt lgkmcnt(0)\ns_barrier"); A.lg = []
                if i in (40, 41) and m != 1 and early:
                    for _ in range(2 if m == 2 else 1):
                        s_, mm = early.pop(0); r = 100 + 16*s_ + 4*mm
                        A(f"ds_read_b128 v[{r}:{r+3}], v15 offset:{4096*s_+1024*mm}", ("rd", s_, mm))
                if i in (42, 43):
                    k = 4*(i - 42) + m
                    if k % 2 == 0: A.wait_lg(("rd", 1, k // 2))
                    for z in (2*k, 2*k+1): A(f"v_add_f32 v{100+z}, v{100+z}, v{116+z}")
                if pendw and m == (3 if ks == 1 else 1): A(pendw.pop(0))
                if m == 3 and i + 1 < len(order):
                    if i + 1 == GF_B: A.wait_vm("hB"); cflag(12)
                    A.wait_vm(("h", i + 1))
            if ks == 7 and nu < 3:
                pendw = [f"ds_write_b128 v{12+nu}, v[{acc2(nu, m)}:{acc2(nu, m)+3}] offset:{1024*m}" for m in range(4)]
        assert not pendw and not hq and not w2late
        TS()
        A("""s_waitcnt lgkmcnt(0)
             s_barrier""")
        A.lg = []
        for m in range(4):
            A(f"ds_read_b128 v[{116+4*m}:{119+4*m}], v15 offset:{8192+1024*m}", ("rd", m))
        for z in range(8):
            A(f"v_pk_add_f32 v[{64+2*z}:{65+2*z}], v[{64+2*z}:{65+2*z}], v[{100+2*z}:{101+2*z}]")
        for m in range(4):
            A.wait_lg(("rd", m))
            for z in (2*m, 2*m+1):
                A(f"v_pk_add_f32 v[{64+2*z}:{65+2*z}], v[{64+2*z}:{65+2*z}], v[{116+2*z}:{117+2*z}]")
        TSflush()

    layer(0)
    cur[0] = 1
    TS(0)
    tile_stats()
    A(f"""s_add_u32 s66, s66, {32*8192}
          s_lshl_b32 s83, s35, 10
          s_add_u32 s83, s83, s66
          s_mov_b64 exec, s[56:57]
          buffer_store_dwordx2 v[48:49], v245, s[4:7], s83 offen
          s_mov_b64 exec, s[58:59]
          buffer_store_dwordx2 v[48:49], v245, s[4:7], s83 offen sc1
          s_mov_b64 exec, -1
          s_add_u32 s92, s66, 4096""")
    for z in range(8):
        A(f"v_cvt_pk_bf16_f32 v{80+z}, v{64+2*z}, v{65+2*z}")
    seq_consts()
    TS(1)
    vpoll("L_pS1", """buffer_load_dwordx4 v[52:55], v5, s[4:7], s66 offen sc1
                      buffer_load_dwordx4 v[56:59], v5, s[4:7], s92 offen sc1""", [53, 55, 57, 59])
    TS(2)
    A(f"""s_add_u32 s67, s67, {2*MB}
          s_add_u32 s83, s72, {X2 - XN}""")
    seq_pass1(lambda: A("""buffer_store_dwordx4 v[80:83], v1, s[4:7], s83 offen sc1
                           buffer_store_dwordx4 v[84:87], v1, s[4:7], s83 offen offset:1024 sc1"""))
    A(f"""s_add_u32 s68, s68, 16384
          s_add_u32 s69, s69, 16384
          s_add_u32 s70, s70, {2*MB}
          s_add_u32 s72, s72, {2*MB}
          s_add_u32 s77, s77, 131072
          s_add_u32 s0, s0, 131072
          s_add_u32 s73, s73, {2*MB}
          s_add_u32 s74, s74, 64
          s_add_u32 s75, s75, {2*MB}
          s_add_u32 s76, s76, 64
          s_add_u32 s78, s78, {HL}
          s_add_u32 s79, s79, {HL}
          s_add_u32 s8, s52, {X2}
          s_addc_u32 s9, s53, 0
          s_lshl_b32 s82, s37, 5
          s_add_u32 s71, s81, s82
          s_add_u32 s80, s71, 16
          v_lshlrev_b32 v23, 4, v23""")
    A.vm0()
    gflag("s68")
    TS(3)
    TSflush()
    layer(1)

    for z in range(8):
        A(f"v_cvt_pk_bf16_f32 v{80+z}, v{64+2*z}, v{65+2*z}")
        if z == 3: A("buffer_store_dwordx4 v[80:83], v4, s[12:15], 0 offen sc1")
    A("buffer_store_dwordx4 v[84:87], v4, s[12:15], 0 offen offset:64 sc1")
    if ts:
        cur[0] = 2
        TS(0); TSflush()
        A(f"""s_lshl_b32 s82, s40, 2
              s_add_u32 s82, s82, s37
              s_lshl_b32 s82, s82, 8
              s_add_u32 s82, s82, {TSO}
              v_lshlrev_b32 v36, 2, v0
              buffer_store_dword v190, v36, s[4:7], s82 offen""")
    A("""s_or_b32 s82, s40, s37
         s_cmp_lg_u32 s82, 0
         s_cbranch_scc1 L_exit""")
    gflag("0")
    A("""L_exit:
         s_endpgm""")
    for t in tails: A(t)
    A("""L_end:
         s_endpgm""")
    assert nts[0] <= 20
    return A


HEAD = open("cdna_kernels/%s.s.ref" % NAME).read().split("; Override launch geometry")[0]

def emit(**kw):
    body = pad(gen(**kw).lines)
    k = NAME + "_kernel"
    out = [HEAD.rstrip("\n"), f"; @launch grid=(256,1,1) block=(256,1,1) lds={LDS_BYTES}",
           '.amdgcn_target "amdgcn-amd-amdhsa--gfx950"', ".text", f".globl {k}", ".p2align 8", f".type {k},@function", f"{k}:"]
    out += body
    out += ['.section .rodata,"a"', ".p2align 6", f".amdhsa_kernel {k}", "  .amdhsa_next_free_vgpr 512", "  .amdhsa_next_free_sgpr 102",
            "  .amdhsa_accum_offset 256", "  .amdhsa_group_segment_fixed_size 0", "  .amdhsa_kernarg_size 96", "  .amdhsa_user_sgpr_count 2",
            "  .amdhsa_user_sgpr_kernarg_segment_ptr 1", "  .amdhsa_system_sgpr_workgroup_id_x 1", "  .amdhsa_float_denorm_mode_32 3", ".end_amdhsa_kernel"]
    return "\n".join(out) + "\n"

if __name__ == "__main__":
    sys.stdout.write(emit(ts="ts" in sys.argv, slow="slow" in sys.argv))
```

```python
import os, sys, struct
from asmlib import Asm, pad

NAME = "interleave_layers__spectral_fnet__swiglu_ffn__prompt"
MB = 1 << 20
GF, CF, CX, TSO = 0x1F00000, 0x10000, 0x18000, 0xA0000
ST, STQ = 0x20000, 0xC0000
Y, XN, X1, X2, W1F, W2F, H = 0x100000, 0x500000, 0x900000, 0xD00000, 0xF00000, 0x1200000, 0x1400000
HL = 0x580000
PR = X1
YB, ZB, RB, IB, LDS_BYTES = 81664, 147200, 98304, 147456, 163840
SPIN, NFAST = 400000, 48
LW, LY, LX, LH = [os.environ.get(k, 'sc1').replace('none', '').replace('+', ' ') for k in ('LW', 'LY', 'LX', 'LH')]
def P(name, default): return int(os.environ.get(name, default))
NC1, NC1B, NSIDE1 = P('NC1', 10), P('NC1B', 0), P('NSIDE1', 13)
GFS, GSLEEP, GDELAY = P('GFS', 3), P('GSLEEP', 0), P('GDELAY', 0)
EARLY = P('EARLY', 0)
OUTF = os.environ.get('OUTF', 'sc1').replace('none', '').replace('+', ' ')
WARM, NEWX = P('WARM', 0), P('NEWX', 1)
ROTW, ROTH = P('ROTW', 0), P('ROTH', 0)
WLAT, NSIDE0, W1EARLY, W2LATE = P('WLAT', 22), P('NSIDE0', 17), P('W1EARLY', 2), P('W2LATE', 8)
LOG2E = 1.4426950408889634
TSG = [int(x) for x in os.environ.get('TSG', '').split('_') if x]
HSC = ['' if c == 'p' else 'sc1' for c in os.environ.get('HPLAIN', 'sss')]
CLK = 's_memtime' if 'cyc' in sys.argv else 's_memrealtime'
MF = "v_mfma_f32_16x16x32_bf16"


def f2u(x):
    return "0x%08x" % struct.unpack("<I", struct.pack("<f", x))[0]


def gen(ts=False, slow=False):
    A = Asm()
    nts, pend = [0], []

    cur = [0]
    def TSflush():
        if not ts or not pend: return
        A("s_waitcnt lgkmcnt(0)"); A.lg = []
        for n, k in enumerate(pend): A(f"v_writelane_b32 v190, s{TSR[n]}, {k}")
        pend.clear()

    TSR = (16, 18, 20, 22, 100, 94)
    def TS(k=None):
        if not ts: return
        if k is None:
            k = nts[0]; nts[0] += 1
        A(f"{CLK} s[{TSR[len(pend)]}:{TSR[len(pend)]+1}]")
        pend.append(20*cur[0] + k)

    def vpoll(label, load, regs, mask=None, dual=None, late=None, sleep=0):
        TSflush()
        if mask: A(f"s_mov_b64 exec, {mask}")
        A("s_mov_b32 s82, 0")
        if dual:
            for dst, fast, delta in dual: A(f"s_mov_b32 {dst}, {fast}")
        A(f"{label}:")
        A(load)
        A("s_waitcnt vmcnt(0)")
        A(f"v_cmp_eq_u32 vcc, s28, v{regs[0]}")
        for k, r in enumerate(regs[1:]):
            A(f"v_cmp_eq_u32 s[{84+2*k}:{85+2*k}], s28, v{r}")
        for k, r in enumerate(regs[1:]):
            A(f"s_and_b64 vcc, vcc, s[{84+2*k}:{85+2*k}]")
        A(f"""s_cmp_eq_u64 vcc, exec
              s_cbranch_scc1 {label}_ok
              s_add_u32 s82, s82, 1""")
        if sleep: A(f"s_sleep {sleep}")
        if late:
            A(f"""s_cmp_lg_u32 s82, {NFAST - 1}
                  s_cbranch_scc1 {label}_nl
                  {late}
                  {label}_nl:""")
        if dual:
            A(f"""s_cmp_ge_u32 s82, {NFAST}
                  s_cselect_b32 s84, s82, 0
                  s_and_b32 s84, s84, 1""")
            for dst, fast, delta in dual:
                A(f"""s_mul_i32 s85, s84, {delta}
                      s_add_u32 {dst}, {fast}, s85""")
        A(f"""s_cmp_lt_u32 s82, {SPIN}
              s_cbranch_scc1 {label}
              {label}_ok:""")
        if late: A(late)
        if mask: A("s_mov_b64 exec, -1")
        A.vm = []

    tails = []
    def cpoll_load(vaddr, off):
        return ([], f"buffer_load_dword v240, {vaddr}, s[4:7], s76 offen offset:{off} sc1", "poll")

    def check(label, tag, reg, load):
        A.wait_vm(tag)
        A(f"""v_cmp_ne_u32 vcc, s28, {reg}
              s_cbranch_vccnz {label}_re
              {label}_ok:""")
        tails.append(f"""{label}_re:
              s_mov_b32 s82, 0
              {label}_lp:
              {load}
              s_add_u32 s82, s82, 1
              s_cmp_gt_u32 s82, {SPIN}
              s_cbranch_scc1 {label}_ok
              s_waitcnt vmcnt(0)
              v_cmp_ne_u32 vcc, s28, {reg}
              s_cbranch_vccnz {label}_lp
              s_branch {label}_ok""")

    def cpoll_check(label, vaddr, off):
        check(label, "poll", "v240", cpoll_load(vaddr, off)[1])

    def witem(j, base="s47"):
        lds, va = (4096*j, "v242") if j < 40 else (81920 + 4096*(j - 40), "v243")
        return ([f"s_add_u32 m0, {base}, {lds}"], f"buffer_load_dwordx4 {va}, s[4:7], m0 offen {LW} lds", ("W", j))

    def wgroup(lo, hi, ra, rb):
        n = hi - lo; h = n // 2
        if not ROTW: return [witem(j) for j in range(lo, hi)]
        A(f"""s_and_b32 s82, s32, 1
              s_mul_i32 {ra}, s82, {4096*h}
              s_add_u32 {ra}, {ra}, s47
              s_mul_i32 {rb}, s82, {4096*(n - h)}
              s_sub_u32 {rb}, s47, {rb}""")
        return [witem(j, ra if j - lo + h < n else rb) for j in range(lo, hi)]

    def warm(nh):
        A(f"""v_lshlrev_b32 v43, 8, v0
              v_add_u32 v43, s73, v43
              v_mov_b32 v44, s0
              v_cmp_eq_u32 vcc, 16, v0
              v_subrev_u32 v45, 17, v0
              v_cndmask_b32 v43, v43, v44, vcc
              v_cmp_lt_u32 vcc, 21, v45
              v_lshlrev_b32 v45, 7, v45
              v_add_u32 v45, s78, v45
              v_add_u32 v44, {45056 - 22*128}, v45
              v_cndmask_b32 v45, v45, v44, vcc
              v_cmp_lt_u32 vcc, 16, v0
              s_mov_b32 exec_hi, {(1 << max(17 + nh - 32, 0)) - 1}
              v_cndmask_b32 v43, v43, v45, vcc
              s_mov_b32 exec_lo, {(1 << min(17 + nh, 32)) - 1}
              buffer_load_dword v46, v43, s[4:7], 0 offen sc1
              s_mov_b64 exec, -1""")

    def cflag(off):
        A("s_mov_b64 exec, s[60:61]")
        A(f"buffer_store_dword v30, off, s[4:7], s74 offset:{off}")
        A("s_mov_b64 exec, s[62:63]")
        A(f"buffer_store_dword v30, off, s[4:7], s74 offset:{off} sc1", "cond")
        A("s_mov_b64 exec, -1")

    def gflag(soff):
        A(f"""s_mov_b64 exec, 1
              buffer_store_dword v30, off, s[4:7], {soff} sc1
              s_mov_b64 exec, -1""")

    def put(item):
        if item is None: return
        for p in item[0]: A(p)
        A(item[1], item[2])

    def qreduce(a, b):
        A(f"""v_permlane32_swap_b32 v{a}, v{b}
              v_add_f32 v{a}, v{a}, v{b}
              v_mov_b32 v{b}, v{a}
              v_permlane16_swap_b32 v{a}, v{b}
              v_add_f32 v{a}, v{a}, v{b}""")

    def finish_stats(s, ss, r, scale=None):
        out = [f"v_mul_f32 v{s}, s64, v{s}", f"v_mul_f32 v{r+1}, v{s}, v{s}", f"v_fma_f32 v{ss}, v{ss}, s64, -v{r+1}",
               f"v_max_f32 v{ss}, 0, v{ss}", f"v_add_f32 v{ss}, {f2u(1e-5)}, v{ss}", f"v_rsq_f32 v{r}, v{ss}"]
        if scale: out.append(f"v_mul_f32 v{r}, {f2u(scale)}, v{r}")
        out.append(f"v_mul_f32 v{r+1}, v{s}, v{r}")
        return out

    def normalize(x, r):
        return f"v_pk_fma_f32 v[{x}:{x+1}], v[{x}:{x+1}], v[{r}:{r+1}], v[{r}:{r+1}] op_sel:[0,0,1] op_sel_hi:[1,0,1] neg_lo:[0,0,1] neg_hi:[0,0,1]"

    XLOAD = """buffer_load_dwordx4 v[128:131], v4, s[8:11], 0 offen
               buffer_load_dwordx4 v[132:135], v4, s[8:11], 0 offen offset:64"""
    if ts: A(f"{CLK} s[100:101]")
    A(f"""s_cmp_ge_u32 s2, 256
          s_cbranch_scc1 L_end
          s_load_dwordx2 s[30:31], s[0:1], 0
          s_load_dwordx4 s[44:47], s[0:1], 48
          s_load_dwordx4 s[48:51], s[0:1], 64
          s_load_dwordx2 s[52:53], s[0:1], 88
          s_getpc_b64 s[84:85]
          L_pc:
          v_lshlrev_b32 v1, 7, v0
          v_add_u32 v2, 32768, v1
          v_cmp_gt_u32 vcc, L_end-L_pc, v2
          v_min_u32 v1, L_end-L_pc, v1
          v_min_u32 v2, L_end-L_pc, v2
          global_load_dword v169, v1, s[84:85]
          s_and_saveexec_b64 s[86:87], vcc
          s_cbranch_execz L_pf2
          global_load_dword v169, v2, s[84:85]
          L_pf2:
          s_mov_b64 exec, -1
          s_and_b32 s82, s2, 7
          s_lshr_b32 s83, s2, 3
          s_and_b32 s33, s83, 15
          s_lshr_b32 s83, s83, 4
          s_lshl_b32 s32, s82, 1
          s_add_u32 s32, s32, s83
          s_lshr_b32 s34, s33, 3
          s_and_b32 s35, s33, 7
          s_lshl_b32 s40, s32, 4
          s_add_u32 s40, s40, s33
          s_sub_u32 s82, 32, s32
          s_cmp_eq_u32 s32, 0
          s_cselect_b32 s82, 16, s82
          s_cmp_eq_u32 s34, 0
          s_cselect_b32 s36, s32, s82
          v_lshrrev_b32 v5, 6, v0
          v_and_b32 v0, 63, v0
          v_readfirstlane_b32 s37, v5
          v_and_b32 v2, 15, v0
          v_lshrrev_b32 v3, 4, v0
          v_lshlrev_b32 v1, 4, v0
          s_lshr_b32 s82, s37, 1
          s_lshl_b32 s82, s82, 5
          s_add_u32 s82, s82, s36
          s_and_b32 s83, s37, 1
          s_lshl_b32 s83, s83, 10
          s_add_u32 s82, s82, s83
          s_lshl_b32 s82, s82, 10
          s_lshl_b32 s83, s35, 7
          s_add_u32 s82, s82, s83
          v_lshlrev_b32 v4, 16, v2
          v_lshl_add_u32 v4, v3, 4, v4
          v_add_u32 v4, s82, v4
          s_mov_b32 s10, {2*MB}
          s_mov_b32 s11, 0x20000
          s_waitcnt lgkmcnt(0)
          s_load_dword s42, s[52:53], 0
          s_mov_b32 s8, s30
          s_mov_b32 s9, s31
          {XLOAD}
          s_mov_b32 s4, s52
          s_mov_b32 s5, s53
          s_mov_b32 s6, {256*MB}
          s_mov_b32 s7, 0x20000
          s_mov_b32 s12, s44
          s_mov_b32 s13, s45
          s_mov_b32 s14, {512*2752}
          s_mov_b32 s15, 0x20000
          s_mov_b32 s96, s46
          s_mov_b32 s97, s47
          s_mov_b32 s98, {512*2752}
          s_mov_b32 s99, 0x20000
          s_mov_b32 s24, s48
          s_mov_b32 s25, s49
          s_mov_b32 s26, {1376*1024}
          s_mov_b32 s27, 0x20000""")
    def w1addr():
        A(f"""s_lshl_b32 s82, s32, 5
          s_lshl_b32 s83, s37, 3
          s_add_u32 s82, s82, s83
          v_add_u32 v170, s82, v3
          v_mul_u32_u24 v170, 2752, v170
          s_mul_i32 s83, s33, 11
          v_add_u32 v171, s83, v2
          v_lshl_add_u32 v174, v171, 4, v170
          v_cmp_gt_u32 vcc, 172, v171
          v_cmp_gt_u32 s[84:85], 11, v2
          v_mov_b32 v172, 0x7f000000
          s_and_b64 vcc, vcc, s[84:85]
          v_cndmask_b32 v174, v172, v174, vcc
          v_add_u32 v175, {4*2752}, v174""")
    def w2addr():
        A("""v_lshrrev_b32 v41, 3, v0
             v_and_b32 v42, 1, v41
             v_lshl_add_u32 v40, v3, 3, v42
             v_and_b32 v42, 7, v0
             v_lshlrev_b32 v42, 4, v42
             v_lshl_add_u32 v40, v40, 10, v42
             v_lshl_add_u32 v41, v41, 10, v42
             s_add_u32 s2, s40, 256""")
        for G, dst in (("s40", 46), ("s2", 47)):
            A(f"""s_mul_i32 s82, {G}, 5958
                  s_lshr_b32 s82, s82, 16
                  s_mul_i32 s83, s82, 11
                  s_sub_u32 s83, {G}, s83
                  s_lshr_b32 s84, s82, 2
                  s_and_b32 s82, s82, 3
                  s_mul_i32 s82, s82, 352
                  s_lshl_b32 s84, s84, 7
                  s_lshr_b32 s85, s83, 1
                  s_mul_i32 s85, s85, 88
                  s_and_b32 s86, s83, 1
                  s_lshl_b32 s86, s86, 5
                  s_add_u32 s85, s85, s86
                  s_lshl_b32 s86, s37, 1
                  s_add_u32 s85, s85, s86
                  s_lshl_b32 s86, s83, 2
                  s_add_u32 s86, s86, s37
                  s_sub_u32 s86, s86, 32
                  s_mul_i32 s87, s86, 43
                  s_lshr_b32 s87, s87, 7
                  s_mul_i32 s87, s87, 64
                  s_lshl_b32 s86, s86, 3
                  s_add_u32 s86, s86, s87
                  s_add_u32 s86, s86, 64
                  s_cmp_ge_u32 s83, 8
                  s_cselect_b32 s85, s86, s85
                  s_cselect_b64 vcc, -1, 0
                  s_add_u32 s82, s82, s85
                  s_lshl_b32 s82, s82, 10
                  s_add_u32 s82, s82, s84
                  v_cndmask_b32 v{dst}, v40, v41, vcc
                  v_add_u32 v{dst}, s82, v{dst}""")
    A(f"""s_lshl_b32 s82, s36, 13
          s_lshl_b32 s83, s37, 8
          s_add_u32 s82, s82, s83
          s_add_u32 s66, s82, {ST}
          s_lshl_b32 s82, s37, 19
          s_lshl_b32 s83, s36, 11
          s_add_u32 s82, s82, s83
          s_lshl_b32 s83, s35, 8
          s_add_u32 s82, s82, s83
          s_add_u32 s67, s82, {Y}
          s_lshl_b32 s82, s37, 15
          s_lshr_b32 s83, s35, 1
          s_lshl_b32 s83, s83, 13
          s_add_u32 s82, s82, s83
          s_lshl_b32 s83, s36, 1
          s_and_b32 s84, s35, 1
          s_add_u32 s83, s83, s84
          s_lshr_b32 s84, s83, {GFS}
          s_lshl_b32 s84, s84, 7
          s_add_u32 s82, s82, s84
          s_and_b32 s83, s83, {(1 << GFS) - 1}
          s_lshl_b32 s83, s83, 2
          s_add_u32 s82, s82, s83
          s_add_u32 s68, s82, {GF}
          s_lshl_b32 s82, s40, 7
          s_lshl_b32 s83, s37, 4
          s_add_u32 s82, s82, s83
          s_add_u32 s74, s82, {CF}
          s_lshl_b32 s82, s35, 10
          s_add_u32 s82, s82, s66
          v_and_b32 v5, 1, v0
          v_lshlrev_b32 v5, 7, v5
          v_and_b32 v6, 2, v0
          v_lshl_add_u32 v5, v6, 17, v5
          v_add_u32 v5, s82, v5
          v_mov_b32 v6, s74
          v_cmp_gt_u32 vcc, 4, v0
          s_mov_b32 s64, {f2u(1/512)}
          v_cndmask_b32 v5, v6, v5, vcc
          s_mov_b64 exec, 31
          buffer_load_dword v168, v5, s[4:7], 0 offen sc1
          s_mov_b64 exec, -1""")
    w1addr()
    A(f"""buffer_load_dwordx4 v[144:147], v174, s[12:15], 0 offen
          buffer_load_dwordx4 v[148:151], v174, s[96:99], 0 offen
          buffer_load_dwordx4 v[152:155], v175, s[12:15], 0 offen
          buffer_load_dwordx4 v[156:159], v175, s[96:99], 0 offen
          v_lshrrev_b32 v37, 5, v0
          v_lshlrev_b32 v245, 4, v2
          v_lshl_add_u32 v245, v37, 3, v245
          v_lshlrev_b32 v5, 4, v2
          v_lshl_add_u32 v5, v3, 10, v5
          s_mul_i32 s82, s37, {16*160}
          s_add_u32 s82, s82, {IB}
          v_mul_u32_u24 v6, 160, v2
          v_lshl_add_u32 v6, v3, 3, v6
          v_add_u32 v6, s82, v6
          v_lshrrev_b32 v32, 2, v2
          v_lshl_add_u32 v33, v3, 2, v32
          v_and_b32 v34, 3, v2
          v_mul_u32_u24 v7, 160, v33
          v_lshl_add_u32 v7, v34, 3, v7
          v_add_u32 v7, {IB}, v7
          v_lshrrev_b32 v8, 1, v2
          v_lshlrev_b32 v8, 16, v8
          v_and_b32 v35, 1, v2
          v_lshl_add_u32 v8, v35, 4, v8
          v_lshl_add_u32 v8, v3, 5, v8""")
    A(f"""s_getreg_b32 s3, hwreg(HW_REG_XCC_ID, 0, 4)
          s_waitcnt lgkmcnt(0)
          s_mul_i32 s28, s42, 0x9E3779B1
          s_add_u32 s28, s28, 0x7F4A7C15
          s_mov_b32 s29, s28
          s_add_u32 s3, s3, s28
          v_mov_b32 v30, s28
          v_mov_b32 v236, s3
          s_lshl_b32 s82, s40, 7
          s_add_u32 s38, s82, {CX}""")
    if ts:
        A("v_mov_b32 v190, 0\nv_writelane_b32 v190, s100, 62")

    def late_setup():
        A(f"""s_lshr_b32 s82, s33, 2
          s_and_b32 s82, s82, 1
          s_lshl_b32 s82, s82, 5
          s_add_u32 s43, s36, s82
          s_sub_u32 s82, 64, s43
          s_cmp_le_u32 s43, 31
          s_cselect_b32 s41, s43, s82
          s_and_b32 s41, s41, 31
          s_and_b32 s82, s33, 3
          s_lshl_b32 s82, s82, 9
          s_add_u32 s55, s43, s82
          s_lshr_b32 s82, s41, 3
          s_lshl_b32 s82, s82, 15
          s_lshl_b32 s83, s37, 13
          s_add_u32 s82, s82, s83
          s_add_u32 s69, s82, {GF}
          s_lshl_b32 s82, s41, 16
          s_lshl_b32 s83, s37, 9
          s_add_u32 s82, s82, s83
          s_add_u32 s70, s82, {Y}
          s_lshl_b32 s82, s37, 7
          s_add_u32 s82, s82, s55
          s_lshl_b32 s71, s82, 10
          s_add_u32 s80, s71, 65536
          s_lshl_b32 s82, s32, 3
          s_lshl_b32 s83, s34, 2
          s_add_u32 s82, s82, s83
          s_add_u32 s82, s82, s37
          s_lshl_b32 s82, s82, 14
          s_lshl_b32 s83, s35, 11
          s_add_u32 s82, s82, s83
          s_add_u32 s72, s82, {XN}
          s_lshl_b32 s82, s32, 13
          s_lshl_b32 s83, s34, 12
          s_add_u32 s82, s82, s83
          s_lshl_b32 s83, s37, 10
          s_add_u32 s82, s82, s83
          s_add_u32 s77, s82, {PR}
          s_lshl_b32 s82, s40, 9
          s_lshl_b32 s83, s37, 7
          s_add_u32 s82, s82, s83
          s_add_u32 s0, s82, {PR}
          s_lshr_b32 s82, s40, 1
          s_lshl_b32 s82, s82, 14
          s_and_b32 s83, s33, 1
          s_lshl_b32 s83, s83, 7
          s_add_u32 s81, s82, s83
          s_lshl_b32 s83, s37, 12
          s_add_u32 s82, s81, s83
          s_add_u32 s73, s82, {XN}
          s_lshl_b32 s82, s32, 11
          s_lshl_b32 s83, s37, 9
          s_add_u32 s82, s82, s83
          s_add_u32 s76, s82, {CF}
          s_lshl_b32 s82, s32, 17
          s_lshl_b32 s83, s37, 15
          s_add_u32 s82, s82, s83
          s_add_u32 s75, s82, {XN}
          s_mul_i32 s82, s32, {8*45056}
          s_add_u32 s82, s82, {H}
          s_mul_i32 s83, s37, {2*45056}
          s_add_u32 s78, s82, s83
          s_mul_i32 s83, s33, 2816
          s_add_u32 s78, s78, s83
          s_mul_i32 s83, s34, {4*45056}
          s_add_u32 s82, s82, s83
          s_mul_i32 s83, s37, {4*2816}
          s_add_u32 s79, s82, s83
          s_mov_b32 s65, {f2u(LOG2E*LOG2E)}
          s_mov_b32 s30, s65
          s_mov_b32 s31, s65
          v_lshrrev_b32 v32, 2, v2
          v_lshl_add_u32 v33, v3, 2, v32
          v_and_b32 v34, 3, v2
          v_and_b32 v35, 1, v2
          v_lshrrev_b32 v36, 3, v0
          v_and_b32 v37, 7, v0
          v_lshrrev_b32 v9, {GFS}, v0
          v_and_b32 v38, {(1 << GFS) - 1}, v0
          v_lshlrev_b32 v9, 7, v9
          v_lshl_add_u32 v9, v38, 2, v9
          v_add_u32 v10, 65536, v1
          v_add_u32 v11, 114688, v1""")
        for nu in range(3):
            A(f"""s_add_u32 s82, s37, {1+nu}
              s_and_b32 s82, s82, 3
              s_mul_i32 s82, s82, 12288
              s_add_u32 s82, s82, {RB + 4096*nu}
              v_add_u32 v{12+nu}, s82, v1""")
        A(f"""s_mul_i32 s82, s37, 12288
          s_add_u32 s82, s82, {RB}
          v_add_u32 v15, s82, v1
          v_and_b32 v38, 1, v3
          v_lshlrev_b32 v16, 2, v38
          v_xor_b32 v16, v16, v37
          v_lshlrev_b32 v16, 4, v16
          v_lshl_add_u32 v16, v36, 11, v16
          s_lshl_b32 s82, s37, 14
          s_add_u32 s82, s82, {YB}
          v_lshrrev_b32 v18, 1, v33
          v_lshlrev_b32 v18, 7, v18
          v_lshl_add_u32 v18, v38, 6, v18
          v_and_b32 v38, 1, v33
          v_lshl_add_u32 v18, v38, 4, v18
          v_lshrrev_b32 v38, 1, v34
          v_lshl_add_u32 v18, v38, 5, v18
          v_lshl_add_u32 v18, v35, 3, v18
          v_add_u32 v18, s82, v18
          v_xor_b32 v17, 64, v18
          v_mul_u32_u24 v19, 1032, v2
          v_lshl_add_u32 v19, v3, 3, v19
          s_lshl_b32 s82, s37, 8
          s_and_b32 s83, s37, 1
          s_lshl_b32 s83, s83, 5
          s_add_u32 s82, s82, {ZB}
          s_add_u32 s84, s82, s83
          s_xor_b32 s83, s83, 32
          s_add_u32 s85, s82, s83
          v_add_u32 v20, s85, v19
          v_add_u32 v19, s84, v19
          v_and_b32 v38, 1, v3
          v_lshlrev_b32 v21, 6, v33
          v_lshl_add_u32 v21, v38, 5, v21
          v_lshl_add_u32 v21, v34, 3, v21
          s_mul_i32 s82, s37, 4128
          s_add_u32 s82, s82, {ZB}
          v_xor_b32 v22, 32, v21
          v_add_u32 v21, s82, v21
          v_add_u32 v22, s82, v22
          v_lshrrev_b32 v39, 1, v3
          v_lshl_add_u32 v39, v2, 1, v39
          v_lshl_add_u32 v23, v38, 5, v39
          v_lshlrev_b32 v23, 4, v23
          v_and_b32 v27, 1, v32
          v_xor_b32 v27, v27, v39
          v_lshlrev_b32 v27, 4, v27
          v_lshl_add_u32 v27, v38, 3, v27
          v_add_u32 v27, s82, v27
          v_lshrrev_b32 v28, 1, v37
          v_mul_u32_u24 v28, 4128, v28
          v_and_b32 v38, 1, v37
          v_lshl_add_u32 v28, v38, 10, v28
          v_lshl_add_u32 v28, v36, 4, v28
          s_lshl_b32 s82, s37, 8
          s_add_u32 s82, s82, {ZB}
          v_add_u32 v28, s82, v28
          v_xor_b32 v31, 16, v28
          v_lshlrev_b32 v29, 8, v36
          v_lshl_add_u32 v29, v37, 4, v29
          v_lshlrev_b32 v238, 7, v3
          v_lshl_add_u32 v239, v35, 4, v238
          s_lshl_b32 s82, s34, 5
          v_add_u32 v239, s82, v239
          v_lshl_add_u32 v238, v34, 4, v238
          v_lshrrev_b32 v241, 1, v2
          v_lshlrev_b32 v241, 7, v241
          v_lshl_add_u32 v241, v35, 3, v241
          v_add_u32 v242, s54, v1
          v_add_u32 v243, 81920, v242
          s_lshl_b32 s47, s37, 10""")
        for k in range(3):
            A(f"""v_add_u32 v36, {4*k}, v3
              v_mul_u32_u24 v37, 43, v36
              v_lshrrev_b32 v37, 7, v37
              v_mul_u32_u24 v38, 3, v37
              v_sub_u32 v36, v36, v38
              v_mul_u32_u24 v37, 2816, v37
              v_lshl_add_u32 v37, v36, 8, v37
              v_lshl_add_u32 v{24+k}, v2, 4, v37""")

    def seq_consts():
        A(f"""s_lshl_b32 s82, s37, 4
              v_add_u32 v60, s82, v2
              v_lshrrev_b32 v61, 1, v60
              v_cmp_eq_u32 vcc, 1, v60
              v_and_b32 v62, 1, v60
              v_cvt_f32_u32 v63, v3
              v_cndmask_b32 v61, v61, 32, vcc
              v_cndmask_b32 v62, v62, 0, vcc
              v_and_b32 v60, 1, v61
              v_cvt_f32_u32 v61, v61
              v_cvt_f32_u32 v62, v62
              v_mul_f32 v61, {f2u(1/64)}, v61
              v_mul_f32 v62, {f2u(0.25)}, v62
              v_mul_f32 v63, {f2u(8.0)}, v63
              v_fma_f32 v62, v61, v63, v62
              v_mul_u32_u24 v60, 0x8000, v60
              v_lshl_or_b32 v60, v60, 16, v60""")
        for ks in range(2):
            for pr in range(2):
                for b in range(2):
                    A(f"""v_fmamk_f32 v{136+b}, v61, {f2u(float(ks + 2*(2*pr+b)))}, v62
                          v_cos_f32 v{136+b}, v{136+b}""")
                A(f"""v_cvt_pk_bf16_f32 v{88+4*ks+pr}, v136, v137
                      v_xor_b32 v{90+4*ks+pr}, v60, v{88+4*ks+pr}""")

    def tile_stats():
        A("""v_pk_add_f32 v[60:61], v[64:65], v[66:67]
             v_pk_mul_f32 v[62:63], v[64:65], v[64:65]
             v_pk_fma_f32 v[62:63], v[66:67], v[66:67], v[62:63]""")
        for z in range(2, 8):
            A(f"""v_pk_add_f32 v[60:61], v[60:61], v[{64+2*z}:{65+2*z}]
                  v_pk_fma_f32 v[62:63], v[{64+2*z}:{65+2*z}], v[{64+2*z}:{65+2*z}], v[62:63]""")
        A("""v_add_f32 v48, v60, v61
             v_add_f32 v49, v62, v63""")
        qreduce(48, 49)
        A("v_mov_b32 v49, s28")

    def seq_pass1(extra_stores=None):
        A("""v_add_f32 v48, v52, v56
             v_add_f32 v49, v54, v58""")
        qreduce(48, 49)
        A("""v_mov_b32 v49, v48
             v_permlane32_swap_b32 v48, v49""")
        for l in finish_stats(48, 49, 60): A(l)
        for z in range(8):
            A(normalize(64+2*z, 60))
            A(f"v_cvt_pk_bf16_f32 v{128+z}, v{64+2*z}, v{65+2*z}")
            if z & 1: A(f"ds_write_b64 v6, v[{127+z}:{128+z}] offset:{32*(z>>1)}")
        A("""s_waitcnt lgkmcnt(0)
             s_barrier""")
        A.lg = []
        for m in range(4):
            for ks in range(2):
                for hh in range(2):
                    r = 96 + 8*m + 4*ks + 2*hh
                    A(f"ds_read_b64_tr_b16 v[{r}:{r+1}], v7 offset:{ks*5120+hh*2560+32*m}", ("p1", m))
        if extra_stores: extra_stores()
        for m in range(4):
            A.wait_lg(("p1", m))
            A(f"{MF} v[{32+4*m}:{35+4*m}], v[{96+8*m}:{99+8*m}], v[88:91], 0")
            A(f"{MF} v[{32+4*m}:{35+4*m}], v[{100+8*m}:{103+8*m}], v[92:95], v[{32+4*m}:{35+4*m}]")
        for z in range(8):
            A(f"v_cvt_pk_bf16_f32 v{128+z}, v{32+2*z}, v{33+2*z}")
            if z == 3: A("buffer_store_dwordx4 v[128:131], v8, s[4:7], s67 offen sc1")
        A("buffer_store_dwordx4 v[132:135], v8, s[4:7], s67 offen offset:128 sc1")

    seq_consts()
    def first_stats():
        TS(0)
        for z in range(8):
            A(f"""v_lshlrev_b32 v{64+2*z}, 16, v{128+z}
                  v_and_b32 v{65+2*z}, 0xffff0000, v{128+z}""")
        tile_stats()
        A(f"""s_lshl_b32 s83, s35, 10
              s_add_u32 s83, s83, s66
              s_add_u32 s93, s83, {STQ - ST}
              s_mov_b32 exec_lo, 0xffff
              s_mov_b32 exec_hi, 0xffff
              buffer_store_dwordx2 v[48:49], v245, s[4:7], s83 offen
              s_mov_b64 exec, -1""")
    A("s_waitcnt vmcnt(5)")
    first_stats()
    A("s_add_u32 s92, s66, 4096")
    TS(1)
    vpoll("L_pS0", """buffer_load_dwordx4 v[52:55], v5, s[4:7], s90 offen sc1
                      buffer_load_dwordx4 v[56:59], v5, s[4:7], s91 offen sc1""", [53, 55, 57, 59],
          dual=[("s90", "s66", STQ - ST), ("s91", "s92", STQ - ST)],
          late="""s_mov_b32 exec_lo, 0xffff
                  s_mov_b32 exec_hi, 0xffff
                  buffer_store_dwordx2 v[48:49], v245, s[4:7], s93 offen sc1
                  s_mov_b64 exec, -1""")
    TS(2)
    seq_pass1(lambda: A("""s_cmp_eq_u32 s37, 0
                           s_cselect_b64 exec, 1, 0
                           buffer_store_dword v236, off, s[4:7], s38 offset:16 sc1
                           s_mov_b64 exec, -1"""))
    A("""v_lshrrev_b32 v32, 2, v2
         v_and_b32 v34, 3, v2""")
    A(f"""s_lshl_b32 s82, s37, 12
          v_lshlrev_b32 v40, 5, v0
          v_add_u32 v40, s82, v40
          v_lshlrev_b32 v43, 9, v32
          v_lshl_add_u32 v43, v3, 5, v43
          v_lshl_add_u32 v43, v34, 3, v43
          v_add_u32 v43, s82, v43
          s_mul_i32 s54, s33, 180224
          s_add_u32 s54, s54, {W1F}
          s_lshl_b32 s84, s37, 8
          s_add_u32 s83, s54, s84
          s_lshl_b32 s85, s32, 12
          s_add_u32 s85, s85, s83
          s_add_u32 s86, s85, 114688
          s_mul_i32 s87, s32, 3072
          s_add_u32 s87, s87, s83
          s_add_u32 s87, s87, 65536""")
    for rq in range(2):
        b = 144 + 8*rq
        A(f"""v_swap_b32 v{b+1}, v{b+4}
              v_swap_b32 v{b+3}, v{b+5}
              v_swap_b32 v{b+2}, v{b+4}
              v_swap_b32 v{b+5}, v{b+6}
              ds_write_b128 v40, v[{b}:{b+3}] offset:{2048*rq}
              ds_write_b128 v40, v[{b+4}:{b+7}] offset:{2048*rq+16}""")
    A("s_waitcnt lgkmcnt(0)")
    for z in range(3):
        A(f"""ds_read_b64_tr_b16 v[{144+4*z}:{145+4*z}], v43 offset:{128*z}
              ds_read_b64_tr_b16 v[{146+4*z}:{147+4*z}], v43 offset:{128*z+2048}""")
    A("""s_waitcnt lgkmcnt(4)
         buffer_store_dwordx4 v[144:147], v5, s[4:7], s85 offen sc1
         s_waitcnt lgkmcnt(2)
         buffer_store_dwordx4 v[148:151], v5, s[4:7], s86 offen sc1
         s_waitcnt lgkmcnt(0)
         s_mov_b32 exec_hi, 0xffff
         buffer_store_dwordx4 v[152:155], v5, s[4:7], s87 offen sc1
         s_mov_b32 exec_hi, -1""")
    A("s_waitcnt vmcnt(3)")
    gflag("s68")
    TS(3)
    w2addr()
    A("""buffer_load_dwordx4 v[176:179], v46, s[24:27], 0 offen
         buffer_load_dwordx4 v[180:183], v47, s[24:27], 0 offen""")
    A(f"""s_lshl_b32 s82, s37, 2
          s_add_u32 s1, s82, s38
          s_mov_b32 s12, s50
          s_mov_b32 s13, s51
          s_mov_b32 s14, {2*MB}""")
    late_setup()
    A("s_waitcnt vmcnt(3)")
    gflag("s1")

    def layer(L):
        nts[0] = 4
        XS = "" if WARM & (8 if L == 0 else 1) else "sc1"
        HS = "" if (WARM & 2 and L == 1) else "sc1"
        D = dict(GPB=0, LSTEP=5, EVL=16, BURSTR=2, EVA=14, EVP=32, EVC=48, NPRE=7, EVR=15, GR=10, GFB=11, POLLB=26, GB=24, BURST=9, AGGA=0, AGGR=0)
        GPB, LSTEP, EVL, BURSTR, EVA, EVP, EVC, NPRE, EVR, GR, GF_B, POLLB, GB, BURST, AGGA, AGGR = [P(f"{k}{L}", P(k, v)) for k, v in D.items()]
        B2, BA, TC, TSN, BB = 192, 200, 206, 214, 222
        A(f"""s_cmp_eq_u32 s43, 32
              s_cselect_b32 s84, 0, 1.0
              s_cselect_b32 s85, 1.0, 0
              s_cmp_gt_u32 s43, 32
              s_cselect_b32 s86, -1.0, 1.0
              s_and_b32 s82, s43, 31
              s_cmp_eq_u32 s82, 0
              s_cselect_b32 s86, 0, s86
              v_lshrrev_b32 v32, 1, v2
              v_lshlrev_b32 v32, 6, v32
              v_add_u32 v32, s55, v32
              v_cvt_f32_u32 v32, v32
              v_and_b32 v33, 1, v2
              v_cvt_f32_u32 v39, v33
              v_cvt_f32_u32 v34, v3
              v_cvt_f32_u32 v40, v2
              v_mul_f32 v32, {f2u(1/2048)}, v32
              v_mul_f32 v39, {f2u(0.25)}, v39
              v_add_f32 v35, v34, v34
              v_fma_f32 v39, v32, v35, v39
              v_mul_u32_u24 v33, 0x8000, v33
              v_lshl_or_b32 v33, v33, 16, v33
              v_mul_f32 v34, 4.0, v34""")
        for ks in range(2):
            for z in range(4):
                A(f"""v_fmamk_f32 v35, v32, {f2u(float(16*ks + 8*(z>>1) + (z&1)))}, v39
                      v_cos_f32 v36, v35
                      v_sin_f32 v37, v35
                      v_mul_f32 v38, s85, v36
                      v_mul_f32 v36, s84, v36
                      v_fma_f32 v37, v37, s86, v38
                      v_cvt_pk_bf16_f32 v{B2+4*ks+z}, v36, v37""")
        def sincos4(scale, cdst, sdst, add=0):
            A(f"""v_mul_f32 v32, {f2u(scale)}, v40
                  v_mul_f32 v39, v32, v34""")
            for j in range(4):
                A(f"""v_fmamk_f32 v35, v32, {f2u(float(j+add))}, v39
                      v_cos_f32 v{cdst+j}, v35
                      v_sin_f32 v{sdst+j}, v35""")
        sincos4(1/16, 44, 48)
        A(f"""v_cvt_pk_bf16_f32 v{BA+2}, v44, v45
              v_cvt_pk_bf16_f32 v{BA+3}, v46, v47
              v_cvt_pk_bf16_f32 v{BA+4}, v48, v49
              v_cvt_pk_bf16_f32 v{BA+5}, v50, v51
              v_xor_b32 v{BA}, 0x80008000, v{BA+4}
              v_xor_b32 v{BA+1}, 0x80008000, v{BA+5}""")
        sincos4(1/512, TC, TSN)
        sincos4(1/512, TC+4, TSN+4, 16)
        sincos4(1/32, 44, 48)
        for ks in range(2):
            A(f"""v_cvt_pk_bf16_f32 v{BB+4*ks}, v{44+4*ks}, v{45+4*ks}
                  v_cvt_pk_bf16_f32 v{BB+4*ks+1}, v{46+4*ks}, v{47+4*ks}
                  v_xor_b32 v{BB+4*ks+2}, v33, v{BB+4*ks}
                  v_xor_b32 v{BB+4*ks+3}, v33, v{BB+4*ks+1}""")
        for z in range(8):
            A(f"v_xor_b32 v{BB+8+z}, 0x80000000, v{BB+z}")
        A(f"""s_mov_b32 s90, s70
              s_lshl_b32 s91, s37, 14
              s_add_u32 s91, s91, {YB}
              s_mov_b32 m0, s91
              s_lshl_b32 s92, s32, 11
              s_add_u32 s92, s92, {CX + 16}
              v_lshlrev_b32 v41, 7, v2""")
        if L == 0:
            A(f"""v_add_u32 v42, s91, v1
                  v_lshrrev_b32 v44, 2, v2
                  v_and_b32 v45, 3, v2
                  v_lshlrev_b32 v44, 7, v44
                  v_lshl_add_u32 v44, v45, 4, v44
                  v_lshrrev_b32 v45, 1, v3
                  v_lshl_add_u32 v44, v45, 6, v44
                  v_and_b32 v45, 1, v3
                  v_lshl_add_u32 v44, v45, 3, v44
                  v_add_u32 v44, s91, v44
                  s_waitcnt vmcnt(1)
                  ds_write_b128 v42, v[176:179]
                  ds_write_b128 v42, v[180:183] offset:1024
                  s_waitcnt lgkmcnt(0)
                  ds_read_b64_tr_b16 v[176:177], v44
                  ds_read_b64_tr_b16 v[178:179], v44 offset:512
                  ds_read_b64_tr_b16 v[180:181], v44 offset:1024
                  ds_read_b64_tr_b16 v[182:183], v44 offset:1536
                  s_waitcnt lgkmcnt(0)""")
            A(f"""s_lshl_b32 s93, s33, 7
                  s_add_u32 s93, s93, {CX}
                  v_lshlrev_b32 v184, 11, v2
                  v_lshl_add_u32 v184, v3, 2, v184""")
        if L == 1 and WARM & 3: warm(44 if WARM & 2 else 0)
        TS()
        vpoll(f"L_pG{L}", "buffer_load_dword v36, v9, s[4:7], s69 offen sc1", [36], sleep=GSLEEP)
        TS()
        for z in range(16):
            if z and z % 4 == 0: A("s_add_u32 m0, m0, 4096")
            A(f"buffer_load_dwordx4 v16, s[4:7], s90 offen offset:{(z%4)*1024} {LY} lds", ("y", z >> 2))
            if z < 15: A(f"s_add_u32 s90, s90, {16384 - 1024}" if z % 4 != 3 else f"s_sub_u32 s90, s90, {3*(16384 - 1024) - 128}")
        A("s_barrier")
        for r in range(2):
            A(f"buffer_load_dwordx4 v[{160+4*r}:{163+4*r}], v23, s[8:11], s{71 if r == 0 else 80} offen sc1", "res")
        if L == 0:
            A("buffer_load_dword v168, v41, s[4:7], s92 offen sc1", "res")
            A("buffer_load_dword v185, v184, s[4:7], s93 offen sc1", "gw")
        A.lg = []
        def p2mfma(mt):
            A.wait_lg(("p2", mt))
            A(f"{MF} v[{32+4*mt}:{35+4*mt}], v[{96+8*mt}:{99+8*mt}], v[{B2}:{B2+3}], 0")
            A(f"{MF} v[{32+4*mt}:{35+4*mt}], v[{100+8*mt}:{103+8*mt}], v[{B2+4}:{B2+7}], v[{32+4*mt}:{35+4*mt}]")
        def p2out(m):
            A(f"""v_cvt_pk_bf16_f32 v{64+2*m}, v{32+4*m}, v{33+4*m}
                  v_cvt_pk_bf16_f32 v{65+2*m}, v{34+4*m}, v{35+4*m}""")
            A(f"ds_write_b64 v{19+(m&1)}, v[{64+2*m}:{65+2*m}] offset:{64*(m>>1)}")
        for cg in range(4):
            A.wait_vm(("y", cg))
            if cg == 0: TS()
            for mt in (2*cg, 2*cg+1):
                for ks in range(2):
                    for hh in range(2):
                        r = 96 + 8*mt + 4*ks + 2*hh
                        A(f"ds_read_b64_tr_b16 v[{r}:{r+1}], v{18 - (mt & 1)} offset:{cg*4096+ks*2048+hh*1024}", ("p2", mt))
            if cg >= 1: p2out(2*cg-2); p2out(2*cg-1)
            p2mfma(2*cg); p2mfma(2*cg+1)
            if cg == 3:
                if L == 0:
                    A(f"""s_lshl_b32 s82, s40, 12
                          s_lshl_b32 s83, s37, 8
                          s_add_u32 s82, s82, s83
                          s_add_u32 s82, s82, {W2F}
                          s_add_u32 s83, s82, {256*4096}""")
                    A("buffer_store_dwordx4 v[176:179], v5, s[4:7], s82 offen sc1", "w2s")
                    A("""s_cmp_lt_u32 s40, 96
                         s_cselect_b64 exec, -1, 0""")
                    A("buffer_store_dwordx4 v[180:183], v5, s[4:7], s83 offen sc1", "cond")
                    A("s_mov_b64 exec, -1")
        p2out(6); p2out(7)
        if L == 0: check("L_pW", "gw", "v185", "buffer_load_dword v185, v184, s[4:7], s93 offen sc1")
        A("""s_waitcnt lgkmcnt(0)
             s_barrier""")
        A.lg = []
        TS()
        for r in range(2):
            for h in range(2):
                for cc in range(2):
                    reg = 96 + 8*r + 4*h + 2*cc
                    A(f"ds_read_b64_tr_b16 v[{reg}:{reg+1}], v{21+h} offset:{r*2064+cc*1032}", ("sa", r))
        wnext = 0 if L == 0 else 19
        side = wgroup(wnext, wnext + (NSIDE0 if L == 0 else NSIDE1), "s90", "s91")
        wnext += len(side)
        mark = len(A.lines)
        for r in range(2):
            A.wait_lg(("sa", r))
            for h in range(2):
                for c2 in range(2):
                    d = 32 + 16*r + 8*c2 + 4*h
                    b = BA + 2 if c2 == 0 else BA
                    A(f"{MF} v[{d}:{d+3}], v[{96+8*r+4*h}:{99+8*r+4*h}], v[{b}:{b+3}], 0")
        A("RESWAIT")
        nres = A.vm_count("res")
        for r in range(2):
            A(f"""v_permlane16_swap_b32 v{160+4*r}, v{162+4*r}
                  v_permlane16_swap_b32 v{161+4*r}, v{163+4*r}""")
        for r in range(2):
            for z in range(4):
                A(f"""v_lshlrev_b32 v{80+8*r+2*z}, 16, v{160+4*r+z}
                      v_and_b32 v{81+8*r+2*z}, 0xffff0000, v{160+4*r+z}""")
        for r in range(2):
            for z in range(4):
                ur, ui = 32 + 16*r + 2*z, 40 + 16*r + 2*z
                A(f"""v_pk_mul_f32 v[64:65], v[{ui}:{ui+1}], v[{TSN+2*z}:{TSN+2*z+1}]
                      v_pk_mul_f32 v[66:67], v[{ur}:{ur+1}], v[{TSN+2*z}:{TSN+2*z+1}]
                      v_pk_fma_f32 v[64:65], v[{ur}:{ur+1}], v[{TC+2*z}:{TC+2*z+1}], v[64:65]
                      v_pk_fma_f32 v[66:67], v[{ui}:{ui+1}], v[{TC+2*z}:{TC+2*z+1}], v[66:67] neg_lo:[0,0,1] neg_hi:[0,0,1]
                      v_cvt_pk_bf16_f32 v{112+8*r+z}, v64, v65
                      v_cvt_pk_bf16_f32 v{116+8*r+z}, v66, v67""")
            for g in range(2):
                d = 80 + 8*r + 4*g
                A(f"{MF} v[{d}:{d+3}], v[{112+8*r}:{115+8*r}], v[{BB+8*g}:{BB+8*g+3}], v[{d}:{d+3}]")
            for g in range(2):
                d = 80 + 8*r + 4*g
                A(f"{MF} v[{d}:{d+3}], v[{116+8*r}:{119+8*r}], v[{BB+8*g+4}:{BB+8*g+7}], v[{d}:{d+3}]")
        if L == 0:
            A(f"""v_cmp_ne_u32 vcc, s3, v168
                  s_cmp_eq_u64 vcc, {-2 if slow else 0}
                  s_cselect_b64 s[60:61], 1, 0
                  s_cselect_b64 s[62:63], 0, 1
                  s_cselect_b32 s56, 0xffff, 0
                  s_cselect_b32 s57, 0xffff, 0
                  s_cselect_b32 s58, 0, 0xffff
                  s_cselect_b32 s59, 0, 0xffff""")
        for r in range(2):
            x = 80 + 8*r
            A(f"""v_pk_add_f32 v[{32+4*r}:{33+4*r}], v[{x}:{x+1}], v[{x+2}:{x+3}]
                  v_pk_mul_f32 v[{34+4*r}:{35+4*r}], v[{x}:{x+1}], v[{x}:{x+1}]""")
            for z in range(1, 4):
                if z > 1: A(f"v_pk_add_f32 v[{32+4*r}:{33+4*r}], v[{32+4*r}:{33+4*r}], v[{x+2*z}:{x+2*z+1}]")
                A(f"v_pk_fma_f32 v[{34+4*r}:{35+4*r}], v[{x+2*z}:{x+2*z+1}], v[{x+2*z}:{x+2*z+1}], v[{34+4*r}:{35+4*r}]")
            A(f"""v_add_f32 v{40+2*r}, v{32+4*r}, v{33+4*r}
                  v_add_f32 v{41+2*r}, v{34+4*r}, v{35+4*r}""")
        A("""v_permlane32_swap_b32 v40, v42
             v_permlane32_swap_b32 v41, v43
             v_add_f32 v40, v40, v42
             v_add_f32 v41, v41, v43
             v_permlane16_swap_b32 v40, v41
             v_add_f32 v40, v40, v41""")
        for sh in (8, 4, 2, 1):
            A(f"v_add_f32_dpp v40, v40, v40 row_ror:{sh} row_mask:0xf bank_mask:0xf")
        A("""v_mov_b32 v41, v40
             v_permlane16_swap_b32 v40, v41""")
        for l in finish_stats(40, 41, 44, LOG2E): A(l)
        A("""v_mov_b32 v48, v44
             v_mov_b32 v49, v45
             v_rcp_f32 v46, v44
             v_permlane32_swap_b32 v44, v48
             v_permlane32_swap_b32 v45, v49
             v_mov_b32 v47, v40""")
        for r in range(2):
            for z in range(4):
                x = 80 + 8*r + 2*z
                A(normalize(x, 44+4*r))
                A(f"v_cvt_pk_bf16_f32 v{64+4*r+z}, v{x}, v{x+1}")
                if z & 1: A(f"ds_write_b64 v27, v[{63+4*r+z}:{64+4*r+z}] offset:{1024*r+512*(z>>1)}")
        body = A.lines[mark:]; del A.lines[mark:]
        step = (len(body) - 16) // len(side); issued = 0
        for k, l in enumerate(body):
            if "RESWAIT" in l: A(f"s_waitcnt vmcnt({issued + nres})"); continue
            A.lines.append(l)
            if k % step == 2 and side and "s_cmp" not in l and "s_cselect" not in l: put(side.pop(0)); issued += 1
        assert not side
        if L == 0:
            A.wait_vm("w2s")
            A("s_add_u32 s1, s1, 32")
            gflag("s1")
        A(f"""s_mov_b32 exec_lo, 1
              s_mov_b32 exec_hi, 1
              buffer_store_dwordx2 v[46:47], v245, s[4:7], s0 offen {XS}
              s_mov_b64 exec, -1
              s_waitcnt lgkmcnt(0)
              s_barrier
              ds_read_b128 v[48:51], v28
              ds_read_b128 v[52:55], v31 offset:128
              s_waitcnt lgkmcnt(1)
              buffer_store_dwordx4 v[48:51], v29, s[4:7], s73 offen {XS}
              s_waitcnt lgkmcnt(0)
              buffer_store_dwordx4 v[52:55], v29, s[4:7], s73 offen offset:2048 {XS}""")
        TS()
        TSflush()
        A(f"""s_mov_b32 s44, s75
              s_add_u32 s45, s75, 16384
              s_add_u32 s46, s78, 45056
              """)
        for nu in range(4):
            A(f"""s_add_u32 s82, s37, {1+nu}
                  s_and_b32 s82, s82, 3
                  s_mul_i32 s82, s82, 45056
                  s_add_u32 s{96+nu}, s79, s82""")
        if L == 0:
            A(f"""s_lshl_b32 s82, s35, 2
                  s_add_u32 s82, s82, s37
                  s_mul_i32 s82, s82, 11
                  v_min_u32 v196, 10, v2
                  v_add_u32 v196, s82, v196
                  v_and_b32 v196, 255, v196
                  v_lshlrev_b32 v196, 7, v196
                  v_lshl_add_u32 v196, v3, 2, v196
                  s_mov_b32 s2, {CX + 32}""")
        A(f"""s_lshl_b32 s82, s32, 1
              s_add_u32 s82, s82, s34
              s_add_u32 s82, s82, s35
              s_and_b32 s42, s82, {3 if ROTH else 0}
              s_mul_i32 s83, s42, 2816""")
        for nu in range(4): A(f"s_add_u32 s{96+nu}, s{96+nu}, s83")
        for k in range(1, 4):
            A(f"""s_add_u32 s82, s42, {k}
                  s_cmp_eq_u32 s82, 4
                  s_cselect_b32 s82, -3, 1
                  s_mul_i32 s{83+k}, s82, 2816""")
        A(f"""s_add_u32 s82, s42, 3
              s_and_b32 s82, s82, 3
              s_mul_i32 s87, s82, 2816
              s_mov_b32 s88, s83""")
        if EARLY & 1: A.lg = []
        else: A.vm0(); A.lg = []
        cflag(0)
        for _ in range(NC1 if L == 0 else NC1B): put(witem(wnext)); wnext += 1
        assert wnext <= 35
        put(cpoll_load("v238", 0))
        cpoll_check(f"L_pC1{L}", "v238", 0)
        if "g2" not in sys.argv: TS()

        def xreg(n):
            return f"a[{176+4*n}:{179+4*n}]" if n < 20 else f"v[{128+4*(n-20)}:{131+4*(n-20)}]"
        xq = []
        for kk in range(16):
            for T in range(2):
                pre = [f"s_add_u32 s{44+T}, s{44+T}, 4096"] if (kk % 4 == 0 and kk) else []
                xq.append((pre, f"buffer_load_dwordx4 {xreg(2*kk+T)}, v1, s[4:7], s{44+T} offen offset:{(kk%4)*1024} {LX}", ("xn", kk)))
        PRE = 10
        for it in xq[:PRE]: put(it)
        A("s_barrier")
        frags = []
        for ps, nt in ((0, 4), (1, 3), (2, 4)):
            for kk in range(16):
                for t in range(nt):
                    if ps == 0: addr = ("v1", kk*4096 + t*1024)
                    elif ps == 1: addr = ("v10", kk*3072 + t*1024)
                    elif kk < 12: addr = ("v11", kk*4096 + t*1024)
                    else: addr = ("v10", 16384 + (kk-12)*4096 + t*1024)
                    frags.append((ps, kk, t, addr))
        NF, LOOK = len(frags), 6
        def aread(n):
            ps, kk, t, (va, off) = frags[n]
            r = 96 + 4*(n % 8)
            A(f"ds_read_b128 v[{r}:{r+3}], {va} offset:{off}", ("af", n))
        def acc(ps, t, T): return 32 + 32*(ps & 1) + 8*t + 4*T

        def epi(ps, nt, together=False, packed=False):
            ops, tmp_last, k = [], {}, 0
            for T in range(2):
                cv = []
                for t in range(nt):
                    a = acc(ps, t, T); e = 184 + 2*(k % 3); k += 1
                    b = len(ops); w = tmp_last.get(e, [])
                    if packed:
                        ops += [["t", f"v_exp_f32 v{e}, -v{a}", w], ["t", f"v_exp_f32 v{e+1}, -v{a+1}", w],
                                ["v", f"v_pk_mul_f32 v[{a}:{a+1}], v[{a}:{a+1}], v[{a+2}:{a+3}]", [b, b+1]],
                                ["v", f"v_pk_fma_f32 v[{e}:{e+1}], v[{e}:{e+1}], s[30:31], s[30:31]", [b, b+1]],
                                ["t", f"v_rcp_f32 v{e}, v{e}", [b+3]], ["t", f"v_rcp_f32 v{e+1}, v{e+1}", [b+3]],
                                ["v", f"v_pk_mul_f32 v[{a}:{a+1}], v[{a}:{a+1}], v[{e}:{e+1}]", [b+2, b+4, b+5]],
                                ["v", f"v_cvt_pk_bf16_f32 v{176+4*T+t}, v{a}, v{a+1}", [b+6]]]
                        tmp_last[e] = [b+6]; cv.append(b+7)
                        continue
                    ops += [["t", f"v_exp_f32 v{e}, -v{a}", w], ["t", f"v_exp_f32 v{e+1}, -v{a+1}", w],
                            ["v", f"v_mul_f32 v{a}, v{a}, v{a+2}", [b]], ["v", f"v_mul_f32 v{a+1}, v{a+1}, v{a+3}", [b+1]],
                            ["v", f"v_fma_f32 v{e}, v{e}, s65, s65", [b]], ["v", f"v_fma_f32 v{e+1}, v{e+1}, s65, s65", [b+1]],
                            ["t", f"v_rcp_f32 v{e}, v{e}", [b+4]], ["t", f"v_rcp_f32 v{e+1}, v{e+1}", [b+5]],
                            ["v", f"v_mul_f32 v{a}, v{a}, v{e}", [b+2, b+6]], ["v", f"v_mul_f32 v{a+1}, v{a+1}, v{e+1}", [b+3, b+7]],
                            ["v", f"v_cvt_pk_bf16_f32 v{176+4*T+t}, v{a}, v{a+1}", [b+8, b+9]]]
                    tmp_last[e] = [b+8, b+9]; cv.append(b+10)
                b, so = 176 + 4*T, 78 if T == 0 else 46
                if nt == 4:
                    ops.append(["m", f"buffer_store_dwordx4 v[{b}:{b+3}], v1, s[4:7], s{so} offen offset:{512*ps} {HS}", cv])
                else:
                    n0 = len(ops)
                    ops += [["t", f"v_permlane32_swap_b32 v{b}, v{b+2}", cv], ["t", f"v_permlane32_swap_b32 v{b+1}, v{b+3}", cv],
                            ["t", f"v_permlane16_swap_b32 v{b}, v{b+1}", [n0, n0+1]], ["t", f"v_permlane16_swap_b32 v{b+2}, v{b+3}", [n0, n0+1]],
                            ["m", f"s_mov_b32 exec_hi, 0xffff\nbuffer_store_dwordx4 v[{b}:{b+3}], v1, s[4:7], s{so} offen offset:2048 {HS}\ns_mov_b32 exec_hi, -1", [n0+2, n0+3]]]
            if together:
                ms = [o for o in ops if o[0] == "m"]
                ms[0][2] = ms[0][2] + ms[1][2]
            return ops

        class Fill:
            def __init__(s, ops, tag): s.ops, s.done, s.tag, s.now = ops, {}, tag, 0
            def left(s): return len(s.done) < len(s.ops)
            def take(s, kind):
                for i, (k, text, deps) in enumerate(s.ops):
                    if i in s.done or k != kind: continue
                    if all(d in s.done and s.done[d] < s.now for d in deps):
                        s.done[i] = s.now; A(text, s.tag if k == "m" else None); return True
                return False
            def drain(s, between=None):
                n = 0
                while s.left():
                    s.now += 1
                    if not (s.take("m") or s.take("t") or s.take("v")): raise SystemExit("stuck")
                    s.take("v")
                    n += 1
                    if between: between(n)

        def wait_for(n, vmtag=None):
            parts = []
            if vmtag is not None and vmtag in A.vm: parts.append(f"vmcnt({A.vm_count(vmtag)})")
            if ("af", n) in A.lg: parts.append(f"lgkmcnt({A.lg_count(('af', n))})")
            if parts: A("s_waitcnt " + " ".join(parts))

        def wneed(n):
            ps, kk, t, _ = frags[n]
            return ((0, 65536, 114688)[ps] + kk*(4096, 3072, 4096)[ps] + 1024*t) // 4096
        W = {"vis": wnext - 1, "at": {}}
        N1, N2 = 64, 112
        NFREE = N1 + 34

        def stream(lo, hi, vq, fill, events, extra=False, dense=False, agg=0):
            lastm = lo - 2
            for n in range(lo, hi):
                ps, kk, t, _ = frags[n]
                r = 96 + 4*(n % 8)
                for T in range(2):
                    a = acc(ps, t, T)
                    A(f"{MF} v[{a}:{a+3}], v[{r}:{r+3}], {xreg(2*kk+T)}, " + ("0" if kk == 0 else f"v[{a}:{a+3}]"))
                    if fill: fill.now += 1
                    if T == 0:
                        if vq and vq[0][0]: A(vq[0][0].pop(0))
                        if n + LOOK < NF: aread(n + LOOK)
                        if fill and n >= lo + 2:
                            fill.take("v")
                            if agg & 1: fill.take("v")
                    else:
                        if n + 1 < NF:
                            nps, nkk, nt_, _ = frags[n+1]
                            xt = ("xn", nkk) if (nps == 0 and nt_ == 0) else None
                            need = wneed(n + 1 + LOOK) if n + 1 + LOOK < NF else -1
                            if need > W["vis"] or n + 1 == NFREE:
                                tgt = max([need, W["vis"]] + [j for j, at in W["at"].items() if at <= n - WLAT])
                                assert tgt <= W["vis"] or tgt in W["at"], (L, n, tgt)
                                tags = [t_ for t_ in (xt, ("W", tgt) if tgt > W["vis"] else None) if t_ in A.vm]
                                wait_for(n + 1, min(tags, key=A.vm_count) if tags else None)
                                A("s_barrier"); W["vis"] = tgt
                                if n + 1 == NFREE:
                                    k = max([q + 1 for q, it in enumerate(vq) if isinstance(it[2], tuple) and it[2][0] == "W"] + [0])
                                    vq[k:k] = [witem(j) for j in range(40, 44)]
                            else: wait_for(n + 1, xt)
                            ev = events.get(n + 1)
                            if ev: ev(n + 1)
                        if fill and n >= lo + 2 and n - lastm >= 2 and fill.take("m"): lastm = n
                        elif vq and not vq[0][0] and n - lastm >= (1 if dense and len(vq) > (hi - n) // 2 else 2) and (not fill or not fill.left() or vq[0][2] != "late"):
                            it = vq.pop(0); put(it); lastm = n
                            if isinstance(it[2], tuple) and it[2][0] == "W": W["at"][it[2][1]] = n
                            if extra and fill: fill.take("t") or fill.take("v")
                        elif fill and n >= lo + 2:
                            if not fill.take("t"):
                                fill.take("v"); fill.take("v")
                            elif agg & 2: fill.take("v")
                            if agg & 4: fill.take("t")

        A.lg = []
        for n in range(LOOK): aread(n)
        wait_for(0, ("xn", 0))
        vq = list(xq[PRE:]) + [witem(j) for j in range(wnext, 40)]
        if L == 0: vq.insert(8, ([], "buffer_load_dword v197, v196, s[4:7], s2 offen sc1", "gw2"))
        stream(0, N1, vq, None, {})
        if "g2" not in sys.argv: TS()
        order = [(ks, nu) for ks in (0, 2, 4, 6, 8, 9, 10) for nu in range(4)] + [(ks, nu) for nu in range(4) for ks in (1, 3, 5, 7)]
        def hreg(i):
            if i < 11: return f"v[{192+4*i}:{195+4*i}]"
            if i < 15: return f"v[{160+4*(i-11)}:{163+4*(i-11)}]"
            if i < 16: return "v[96:99]"
            if i < 36: return f"a[{176+4*(i-16)}:{179+4*(i-16)}]"
            return f"v[{128+4*(i-36)}:{131+4*(i-36)}]"
        def hitem(i):
            ks, nu = order[i]; s = f"s{96+nu}"
            if ks < 8:
                return ([f"s_add_u32 {s}, {s}, s{83 + (ks >> 1)}"] if ks >= 2 else ([f"s_add_u32 {s}, {s}, s88"] if ks == 1 else []),
                        f"buffer_load_dwordx4 {hreg(i)}, v1, s[4:7], {s} offen offset:{(ks&1)*1024} {LH}", ("h", i))
            return ([f"s_sub_u32 {s}, {s}, s87"] if ks == 8 else [],
                    f"buffer_load_dwordx4 {hreg(i)}, v{24+ks-8}, s[4:7], {s} offen offset:2048 {LH}", ("h", i))
        w2q = []
        if L == 0:
            A(f"""s_lshl_b32 s49, s35, 2
                  s_add_u32 s49, s49, s37
                  s_mul_i32 s49, s49, 45056
                  s_add_u32 s49, s49, {W2F}
                  s_add_u32 s89, s49, 4096""")
            check("L_pW2", "gw2", "v197", "buffer_load_dword v197, v196, s[4:7], s2 offen sc1")
            for ks in (0, 2, 4, 6, 8, 9, 10, 1, 3, 5, 7):
                for m in range(4):
                    f = 4*ks + m
                    pre = [] if m else [f"s_add_u32 s48, s49, {4096*ks}"]
                    if m == 0 and ks < 8:
                        pre = [f"s_add_u32 s48, s42, {ks >> 1}", "s_and_b32 s48, s48, 3", "s_lshl_b32 s48, s48, 13", f"s_add_u32 s48, s48, s{49 if ks % 2 == 0 else 89}"]
                    w2q.append((pre,
                                f"buffer_load_dwordx4 a[{4*f}:{4*f+3}], v1, s[4:7], s48 offen offset:{m*1024} {LW}", "w2"))
        w2late = w2q[44 - W2LATE:]; w2q = w2q[:44 - W2LATE]
        vq += w2q
        fill = Fill(epi(0, 4), "hA")
        stream(N1, N2, vq, fill, {}, extra=(L == 0), agg=AGGA)
        fill.drain()
        if "g2" not in sys.argv: TS()
        k = max([q + 1 for q, it in enumerate(vq) if isinstance(it[2], tuple) and it[2][0] == "W"] + [0])
        vq[k:k] = [([], "buffer_load_dwordx2 v[246:247], v241, s[4:7], s77 offen sc1", "res"),
                   ([], "buffer_load_dwordx4 v[248:251], v1, s[4:7], s72 offen sc1", "res"),
                   ([], "buffer_load_dwordx4 v[252:255], v1, s[4:7], s72 offen offset:1024 sc1", "res")]
        def evA(n): A.wait_vm("hA"); cflag(4)
        def evP(n): vq.insert(0, cpoll_load("v239", 4))
        def evC(n):
            cpoll_check(f"L_pA{L}", "v239", 4)
            assert not any(it[2] == "res" for it in vq)
            cv = [k for k, o in enumerate(fill.ops) if o[1].startswith("v_cvt")]
            for z in range(8):
                b = len(fill.ops)
                fill.ops += [["v", f"v_lshlrev_b32 v{64+2*z}, 16, v{248+z}", cv], ["v", f"v_and_b32 v{65+2*z}, 0xffff0000, v{248+z}", cv],
                             ["v", f"v_fma_f32 v{64+2*z}, v{64+2*z}, v246, v247", [b]], ["v", f"v_fma_f32 v{65+2*z}, v{65+2*z}, v246, v247", [b+1]]]
            vq.extend(hitem(i) for i in range(NPRE))
        fill = Fill(epi(1, 3, True), "hR")
        ev = {N2 + EVA: evA, N2 + EVP: evP, N2 + EVC: evC}
        if EVR < 0: ev[NF + EVR] = lambda n: (A.wait_vm("hR"), cflag(8))
        stream(N2, NF, vq, fill, ev, extra=(L == 0), dense=(L == 0), agg=AGGR)
        fill.drain()
        while vq: put(vq.pop(0))
        TS()

        hq = [hitem(i) for i in range(NPRE, 44)]
        fill = Fill(epi(2, 4, True, True), "hB")
        def feed(n):
            if n >= EVL and (n - EVL) % LSTEP == 0 and hq[0][2][1] < 16: put(hq.pop(0))
            if n == EVR: (None if EARLY & 2 else A.wait_vm("hR")); cflag(8)
            if sum(1 for i, o in enumerate(fill.ops) if i not in fill.done and o[0] != "m") == 0 and "pollR" not in seen:
                seen.add("pollR"); put(cpoll_load("v239", 8))
        seen = set()
        fill.drain(feed)
        if EARLY & 2: cflag(12)
        if "g2" not in sys.argv: TS()
        def acc2(nu, m): return (32, 48, 80, 64)[nu] + 4*m
        pendw = []
        early = [(s_, mm) for mm in range(4) for s_ in range(2)]
        A.wait_vm(("h", 0))
        for i, (ks, nu) in enumerate(order):
            if i in TSG: TS()
            for m in range(4):
                a = acc2(nu, m)
                c = "0" if (ks == 0 and nu < 3) else f"v[{a}:{a+3}]"
                f = 4*ks + m
                A(f"{MF} v[{a}:{a+3}], a[{4*f}:{4*f+3}], {hreg(i)}, {c}")
                if m == 0 and hq:
                    nxt = hq[0][2][1]
                    if nxt == 16 and i == GR:
                        if "g2" in sys.argv and not TSG: TS()
                        cpoll_check(f"L_pR{L}", "v239", 8)
                        if "g2" in sys.argv and not TSG: TS()
                        for _ in range(BURSTR): put(hq.pop(0))
                    if nxt == 28 and i == GB:
                        if "g2" in sys.argv and not TSG: TS()
                        cpoll_check(f"L_pB{L}", "v239", 12)
                        if "g2" in sys.argv and not TSG: TS()
                        for _ in range(BURST): put(hq.pop(0))
                    if not ((nxt == 16 and i < GR) or (nxt == 28 and i < GB)): put(hq.pop(0))
                    elif nxt == 16 and w2late: put(w2late.pop(0))
                if m == 2 and hq and hq[0][2][1] == 16 and w2late and i < GR: put(w2late.pop(0))
                if m == 1 and hq:
                    for p in hq[0][0]: A(p)
                    hq[0][0].clear()
                if m == 2 and hq and hq[0][2][1] == POLLB and i >= GPB and "pollB" not in seen:
                    seen.add("pollB"); put(cpoll_load("v239", 12))
                if i == 40 and m == 0:
                    A("s_waitcnt lgkmcnt(0)\ns_barrier"); A.lg = []
                if i in (40, 41) and m != 1 and early:
                    for _ in range(2 if m == 2 else 1):
                        s_, mm = early.pop(0); r = 100 + 16*s_ + 4*mm
                        A(f"ds_read_b128 v[{r}:{r+3}], v15 offset:{4096*s_+1024*mm}", ("rd", s_, mm))
                if i in (42, 43):
                    k = 4*(i - 42) + m
                    if k % 2 == 0: A.wait_lg(("rd", 1, k // 2))
                    for z in (2*k, 2*k+1): A(f"v_add_f32 v{100+z}, v{100+z}, v{116+z}")
                if pendw and m == (3 if ks == 1 else 1): A(pendw.pop(0))
                if m == 3 and i + 1 < len(order):
                    if i + 1 == GF_B and not EARLY & 2: A.wait_vm("hB"); cflag(12)
                    A.wait_vm(("h", i + 1))
            if ks == 7 and nu < 3:
                pendw = [f"ds_write_b128 v{12+nu}, v[{acc2(nu, m)}:{acc2(nu, m)+3}] offset:{1024*m}" for m in range(4)]
        assert not pendw and not hq and not w2late
        TS()
        A("""s_waitcnt lgkmcnt(0)
             s_barrier""")
        A.lg = []
        for m in range(4):
            A(f"ds_read_b128 v[{116+4*m}:{119+4*m}], v15 offset:{8192+1024*m}", ("rd", m))
        for z in range(8):
            A(f"v_pk_add_f32 v[{64+2*z}:{65+2*z}], v[{64+2*z}:{65+2*z}], v[{100+2*z}:{101+2*z}]")
        for m in range(4):
            A.wait_lg(("rd", m))
            for z in (2*m, 2*m+1):
                A(f"v_pk_add_f32 v[{64+2*z}:{65+2*z}], v[{64+2*z}:{65+2*z}], v[{116+2*z}:{117+2*z}]")
        TSflush()

    layer(0)
    cur[0] = 1
    TS(0)
    tile_stats()
    A(f"""s_add_u32 s66, s66, {32*8192}
          s_lshl_b32 s83, s35, 10
          s_add_u32 s83, s83, s66
          s_mov_b64 exec, s[56:57]
          buffer_store_dwordx2 v[48:49], v245, s[4:7], s83 offen
          s_mov_b64 exec, s[58:59]
          buffer_store_dwordx2 v[48:49], v245, s[4:7], s83 offen sc1
          s_mov_b64 exec, -1
          s_add_u32 s92, s66, 4096""")
    for z in range(8):
        A(f"v_cvt_pk_bf16_f32 v{80+z}, v{64+2*z}, v{65+2*z}")
    seq_consts()
    TS(1)
    vpoll("L_pS1", """buffer_load_dwordx4 v[52:55], v5, s[4:7], s66 offen sc1
                      buffer_load_dwordx4 v[56:59], v5, s[4:7], s92 offen sc1""", [53, 55, 57, 59])
    TS(2)
    A(f"""s_add_u32 s67, s67, {2*MB}
          s_add_u32 s83, s72, {X2 - XN}""")
    seq_pass1(lambda: A("""buffer_store_dwordx4 v[80:83], v1, s[4:7], s83 offen sc1
                           buffer_store_dwordx4 v[84:87], v1, s[4:7], s83 offen offset:1024 sc1"""))
    A(f"""s_add_u32 s68, s68, 131072
          s_add_u32 s69, s69, 131072
          s_add_u32 s70, s70, {2*MB}
          s_add_u32 s72, s72, {2*MB*NEWX}
          s_add_u32 s77, s77, {131072*NEWX}
          s_add_u32 s0, s0, {131072*NEWX}
          s_add_u32 s73, s73, {2*MB*NEWX}
          s_add_u32 s74, s74, 64
          s_add_u32 s75, s75, {2*MB*NEWX}
          s_add_u32 s76, s76, 64
          s_add_u32 s78, s78, {HL*NEWX}
          s_add_u32 s79, s79, {HL*NEWX}
          s_add_u32 s8, s52, {X2}
          s_addc_u32 s9, s53, 0
          s_lshl_b32 s82, s37, 5
          s_add_u32 s71, s81, s82
          s_add_u32 s80, s71, 16
          v_lshlrev_b32 v23, 4, v23""")
    if not EARLY & 4: A.vm0()
    gflag("s68")
    TS(3)
    TSflush()
    layer(1)

    for z in range(8):
        A(f"v_cvt_pk_bf16_f32 v{80+z}, v{64+2*z}, v{65+2*z}")
        if z == 3: A(f"buffer_store_dwordx4 v[80:83], v4, s[12:15], 0 offen {OUTF}")
    A(f"buffer_store_dwordx4 v[84:87], v4, s[12:15], 0 offen offset:64 {OUTF}")
    if ts:
        cur[0] = 2
        TS(0); TSflush()
        A(f"""s_lshl_b32 s82, s40, 2
              s_add_u32 s82, s82, s37
              s_lshl_b32 s82, s82, 8
              s_add_u32 s82, s82, {TSO}
              v_lshlrev_b32 v36, 2, v0
              buffer_store_dword v190, v36, s[4:7], s82 offen""")
    A("""s_or_b32 s82, s40, s37
         s_cmp_lg_u32 s82, 0
         s_cbranch_scc1 L_exit""")
    gflag("0")
    A("""L_exit:
         s_endpgm""")
    for t in tails: A(t)
    A("""L_end:
         s_endpgm""")
    assert nts[0] <= 20
    return A


HEAD = open("cdna_kernels/%s.s.ref" % NAME).read().split("; Override launch geometry")[0]

def emit(**kw):
    body = pad(gen(**kw).lines)
    k = NAME + "_kernel"
    out = [HEAD.rstrip("\n"), f"; @launch grid=(256,1,1) block=(256,1,1) lds={LDS_BYTES}",
           '.amdgcn_target "amdgcn-amd-amdhsa--gfx950"', ".text", f".globl {k}", ".p2align 8", f".type {k},@function", f"{k}:"]
    out += body
    out += ['.section .rodata,"a"', ".p2align 6", f".amdhsa_kernel {k}", "  .amdhsa_next_free_vgpr 512", "  .amdhsa_next_free_sgpr 102",
            "  .amdhsa_accum_offset 256", "  .amdhsa_group_segment_fixed_size 0", "  .amdhsa_kernarg_size 96", "  .amdhsa_user_sgpr_count 2",
            "  .amdhsa_user_sgpr_kernarg_segment_ptr 1", "  .amdhsa_system_sgpr_workgroup_id_x 1", "  .amdhsa_float_denorm_mode_32 3", ".end_amdhsa_kernel"]
    return "\n".join(out) + "\n"

if __name__ == "__main__":
    sys.stdout.write(emit(ts="ts" in sys.argv, slow="slow" in sys.argv))
```

```python
import os, sys, struct
from asmlib import Asm, pad

NAME = "interleave_layers__spectral_fnet__swiglu_ffn__prompt"
MB = 1 << 20
GF, CF, CX, TSO = 0x1F00000, 0x10000, 0x18000, 0xA0000
ST, STQ = 0x20000, 0xC0000
Y, XN, X1, X2, W1F, W2F, H = 0x100000, 0x500000, 0x900000, 0xD00000, 0xF00000, 0x1200000, 0x1400000
HL = 0x580000
PR = X1
YB, ZB, RB, IB, LDS_BYTES = 81664, 147200, 98304, 147456, 163840
SPIN, NFAST = 400000, 48
LW, LY, LX, LH = [os.environ.get(k, 'sc1').replace('none', '').replace('+', ' ') for k in ('LW', 'LY', 'LX', 'LH')]
def P(name, default): return int(os.environ.get(name, default))
NC1, NC1B, NSIDE1 = P('NC1', 12), P('NC1B', 0), P('NSIDE1', 10)
GFS, GSLEEP, GDELAY = P('GFS', 3), P('GSLEEP', 0), P('GDELAY', 0)
EARLY = P('EARLY', 0)
E2E = P('E2E', 0)
NGAP = P('NGAP', 3)
OUTF = os.environ.get('OUTF', 'sc1').replace('none', '').replace('+', ' ')
WARM, NEWX = P('WARM', 0), P('NEWX', 1)
ROTW, ROTH = P('ROTW', 0), P('ROTH', 0)
WLAT, NSIDE0, W1EARLY, W2LATE = P('WLAT', 22), P('NSIDE0', 14), P('W1EARLY', 2), P('W2LATE', 8)
LOG2E = 1.4426950408889634
TSG = [int(x) for x in os.environ.get('TSG', '').split('_') if x]
HSC = ['' if c == 'p' else 'sc1' for c in os.environ.get('HPLAIN', 'sss')]
CLK = 's_memtime' if 'cyc' in sys.argv else 's_memrealtime'
MF = "v_mfma_f32_16x16x32_bf16"


def f2u(x):
    return "0x%08x" % struct.unpack("<I", struct.pack("<f", x))[0]


def gen(ts=False, slow=False):
    A = Asm()
    nts, pend = [0], []

    cur = [0]
    def TSflush():
        if not ts or not pend: return
        A("s_waitcnt lgkmcnt(0)"); A.lg = []
        for n, k in enumerate(pend): A(f"v_writelane_b32 v190, s{TSR[n]}, {k}")
        pend.clear()

    TSR = (16, 18, 20, 22, 100, 94)
    def TS(k=None):
        if not ts: return
        if k is None:
            k = nts[0]; nts[0] += 1
        A(f"{CLK} s[{TSR[len(pend)]}:{TSR[len(pend)]+1}]")
        pend.append(20*cur[0] + k)

    def vpoll(label, load, regs, mask=None, dual=None, late=None, sleep=0):
        TSflush()
        if mask: A(f"s_mov_b64 exec, {mask}")
        A("s_mov_b32 s82, 0")
        if dual:
            for dst, fast, delta in dual: A(f"s_mov_b32 {dst}, {fast}")
        A(f"{label}:")
        A(load)
        A("s_waitcnt vmcnt(0)")
        A(f"v_cmp_eq_u32 vcc, s28, v{regs[0]}")
        for k, r in enumerate(regs[1:]):
            A(f"v_cmp_eq_u32 s[{84+2*k}:{85+2*k}], s28, v{r}")
        for k, r in enumerate(regs[1:]):
            A(f"s_and_b64 vcc, vcc, s[{84+2*k}:{85+2*k}]")
        A(f"""s_cmp_eq_u64 vcc, exec
              s_cbranch_scc1 {label}_ok
              s_add_u32 s82, s82, 1""")
        if sleep: A(f"s_sleep {sleep}")
        if late:
            A(f"""s_cmp_lg_u32 s82, {NFAST - 1}
                  s_cbranch_scc1 {label}_nl
                  {late}
                  {label}_nl:""")
        if dual:
            A(f"""s_cmp_ge_u32 s82, {NFAST}
                  s_cselect_b32 s84, s82, 0
                  s_and_b32 s84, s84, 1""")
            for dst, fast, delta in dual:
                A(f"""s_mul_i32 s85, s84, {delta}
                      s_add_u32 {dst}, {fast}, s85""")
        A(f"""s_cmp_lt_u32 s82, {SPIN}
              s_cbranch_scc1 {label}
              {label}_ok:""")
        if late: A(late)
        if mask: A("s_mov_b64 exec, -1")
        A.vm = []

    tails = []
    def cpoll_load(vaddr, off):
        return ([], f"buffer_load_dword v240, {vaddr}, s[4:7], s76 offen offset:{off} sc1", "poll")

    def check(label, tag, reg, load):
        A.wait_vm(tag)
        A(f"""v_cmp_ne_u32 vcc, s28, {reg}
              s_cbranch_vccnz {label}_re
              {label}_ok:""")
        tails.append(f"""{label}_re:
              s_mov_b32 s82, 0
              {label}_lp:
              {load}
              s_add_u32 s82, s82, 1
              s_cmp_gt_u32 s82, {SPIN}
              s_cbranch_scc1 {label}_ok
              s_waitcnt vmcnt(0)
              v_cmp_ne_u32 vcc, s28, {reg}
              s_cbranch_vccnz {label}_lp
              s_branch {label}_ok""")

    def cpoll_check(label, vaddr, off):
        check(label, "poll", "v240", cpoll_load(vaddr, off)[1])

    def witem(j, base="s47"):
        lds, va = (4096*j, "v242") if j < 40 else (81920 + 4096*(j - 40), "v243")
        return ([f"s_add_u32 m0, {base}, {lds}"], f"buffer_load_dwordx4 {va}, s[4:7], m0 offen {LW} lds", ("W", j))

    def wgroup(lo, hi, ra, rb):
        n = hi - lo; h = n // 2
        if not ROTW: return [witem(j) for j in range(lo, hi)]
        A(f"""s_and_b32 s82, s32, 1
              s_mul_i32 {ra}, s82, {4096*h}
              s_add_u32 {ra}, {ra}, s47
              s_mul_i32 {rb}, s82, {4096*(n - h)}
              s_sub_u32 {rb}, s47, {rb}""")
        return [witem(j, ra if j - lo + h < n else rb) for j in range(lo, hi)]

    def warm(nh):
        A(f"""v_lshlrev_b32 v43, 8, v0
              v_add_u32 v43, s73, v43
              v_mov_b32 v44, s0
              v_cmp_eq_u32 vcc, 16, v0
              v_subrev_u32 v45, 17, v0
              v_cndmask_b32 v43, v43, v44, vcc
              v_cmp_lt_u32 vcc, 21, v45
              v_lshlrev_b32 v45, 7, v45
              v_add_u32 v45, s78, v45
              v_add_u32 v44, {45056 - 22*128}, v45
              v_cndmask_b32 v45, v45, v44, vcc
              v_cmp_lt_u32 vcc, 16, v0
              s_mov_b32 exec_hi, {(1 << max(17 + nh - 32, 0)) - 1}
              v_cndmask_b32 v43, v43, v45, vcc
              s_mov_b32 exec_lo, {(1 << min(17 + nh, 32)) - 1}
              buffer_load_dword v46, v43, s[4:7], 0 offen sc1
              s_mov_b64 exec, -1""")

    def cflag(off):
        A("s_mov_b64 exec, s[60:61]")
        A(f"buffer_store_dword v30, off, s[4:7], s74 offset:{off}")
        A("s_mov_b64 exec, s[62:63]")
        A(f"buffer_store_dword v30, off, s[4:7], s74 offset:{off} sc1", "cond")
        A("s_mov_b64 exec, -1")

    def gflag(soff):
        A(f"""s_mov_b64 exec, 1
              buffer_store_dword v30, off, s[4:7], {soff} sc1
              s_mov_b64 exec, -1""")

    def put(item):
        if item is None: return
        for p in item[0]: A(p)
        A(item[1], item[2])

    def qreduce(a, b):
        A(f"""v_permlane32_swap_b32 v{a}, v{b}
              v_add_f32 v{a}, v{a}, v{b}
              v_mov_b32 v{b}, v{a}
              v_permlane16_swap_b32 v{a}, v{b}
              v_add_f32 v{a}, v{a}, v{b}""")

    def finish_stats(s, ss, r, scale=None):
        out = [f"v_mul_f32 v{s}, s64, v{s}", f"v_mul_f32 v{r+1}, v{s}, v{s}", f"v_fma_f32 v{ss}, v{ss}, s64, -v{r+1}",
               f"v_max_f32 v{ss}, 0, v{ss}", f"v_add_f32 v{ss}, {f2u(1e-5)}, v{ss}", f"v_rsq_f32 v{r}, v{ss}"]
        if scale: out.append(f"v_mul_f32 v{r}, {f2u(scale)}, v{r}")
        out.append(f"v_mul_f32 v{r+1}, v{s}, v{r}")
        return out

    def normalize(x, r):
        return f"v_pk_fma_f32 v[{x}:{x+1}], v[{x}:{x+1}], v[{r}:{r+1}], v[{r}:{r+1}] op_sel:[0,0,1] op_sel_hi:[1,0,1] neg_lo:[0,0,1] neg_hi:[0,0,1]"

    def xr(z): return 96 + 4*z if z < 8 else 192 + 4*(z - 8)
    XLOAD = "\n".join([f"buffer_load_dwordx4 v[{128+4*z}:{131+4*z}], v4, s[8:11], s83 offen offset:{64*z}" for z in range(2)] +
                      [f"buffer_load_dwordx4 v[{xr(z)}:{xr(z)+3}], v4, s[8:11], 0 offen offset:{64*z}" for z in range(16)])
    if ts or E2E: A(f"{CLK} s[100:101]")
    A(f"""s_cmp_ge_u32 s2, 256
          s_cbranch_scc1 L_end
          s_load_dwordx2 s[30:31], s[0:1], 0
          s_load_dwordx4 s[44:47], s[0:1], 48
          s_load_dwordx4 s[48:51], s[0:1], 64
          s_load_dwordx2 s[52:53], s[0:1], 88
          s_getpc_b64 s[84:85]
          L_pc:
          v_lshlrev_b32 v1, 7, v0
          v_add_u32 v2, 32768, v1
          v_cmp_gt_u32 vcc, L_end-L_pc, v2
          v_min_u32 v1, L_end-L_pc, v1
          v_min_u32 v2, L_end-L_pc, v2
          global_load_dword v169, v1, s[84:85]
          s_and_saveexec_b64 s[86:87], vcc
          s_cbranch_execz L_pf2
          global_load_dword v169, v2, s[84:85]
          L_pf2:
          s_mov_b64 exec, -1
          s_and_b32 s82, s2, 7
          s_lshr_b32 s83, s2, 3
          s_and_b32 s33, s83, 15
          s_lshr_b32 s83, s83, 4
          s_lshl_b32 s32, s82, 1
          s_add_u32 s32, s32, s83
          s_lshr_b32 s34, s33, 3
          s_and_b32 s35, s33, 7
          s_lshl_b32 s40, s32, 4
          s_add_u32 s40, s40, s33
          s_sub_u32 s82, 32, s32
          s_cmp_eq_u32 s32, 0
          s_cselect_b32 s82, 16, s82
          s_cmp_eq_u32 s34, 0
          s_cselect_b32 s36, s32, s82
          v_lshrrev_b32 v5, 6, v0
          v_and_b32 v0, 63, v0
          v_readfirstlane_b32 s37, v5
          v_and_b32 v2, 15, v0
          v_lshrrev_b32 v3, 4, v0
          v_lshlrev_b32 v1, 4, v0
          s_lshr_b32 s82, s37, 1
          s_lshl_b32 s82, s82, 5
          s_add_u32 s82, s82, s36
          s_and_b32 s83, s37, 1
          s_lshl_b32 s83, s83, 10
          s_add_u32 s82, s82, s83
          s_lshl_b32 s82, s82, 10
          s_lshl_b32 s83, s35, 7
          s_add_u32 s39, s82, s83
          v_lshrrev_b32 v6, 2, v0
          v_and_b32 v7, 3, v0
          v_lshlrev_b32 v4, 16, v6
          v_lshl_add_u32 v4, v7, 4, v4
          v_add_u32 v4, s82, v4
          v_mul_u32_u24 v6, 160, v6
          v_lshl_add_u32 v244, v7, 3, v6
          s_mov_b32 s10, {2*MB}
          s_mov_b32 s11, 0x20000
          s_waitcnt lgkmcnt(0)
          s_load_dword s42, s[52:53], 0
          s_mov_b32 s8, s30
          s_mov_b32 s9, s31
          {XLOAD}
          s_mov_b32 s4, s52
          s_mov_b32 s5, s53
          s_mov_b32 s6, {256*MB}
          s_mov_b32 s7, 0x20000
          s_mov_b32 s12, s44
          s_mov_b32 s13, s45
          s_mov_b32 s14, {512*2752}
          s_mov_b32 s15, 0x20000
          s_mov_b32 s96, s46
          s_mov_b32 s97, s47
          s_mov_b32 s98, {512*2752}
          s_mov_b32 s99, 0x20000
          s_mov_b32 s24, s48
          s_mov_b32 s25, s49
          s_mov_b32 s26, {1376*1024}
          s_mov_b32 s27, 0x20000""")
    def w1addr():
        A(f"""s_lshl_b32 s82, s32, 5
          s_lshl_b32 s83, s37, 3
          s_add_u32 s82, s82, s83
          v_add_u32 v170, s82, v3
          v_mul_u32_u24 v170, 2752, v170
          s_mul_i32 s83, s33, 11
          v_add_u32 v171, s83, v2
          v_lshl_add_u32 v174, v171, 4, v170
          v_cmp_gt_u32 vcc, 172, v171
          v_cmp_gt_u32 s[84:85], 11, v2
          v_mov_b32 v172, 0x7f000000
          s_and_b64 vcc, vcc, s[84:85]
          v_cndmask_b32 v174, v172, v174, vcc
          v_add_u32 v175, {4*2752}, v174""")
    def w2addr():
        A("""v_lshrrev_b32 v41, 3, v0
             v_and_b32 v42, 1, v41
             v_lshl_add_u32 v40, v3, 3, v42
             v_and_b32 v42, 7, v0
             v_lshlrev_b32 v42, 4, v42
             v_lshl_add_u32 v40, v40, 10, v42
             v_lshl_add_u32 v41, v41, 10, v42
             s_add_u32 s2, s40, 256""")
        for G, dst in (("s40", 46), ("s2", 47)):
            A(f"""s_mul_i32 s82, {G}, 5958
                  s_lshr_b32 s82, s82, 16
                  s_mul_i32 s83, s82, 11
                  s_sub_u32 s83, {G}, s83
                  s_lshr_b32 s84, s82, 2
                  s_and_b32 s82, s82, 3
                  s_mul_i32 s82, s82, 352
                  s_lshl_b32 s84, s84, 7
                  s_lshr_b32 s85, s83, 1
                  s_mul_i32 s85, s85, 88
                  s_and_b32 s86, s83, 1
                  s_lshl_b32 s86, s86, 5
                  s_add_u32 s85, s85, s86
                  s_lshl_b32 s86, s37, 1
                  s_add_u32 s85, s85, s86
                  s_lshl_b32 s86, s83, 2
                  s_add_u32 s86, s86, s37
                  s_sub_u32 s86, s86, 32
                  s_mul_i32 s87, s86, 43
                  s_lshr_b32 s87, s87, 7
                  s_mul_i32 s87, s87, 64
                  s_lshl_b32 s86, s86, 3
                  s_add_u32 s86, s86, s87
                  s_add_u32 s86, s86, 64
                  s_cmp_ge_u32 s83, 8
                  s_cselect_b32 s85, s86, s85
                  s_cselect_b64 vcc, -1, 0
                  s_add_u32 s82, s82, s85
                  s_lshl_b32 s82, s82, 10
                  s_add_u32 s82, s82, s84
                  v_cndmask_b32 v{dst}, v40, v41, vcc
                  v_add_u32 v{dst}, s82, v{dst}""")
    A(f"""s_lshl_b32 s82, s36, 13
          s_lshl_b32 s83, s37, 8
          s_add_u32 s82, s82, s83
          s_add_u32 s66, s82, {ST}
          s_lshl_b32 s82, s37, 19
          s_lshl_b32 s83, s36, 11
          s_add_u32 s82, s82, s83
          s_lshl_b32 s83, s35, 8
          s_add_u32 s82, s82, s83
          s_add_u32 s67, s82, {Y}
          s_lshl_b32 s82, s37, 15
          s_lshr_b32 s83, s35, 1
          s_lshl_b32 s83, s83, 13
          s_add_u32 s82, s82, s83
          s_lshl_b32 s83, s36, 1
          s_and_b32 s84, s35, 1
          s_add_u32 s83, s83, s84
          s_lshr_b32 s84, s83, {GFS}
          s_lshl_b32 s84, s84, 7
          s_add_u32 s82, s82, s84
          s_and_b32 s83, s83, {(1 << GFS) - 1}
          s_lshl_b32 s83, s83, 2
          s_add_u32 s82, s82, s83
          s_add_u32 s68, s82, {GF}
          s_lshl_b32 s82, s40, 7
          s_lshl_b32 s83, s37, 4
          s_add_u32 s82, s82, s83
          s_add_u32 s74, s82, {CF}
          s_lshl_b32 s82, s35, 10
          s_add_u32 s82, s82, s66
          v_lshlrev_b32 v5, 7, v0
          v_add_u32 v5, s82, v5
          v_mov_b32 v6, s74
          v_cmp_gt_u32 vcc, 2, v0
          s_mov_b32 s64, {f2u(1/512)}
          v_cndmask_b32 v5, v6, v5, vcc
          s_mov_b64 exec, 7
          buffer_load_dword v168, v5, s[4:7], 0 offen sc1
          s_mov_b64 exec, -1""")
    w1addr()
    A(f"""buffer_load_dwordx4 v[144:147], v174, s[12:15], 0 offen
          buffer_load_dwordx4 v[148:151], v174, s[96:99], 0 offen
          buffer_load_dwordx4 v[152:155], v175, s[12:15], 0 offen
          buffer_load_dwordx4 v[156:159], v175, s[96:99], 0 offen
          v_lshrrev_b32 v37, 5, v0
          v_lshlrev_b32 v245, 4, v2
          v_lshl_add_u32 v245, v37, 3, v245
          v_lshlrev_b32 v5, 4, v2
          v_lshl_add_u32 v5, v3, 10, v5
          s_mul_i32 s82, s37, {16*160}
          s_add_u32 s82, s82, {IB}
          v_mul_u32_u24 v6, 160, v2
          v_lshl_add_u32 v6, v3, 3, v6
          v_add_u32 v6, s82, v6
          v_add_u32 v244, s82, v244
          v_lshrrev_b32 v32, 2, v2
          v_lshl_add_u32 v33, v3, 2, v32
          v_and_b32 v34, 3, v2
          v_mul_u32_u24 v7, 160, v33
          v_lshl_add_u32 v7, v34, 3, v7
          v_add_u32 v7, {IB}, v7
          v_lshrrev_b32 v8, 1, v2
          v_lshlrev_b32 v8, 16, v8
          v_and_b32 v35, 1, v2
          v_lshl_add_u32 v8, v35, 4, v8
          v_lshl_add_u32 v8, v3, 5, v8""")
    A(f"""s_getreg_b32 s3, hwreg(HW_REG_XCC_ID, 0, 4)
          s_waitcnt lgkmcnt(0)
          s_mul_i32 s28, s42, 0x9E3779B1
          s_add_u32 s28, s28, 0x7F4A7C15
          s_mov_b32 s29, s28
          s_add_u32 s3, s3, s28
          v_mov_b32 v30, s28
          v_mov_b32 v236, s3
          s_lshl_b32 s82, s40, 7
          s_add_u32 s38, s82, {CX}""")
    if ts:
        A("v_mov_b32 v190, 0\nv_writelane_b32 v190, s100, 62")

    def late_setup():
        A(f"""s_lshr_b32 s82, s33, 2
          s_and_b32 s82, s82, 1
          s_lshl_b32 s82, s82, 5
          s_add_u32 s43, s36, s82
          s_sub_u32 s82, 64, s43
          s_cmp_le_u32 s43, 31
          s_cselect_b32 s41, s43, s82
          s_and_b32 s41, s41, 31
          s_and_b32 s82, s33, 3
          s_lshl_b32 s82, s82, 9
          s_add_u32 s55, s43, s82
          s_lshr_b32 s82, s41, 3
          s_lshl_b32 s82, s82, 15
          s_lshl_b32 s83, s37, 13
          s_add_u32 s82, s82, s83
          s_add_u32 s69, s82, {GF}
          s_lshl_b32 s82, s41, 16
          s_lshl_b32 s83, s37, 9
          s_add_u32 s82, s82, s83
          s_add_u32 s70, s82, {Y}
          s_lshl_b32 s82, s37, 7
          s_add_u32 s82, s82, s55
          s_lshl_b32 s71, s82, 10
          s_add_u32 s80, s71, 65536
          s_lshl_b32 s82, s32, 3
          s_lshl_b32 s83, s34, 2
          s_add_u32 s82, s82, s83
          s_add_u32 s82, s82, s37
          s_lshl_b32 s82, s82, 14
          s_lshl_b32 s83, s35, 11
          s_add_u32 s82, s82, s83
          s_add_u32 s72, s82, {XN}
          s_lshl_b32 s82, s32, 13
          s_lshl_b32 s83, s34, 12
          s_add_u32 s82, s82, s83
          s_lshl_b32 s83, s37, 10
          s_add_u32 s82, s82, s83
          s_add_u32 s77, s82, {PR}
          s_lshl_b32 s82, s40, 9
          s_lshl_b32 s83, s37, 7
          s_add_u32 s82, s82, s83
          s_add_u32 s0, s82, {PR}
          s_lshr_b32 s82, s40, 1
          s_lshl_b32 s82, s82, 14
          s_and_b32 s83, s33, 1
          s_lshl_b32 s83, s83, 7
          s_add_u32 s81, s82, s83
          s_lshl_b32 s83, s37, 12
          s_add_u32 s82, s81, s83
          s_add_u32 s73, s82, {XN}
          s_lshl_b32 s82, s32, 11
          s_lshl_b32 s83, s37, 9
          s_add_u32 s82, s82, s83
          s_add_u32 s76, s82, {CF}
          s_lshl_b32 s82, s32, 17
          s_lshl_b32 s83, s37, 15
          s_add_u32 s82, s82, s83
          s_add_u32 s75, s82, {XN}
          s_mul_i32 s82, s32, {8*45056}
          s_add_u32 s82, s82, {H}
          s_mul_i32 s83, s37, {2*45056}
          s_add_u32 s78, s82, s83
          s_mul_i32 s83, s33, 2816
          s_add_u32 s78, s78, s83
          s_mul_i32 s83, s34, {4*45056}
          s_add_u32 s82, s82, s83
          s_mul_i32 s83, s37, {4*2816}
          s_add_u32 s79, s82, s83
          s_mov_b32 s65, {f2u(LOG2E*LOG2E)}
          s_mov_b32 s30, s65
          s_mov_b32 s31, s65
          v_lshrrev_b32 v32, 2, v2
          v_lshl_add_u32 v33, v3, 2, v32
          v_and_b32 v34, 3, v2
          v_and_b32 v35, 1, v2
          v_lshrrev_b32 v36, 3, v0
          v_and_b32 v37, 7, v0
          v_lshrrev_b32 v9, {GFS}, v0
          v_and_b32 v38, {(1 << GFS) - 1}, v0
          v_lshlrev_b32 v9, 7, v9
          v_lshl_add_u32 v9, v38, 2, v9
          v_add_u32 v10, 65536, v1
          v_add_u32 v11, 114688, v1""")
        for nu in range(3):
            A(f"""s_add_u32 s82, s37, {1+nu}
              s_and_b32 s82, s82, 3
              s_mul_i32 s82, s82, 12288
              s_add_u32 s82, s82, {RB + 4096*nu}
              v_add_u32 v{12+nu}, s82, v1""")
        A(f"""s_mul_i32 s82, s37, 12288
          s_add_u32 s82, s82, {RB}
          v_add_u32 v15, s82, v1
          v_and_b32 v38, 1, v3
          v_lshlrev_b32 v16, 2, v38
          v_xor_b32 v16, v16, v37
          v_lshlrev_b32 v16, 4, v16
          v_lshl_add_u32 v16, v36, 11, v16
          s_lshl_b32 s82, s37, 14
          s_add_u32 s82, s82, {YB}
          v_lshrrev_b32 v18, 1, v33
          v_lshlrev_b32 v18, 7, v18
          v_lshl_add_u32 v18, v38, 6, v18
          v_and_b32 v38, 1, v33
          v_lshl_add_u32 v18, v38, 4, v18
          v_lshrrev_b32 v38, 1, v34
          v_lshl_add_u32 v18, v38, 5, v18
          v_lshl_add_u32 v18, v35, 3, v18
          v_add_u32 v18, s82, v18
          v_xor_b32 v17, 64, v18
          v_mul_u32_u24 v19, 1032, v2
          v_lshl_add_u32 v19, v3, 3, v19
          s_lshl_b32 s82, s37, 8
          s_and_b32 s83, s37, 1
          s_lshl_b32 s83, s83, 5
          s_add_u32 s82, s82, {ZB}
          s_add_u32 s84, s82, s83
          s_xor_b32 s83, s83, 32
          s_add_u32 s85, s82, s83
          v_add_u32 v20, s85, v19
          v_add_u32 v19, s84, v19
          v_and_b32 v38, 1, v3
          v_lshlrev_b32 v21, 6, v33
          v_lshl_add_u32 v21, v38, 5, v21
          v_lshl_add_u32 v21, v34, 3, v21
          s_mul_i32 s82, s37, 4128
          s_add_u32 s82, s82, {ZB}
          v_xor_b32 v22, 32, v21
          v_add_u32 v21, s82, v21
          v_add_u32 v22, s82, v22
          v_lshrrev_b32 v39, 1, v3
          v_lshl_add_u32 v39, v2, 1, v39
          v_lshl_add_u32 v23, v38, 5, v39
          v_lshlrev_b32 v23, 4, v23
          v_and_b32 v27, 1, v32
          v_xor_b32 v27, v27, v39
          v_lshlrev_b32 v27, 4, v27
          v_lshl_add_u32 v27, v38, 3, v27
          v_add_u32 v27, s82, v27
          v_lshrrev_b32 v28, 1, v37
          v_mul_u32_u24 v28, 4128, v28
          v_and_b32 v38, 1, v37
          v_lshl_add_u32 v28, v38, 10, v28
          v_lshl_add_u32 v28, v36, 4, v28
          s_lshl_b32 s82, s37, 8
          s_add_u32 s82, s82, {ZB}
          v_add_u32 v28, s82, v28
          v_xor_b32 v31, 16, v28
          v_lshlrev_b32 v29, 8, v36
          v_lshl_add_u32 v29, v37, 4, v29
          v_lshlrev_b32 v238, 7, v3
          v_lshl_add_u32 v239, v35, 4, v238
          s_lshl_b32 s82, s34, 5
          v_add_u32 v239, s82, v239
          v_lshl_add_u32 v238, v34, 4, v238
          v_lshrrev_b32 v241, 1, v2
          v_lshlrev_b32 v241, 7, v241
          v_lshl_add_u32 v241, v35, 3, v241
          v_add_u32 v242, s54, v1
          v_add_u32 v243, 81920, v242
          s_lshl_b32 s47, s37, 10
          v_lshlrev_b32 v4, 16, v2
          v_lshl_add_u32 v4, v3, 4, v4
          v_add_u32 v4, s39, v4""")
        for k in range(3):
            A(f"""v_add_u32 v36, {4*k}, v3
              v_mul_u32_u24 v37, 43, v36
              v_lshrrev_b32 v37, 7, v37
              v_mul_u32_u24 v38, 3, v37
              v_sub_u32 v36, v36, v38
              v_mul_u32_u24 v37, 2816, v37
              v_lshl_add_u32 v37, v36, 8, v37
              v_lshl_add_u32 v{24+k}, v2, 4, v37""")

    def seq_consts():
        A(f"""s_lshl_b32 s82, s37, 4
              v_add_u32 v60, s82, v2
              v_lshrrev_b32 v61, 1, v60
              v_cmp_eq_u32 vcc, 1, v60
              v_and_b32 v62, 1, v60
              v_cvt_f32_u32 v63, v3
              v_cndmask_b32 v61, v61, 32, vcc
              v_cndmask_b32 v62, v62, 0, vcc
              v_and_b32 v60, 1, v61
              v_cvt_f32_u32 v61, v61
              v_cvt_f32_u32 v62, v62
              v_mul_f32 v61, {f2u(1/64)}, v61
              v_mul_f32 v62, {f2u(0.25)}, v62
              v_mul_f32 v63, {f2u(8.0)}, v63
              v_fma_f32 v62, v61, v63, v62
              v_mul_u32_u24 v60, 0x8000, v60
              v_lshl_or_b32 v60, v60, 16, v60""")
        for ks in range(2):
            for pr in range(2):
                for b in range(2):
                    A(f"""v_fmamk_f32 v{136+b}, v61, {f2u(float(ks + 2*(2*pr+b)))}, v62
                          v_cos_f32 v{136+b}, v{136+b}""")
                A(f"""v_cvt_pk_bf16_f32 v{88+4*ks+pr}, v136, v137
                      v_xor_b32 v{90+4*ks+pr}, v60, v{88+4*ks+pr}""")

    def tile_stats():
        A("""v_pk_add_f32 v[60:61], v[64:65], v[66:67]
             v_pk_mul_f32 v[62:63], v[64:65], v[64:65]
             v_pk_fma_f32 v[62:63], v[66:67], v[66:67], v[62:63]""")
        for z in range(2, 8):
            A(f"""v_pk_add_f32 v[60:61], v[60:61], v[{64+2*z}:{65+2*z}]
                  v_pk_fma_f32 v[62:63], v[{64+2*z}:{65+2*z}], v[{64+2*z}:{65+2*z}], v[62:63]""")
        A("""v_add_f32 v48, v60, v61
             v_add_f32 v49, v62, v63""")
        qreduce(48, 49)
        A("v_mov_b32 v49, s28")

    def seq_pass1(img, extra_stores=None):
        for l in finish_stats(48, 49, 60): A(l)
        for z in range(8):
            A(normalize(64+2*z, 60))
            A(f"v_cvt_pk_bf16_f32 v{128+z}, v{64+2*z}, v{65+2*z}")
            if z & 1: A(f"ds_write_b64 {img}, v[{127+z}:{128+z}] offset:{32*(z>>1)}")
        A("""s_waitcnt lgkmcnt(0)
             s_barrier""")
        A.lg = []
        for m in range(4):
            for ks in range(2):
                for hh in range(2):
                    r = 96 + 8*m + 4*ks + 2*hh
                    A(f"ds_read_b64_tr_b16 v[{r}:{r+1}], v7 offset:{ks*5120+hh*2560+32*m}", ("p1", m))
        if extra_stores: extra_stores()
        for m in range(4):
            A.wait_lg(("p1", m))
            A(f"{MF} v[{32+4*m}:{35+4*m}], v[{96+8*m}:{99+8*m}], v[88:91], 0")
            A(f"{MF} v[{32+4*m}:{35+4*m}], v[{100+8*m}:{103+8*m}], v[92:95], v[{32+4*m}:{35+4*m}]")
        for z in range(8):
            A(f"v_cvt_pk_bf16_f32 v{128+z}, v{32+2*z}, v{33+2*z}")
            if z == 3: A("buffer_store_dwordx4 v[128:131], v8, s[4:7], s67 offen sc1")
        A("buffer_store_dwordx4 v[132:135], v8, s[4:7], s67 offen offset:128 sc1")

    seq_consts()
    A("""s_mov_b32 s82, 0x3f803f80
         s_waitcnt vmcnt(21)""")
    TS(0)
    for z in range(8):
        A(f"""v_lshlrev_b32 v{64+2*z}, 16, v{128+z}
              v_and_b32 v{65+2*z}, 0xffff0000, v{128+z}""")
    for z in range(16):
        A(f"s_waitcnt vmcnt({20 - z})")
        for k in range(4):
            r = xr(z) + k; first = z == 0 and k == 0
            A(f"""v_dot2_f32_bf16 v48, v{r}, s82, {0 if first else "v48"}
                  v_dot2_f32_bf16 v49, v{r}, v{r}, {0 if first else "v49"}""")
    A("""s_nop 2
         v_add_f32_dpp v48, v48, v48 quad_perm:[1,0,3,2] row_mask:0xf bank_mask:0xf
         v_add_f32_dpp v49, v49, v49 quad_perm:[1,0,3,2] row_mask:0xf bank_mask:0xf
         v_add_f32_dpp v48, v48, v48 quad_perm:[2,3,0,1] row_mask:0xf bank_mask:0xf
         v_add_f32_dpp v49, v49, v49 quad_perm:[2,3,0,1] row_mask:0xf bank_mask:0xf""")
    TS(2)
    seq_pass1("v244")
    A("""v_lshrrev_b32 v32, 2, v2
         v_and_b32 v34, 3, v2""")
    A(f"""s_lshl_b32 s82, s37, 12
          v_lshlrev_b32 v40, 5, v0
          v_add_u32 v40, s82, v40
          v_lshlrev_b32 v43, 9, v32
          v_lshl_add_u32 v43, v3, 5, v43
          v_lshl_add_u32 v43, v34, 3, v43
          v_add_u32 v43, s82, v43
          s_mul_i32 s54, s33, 180224
          s_add_u32 s54, s54, {W1F}
          s_lshl_b32 s84, s37, 8
          s_add_u32 s83, s54, s84
          s_lshl_b32 s85, s32, 12
          s_add_u32 s85, s85, s83
          s_add_u32 s86, s85, 114688
          s_mul_i32 s87, s32, 3072
          s_add_u32 s87, s87, s83
          s_add_u32 s87, s87, 65536""")
    for rq in range(2):
        b = 144 + 8*rq
        A(f"""s_waitcnt vmcnt({4 - 2*rq})
              v_swap_b32 v{b+1}, v{b+4}
              v_swap_b32 v{b+3}, v{b+5}
              v_swap_b32 v{b+2}, v{b+4}
              v_swap_b32 v{b+5}, v{b+6}
              ds_write_b128 v40, v[{b}:{b+3}] offset:{2048*rq}
              ds_write_b128 v40, v[{b+4}:{b+7}] offset:{2048*rq+16}""")
    A("s_waitcnt lgkmcnt(0)")
    for z in range(3):
        A(f"""ds_read_b64_tr_b16 v[{144+4*z}:{145+4*z}], v43 offset:{128*z}
              ds_read_b64_tr_b16 v[{146+4*z}:{147+4*z}], v43 offset:{128*z+2048}""")
    A("""s_waitcnt lgkmcnt(4)
         buffer_store_dwordx4 v[144:147], v5, s[4:7], s85 offen sc1
         s_waitcnt lgkmcnt(2)
         buffer_store_dwordx4 v[148:151], v5, s[4:7], s86 offen sc1
         s_waitcnt lgkmcnt(0)
         s_mov_b32 exec_hi, 0xffff
         buffer_store_dwordx4 v[152:155], v5, s[4:7], s87 offen sc1
         s_mov_b32 exec_hi, -1""")
    A("s_waitcnt vmcnt(3)")
    gflag("s68")
    TS(3)
    A("""s_cmp_eq_u32 s37, 0
         s_cselect_b64 exec, 1, 0
         buffer_store_dword v236, off, s[4:7], s38 offset:16 sc1
         s_mov_b64 exec, -1""")
    w2addr()
    A("""buffer_load_dwordx4 v[176:179], v46, s[24:27], 0 offen
         buffer_load_dwordx4 v[180:183], v47, s[24:27], 0 offen""")
    A(f"""s_lshl_b32 s82, s37, 2
          s_add_u32 s1, s82, s38
          s_mov_b32 s12, s50
          s_mov_b32 s13, s51
          s_mov_b32 s14, {2*MB}""")
    late_setup()
    A("s_waitcnt vmcnt(3)")
    gflag("s1")

    def layer(L):
        nts[0] = 4
        XS = "" if WARM & (8 if L == 0 else 1) else "sc1"
        HS = "" if (WARM & 2 and L == 1) else "sc1"
        D = dict(GPB=0, LSTEP=5, EVL=16, BURSTR=2, EVA=14, EVP=32, EVC=48, NPRE=7, EVR=15, GR=10, GFB=11, POLLB=26, GB=24, BURST=9, AGGA=0, AGGR=0)
        GPB, LSTEP, EVL, BURSTR, EVA, EVP, EVC, NPRE, EVR, GR, GF_B, POLLB, GB, BURST, AGGA, AGGR = [P(f"{k}{L}", P(k, v)) for k, v in D.items()]
        B2, BA, TC, TSN, BB = 192, 200, 206, 214, 222
        A(f"""s_cmp_eq_u32 s43, 32
              s_cselect_b32 s84, 0, 1.0
              s_cselect_b32 s85, 1.0, 0
              s_cmp_gt_u32 s43, 32
              s_cselect_b32 s86, -1.0, 1.0
              s_and_b32 s82, s43, 31
              s_cmp_eq_u32 s82, 0
              s_cselect_b32 s86, 0, s86
              v_lshrrev_b32 v32, 1, v2
              v_lshlrev_b32 v32, 6, v32
              v_add_u32 v32, s55, v32
              v_cvt_f32_u32 v32, v32
              v_and_b32 v33, 1, v2
              v_cvt_f32_u32 v39, v33
              v_cvt_f32_u32 v34, v3
              v_cvt_f32_u32 v40, v2
              v_mul_f32 v32, {f2u(1/2048)}, v32
              v_mul_f32 v39, {f2u(0.25)}, v39
              v_add_f32 v35, v34, v34
              v_fma_f32 v39, v32, v35, v39
              v_mul_u32_u24 v33, 0x8000, v33
              v_lshl_or_b32 v33, v33, 16, v33
              v_mul_f32 v34, 4.0, v34""")
        for ks in range(2):
            for z in range(4):
                A(f"""v_fmamk_f32 v35, v32, {f2u(float(16*ks + 8*(z>>1) + (z&1)))}, v39
                      v_cos_f32 v36, v35
                      v_sin_f32 v37, v35
                      v_mul_f32 v38, s85, v36
                      v_mul_f32 v36, s84, v36
                      v_fma_f32 v37, v37, s86, v38
                      v_cvt_pk_bf16_f32 v{B2+4*ks+z}, v36, v37""")
        def sincos4(scale, cdst, sdst, add=0):
            A(f"""v_mul_f32 v32, {f2u(scale)}, v40
                  v_mul_f32 v39, v32, v34""")
            for j in range(4):
                A(f"""v_fmamk_f32 v35, v32, {f2u(float(j+add))}, v39
                      v_cos_f32 v{cdst+j}, v35
                      v_sin_f32 v{sdst+j}, v35""")
        sincos4(1/16, 44, 48)
        A(f"""v_cvt_pk_bf16_f32 v{BA+2}, v44, v45
              v_cvt_pk_bf16_f32 v{BA+3}, v46, v47
              v_cvt_pk_bf16_f32 v{BA+4}, v48, v49
              v_cvt_pk_bf16_f32 v{BA+5}, v50, v51
              v_xor_b32 v{BA}, 0x80008000, v{BA+4}
              v_xor_b32 v{BA+1}, 0x80008000, v{BA+5}""")
        sincos4(1/512, TC, TSN)
        sincos4(1/512, TC+4, TSN+4, 16)
        sincos4(1/32, 44, 48)
        for ks in range(2):
            A(f"""v_cvt_pk_bf16_f32 v{BB+4*ks}, v{44+4*ks}, v{45+4*ks}
                  v_cvt_pk_bf16_f32 v{BB+4*ks+1}, v{46+4*ks}, v{47+4*ks}
                  v_xor_b32 v{BB+4*ks+2}, v33, v{BB+4*ks}
                  v_xor_b32 v{BB+4*ks+3}, v33, v{BB+4*ks+1}""")
        for z in range(8):
            A(f"v_xor_b32 v{BB+8+z}, 0x80000000, v{BB+z}")
        A(f"""s_mov_b32 s90, s70
              s_lshl_b32 s91, s37, 14
              s_add_u32 s91, s91, {YB}
              s_mov_b32 m0, s91
              s_lshl_b32 s92, s32, 11
              s_add_u32 s92, s92, {CX + 16}
              v_lshlrev_b32 v41, 7, v2""")
        if L == 0:
            A(f"""v_add_u32 v42, s91, v1
                  v_lshrrev_b32 v44, 2, v2
                  v_and_b32 v45, 3, v2
                  v_lshlrev_b32 v44, 7, v44
                  v_lshl_add_u32 v44, v45, 4, v44
                  v_lshrrev_b32 v45, 1, v3
                  v_lshl_add_u32 v44, v45, 6, v44
                  v_and_b32 v45, 1, v3
                  v_lshl_add_u32 v44, v45, 3, v44
                  v_add_u32 v44, s91, v44
                  s_waitcnt vmcnt(1)
                  ds_write_b128 v42, v[176:179]
                  ds_write_b128 v42, v[180:183] offset:1024
                  s_waitcnt lgkmcnt(0)
                  ds_read_b64_tr_b16 v[176:177], v44
                  ds_read_b64_tr_b16 v[178:179], v44 offset:512
                  ds_read_b64_tr_b16 v[180:181], v44 offset:1024
                  ds_read_b64_tr_b16 v[182:183], v44 offset:1536
                  s_waitcnt lgkmcnt(0)""")
            A(f"""s_lshl_b32 s93, s33, 7
                  s_add_u32 s93, s93, {CX}
                  v_lshlrev_b32 v184, 11, v2
                  v_lshl_add_u32 v184, v3, 2, v184""")
        if L == 1 and WARM & 3: warm(44 if WARM & 2 else 0)
        TS()
        vpoll(f"L_pG{L}", "buffer_load_dword v36, v9, s[4:7], s69 offen sc1", [36], sleep=GSLEEP)
        TS()
        for z in range(16):
            if z and z % 4 == 0: A("s_add_u32 m0, m0, 4096")
            A(f"buffer_load_dwordx4 v16, s[4:7], s90 offen offset:{(z%4)*1024} {LY} lds", ("y", z >> 2))
            if z < 15: A(f"s_add_u32 s90, s90, {16384 - 1024}" if z % 4 != 3 else f"s_sub_u32 s90, s90, {3*(16384 - 1024) - 128}")
        A("s_barrier")
        for r in range(2):
            A(f"buffer_load_dwordx4 v[{160+4*r}:{163+4*r}], v23, s[8:11], s{71 if r == 0 else 80} offen sc1", "res")
        if L == 0:
            A("buffer_load_dword v168, v41, s[4:7], s92 offen sc1", "res")
            A("buffer_load_dword v185, v184, s[4:7], s93 offen sc1", "gw")
        A.lg = []
        def p2mfma(mt):
            A.wait_lg(("p2", mt))
            A(f"{MF} v[{32+4*mt}:{35+4*mt}], v[{96+8*mt}:{99+8*mt}], v[{B2}:{B2+3}], 0")
            A(f"{MF} v[{32+4*mt}:{35+4*mt}], v[{100+8*mt}:{103+8*mt}], v[{B2+4}:{B2+7}], v[{32+4*mt}:{35+4*mt}]")
        def p2out(m):
            A(f"""v_cvt_pk_bf16_f32 v{64+2*m}, v{32+4*m}, v{33+4*m}
                  v_cvt_pk_bf16_f32 v{65+2*m}, v{34+4*m}, v{35+4*m}""")
            A(f"ds_write_b64 v{19+(m&1)}, v[{64+2*m}:{65+2*m}] offset:{64*(m>>1)}")
        for cg in range(4):
            A.wait_vm(("y", cg))
            if cg == 0: TS()
            for mt in (2*cg, 2*cg+1):
                for ks in range(2):
                    for hh in range(2):
                        r = 96 + 8*mt + 4*ks + 2*hh
                        A(f"ds_read_b64_tr_b16 v[{r}:{r+1}], v{18 - (mt & 1)} offset:{cg*4096+ks*2048+hh*1024}", ("p2", mt))
            if cg >= 1: p2out(2*cg-2); p2out(2*cg-1)
            p2mfma(2*cg); p2mfma(2*cg+1)
            if cg == 3:
                if L == 0:
                    A(f"""s_lshl_b32 s82, s40, 12
                          s_lshl_b32 s83, s37, 8
                          s_add_u32 s82, s82, s83
                          s_add_u32 s82, s82, {W2F}
                          s_add_u32 s83, s82, {256*4096}""")
                    A("buffer_store_dwordx4 v[176:179], v5, s[4:7], s82 offen sc1", "w2s")
                    A("""s_cmp_lt_u32 s40, 96
                         s_cselect_b64 exec, -1, 0""")
                    A("buffer_store_dwordx4 v[180:183], v5, s[4:7], s83 offen sc1", "cond")
                    A("s_mov_b64 exec, -1")
        p2out(6); p2out(7)
        if L == 0: check("L_pW", "gw", "v185", "buffer_load_dword v185, v184, s[4:7], s93 offen sc1")
        A("""s_waitcnt lgkmcnt(0)
             s_barrier""")
        A.lg = []
        TS()
        for r in range(2):
            for h in range(2):
                for cc in range(2):
                    reg = 96 + 8*r + 4*h + 2*cc
                    A(f"ds_read_b64_tr_b16 v[{reg}:{reg+1}], v{21+h} offset:{r*2064+cc*1032}", ("sa", r))
        wnext = 0 if L == 0 else 19
        side = wgroup(wnext, wnext + (NSIDE0 if L == 0 else NSIDE1), "s90", "s91")
        wnext += len(side)
        mark = len(A.lines)
        for r in range(2):
            A.wait_lg(("sa", r))
            for h in range(2):
                for c2 in range(2):
                    d = 32 + 16*r + 8*c2 + 4*h
                    b = BA + 2 if c2 == 0 else BA
                    A(f"{MF} v[{d}:{d+3}], v[{96+8*r+4*h}:{99+8*r+4*h}], v[{b}:{b+3}], 0")
        for r in range(2):
            for z in range(4):
                ur, ui = 32 + 16*r + 2*z, 40 + 16*r + 2*z
                A(f"""v_pk_mul_f32 v[64:65], v[{ui}:{ui+1}], v[{TSN+2*z}:{TSN+2*z+1}]
                      v_pk_mul_f32 v[66:67], v[{ur}:{ur+1}], v[{TSN+2*z}:{TSN+2*z+1}]
                      v_pk_fma_f32 v[64:65], v[{ur}:{ur+1}], v[{TC+2*z}:{TC+2*z+1}], v[64:65]
                      v_pk_fma_f32 v[66:67], v[{ui}:{ui+1}], v[{TC+2*z}:{TC+2*z+1}], v[66:67] neg_lo:[0,0,1] neg_hi:[0,0,1]
                      v_cvt_pk_bf16_f32 v{112+8*r+z}, v64, v65
                      v_cvt_pk_bf16_f32 v{116+8*r+z}, v66, v67""")
            for g in range(2):
                d = 80 + 8*r + 4*g
                A(f"{MF} v[{d}:{d+3}], v[{112+8*r}:{115+8*r}], v[{BB+8*g}:{BB+8*g+3}], 0")
            for g in range(2):
                d = 80 + 8*r + 4*g
                A(f"{MF} v[{d}:{d+3}], v[{116+8*r}:{119+8*r}], v[{BB+8*g+4}:{BB+8*g+7}], v[{d}:{d+3}]")
        A("RESWAIT")
        nres = A.vm_count("res")
        for r in range(2):
            A(f"""v_permlane16_swap_b32 v{160+4*r}, v{162+4*r}
                  v_permlane16_swap_b32 v{161+4*r}, v{163+4*r}""")
        for r in range(2):
            for z in range(4):
                A(f"""v_lshlrev_b32 v{128+8*r+2*z}, 16, v{160+4*r+z}
                      v_and_b32 v{129+8*r+2*z}, 0xffff0000, v{160+4*r+z}""")
        if L == 0:
            A(f"""v_cmp_ne_u32 vcc, s3, v168
                  s_cmp_eq_u64 vcc, {-2 if slow else 0}
                  s_cselect_b64 s[60:61], 1, 0
                  s_cselect_b64 s[62:63], 0, 1
                  s_cselect_b32 s56, 0xffff, 0
                  s_cselect_b32 s57, 0xffff, 0
                  s_cselect_b32 s58, 0, 0xffff
                  s_cselect_b32 s59, 0, 0xffff""")
        for r in range(2):
            x = 80 + 8*r
            for z in range(4): A(f"v_pk_add_f32 v[{x+2*z}:{x+2*z+1}], v[{x+2*z}:{x+2*z+1}], v[{x+48+2*z}:{x+49+2*z}]")
            A(f"""v_pk_add_f32 v[{32+4*r}:{33+4*r}], v[{x}:{x+1}], v[{x+2}:{x+3}]
                  v_pk_mul_f32 v[{34+4*r}:{35+4*r}], v[{x}:{x+1}], v[{x}:{x+1}]""")
            for z in range(1, 4):
                if z > 1: A(f"v_pk_add_f32 v[{32+4*r}:{33+4*r}], v[{32+4*r}:{33+4*r}], v[{x+2*z}:{x+2*z+1}]")
                A(f"v_pk_fma_f32 v[{34+4*r}:{35+4*r}], v[{x+2*z}:{x+2*z+1}], v[{x+2*z}:{x+2*z+1}], v[{34+4*r}:{35+4*r}]")
            A(f"""v_add_f32 v{40+2*r}, v{32+4*r}, v{33+4*r}
                  v_add_f32 v{41+2*r}, v{34+4*r}, v{35+4*r}""")
        A("""v_permlane32_swap_b32 v40, v42
             v_permlane32_swap_b32 v41, v43
             v_add_f32 v40, v40, v42
             v_add_f32 v41, v41, v43
             DGAP
             v_permlane16_swap_b32 v40, v41
             v_add_f32 v40, v40, v41""")
        for sh in (8, 4, 2, 1):
            A(f"DGAP\nv_add_f32_dpp v40, v40, v40 row_ror:{sh} row_mask:0xf bank_mask:0xf")
        A("""v_mov_b32 v41, v40
             DGAP
             v_permlane16_swap_b32 v40, v41""")
        for l in finish_stats(40, 41, 44, LOG2E): A(l)
        A("""v_mov_b32 v48, v44
             v_mov_b32 v49, v45
             v_rcp_f32 v46, v44
             v_permlane32_swap_b32 v44, v48
             v_permlane32_swap_b32 v45, v49
             v_mov_b32 v47, v40""")
        for r in range(2):
            for z in range(4):
                x = 80 + 8*r + 2*z
                A(normalize(x, 44+4*r))
                A(f"v_cvt_pk_bf16_f32 v{64+4*r+z}, v{x}, v{x+1}")
                if z & 1: A(f"ds_write_b64 v27, v[{63+4*r+z}:{64+4*r+z}] offset:{1024*r+512*(z>>1)}")
        body = A.lines[mark:]; del A.lines[mark:]
        first_gap = min(k for k, l in enumerate(body) if "DGAP" in l)
        ngap = NGAP
        step = (first_gap - 4) // (len(side) - ngap); issued = 0; held = None; seen_gap = 0
        for k, l in enumerate(body):
            if "RESWAIT" in l: A(f"s_waitcnt vmcnt({issued + nres})"); continue
            if "DGAP" in l:
                seen_gap += 1
                if ngap and (seen_gap % 2 == 1 or NGAP > 3): put(side.pop(0)); ngap -= 1
                continue
            A.lines.append(l)
            if held and "s_cmp" not in l and "s_cselect" not in l: A(held[1], held[2]); issued += 1; held = None
            elif k % step == 1 and len(side) > ngap and k < first_gap and "s_cmp" not in l and "s_cselect" not in l and "v_cmp" not in l:
                held = side.pop(0); A(held[0][0])
        assert held is None
        assert not side
        if L == 0:
            A.wait_vm("w2s")
            A("s_add_u32 s1, s1, 32")
            gflag("s1")
        A(f"""s_mov_b32 exec_lo, 1
              s_mov_b32 exec_hi, 1
              buffer_store_dwordx2 v[46:47], v245, s[4:7], s0 offen {XS}
              s_mov_b64 exec, -1
              s_waitcnt lgkmcnt(0)
              s_barrier
              ds_read_b128 v[48:51], v28
              ds_read_b128 v[52:55], v31 offset:128
              s_waitcnt lgkmcnt(1)
              buffer_store_dwordx4 v[48:51], v29, s[4:7], s73 offen {XS}
              s_waitcnt lgkmcnt(0)
              buffer_store_dwordx4 v[52:55], v29, s[4:7], s73 offen offset:2048 {XS}""")
        TS()
        TSflush()
        A(f"""s_mov_b32 s44, s75
              s_add_u32 s45, s75, 16384
              s_add_u32 s46, s78, 45056
              """)
        for nu in range(4):
            A(f"""s_add_u32 s82, s37, {1+nu}
                  s_and_b32 s82, s82, 3
                  s_mul_i32 s82, s82, 45056
                  s_add_u32 s{96+nu}, s79, s82""")
        if L == 0:
            A(f"""s_lshl_b32 s82, s35, 2
                  s_add_u32 s82, s82, s37
                  s_mul_i32 s82, s82, 11
                  v_min_u32 v196, 10, v2
                  v_add_u32 v196, s82, v196
                  v_and_b32 v196, 255, v196
                  v_lshlrev_b32 v196, 7, v196
                  v_lshl_add_u32 v196, v3, 2, v196
                  s_mov_b32 s2, {CX + 32}""")
        A(f"""s_lshl_b32 s82, s32, 1
              s_add_u32 s82, s82, s34
              s_add_u32 s82, s82, s35
              s_and_b32 s42, s82, {3 if ROTH else 0}
              s_mul_i32 s83, s42, 2816""")
        for nu in range(4): A(f"s_add_u32 s{96+nu}, s{96+nu}, s83")
        for k in range(1, 4):
            A(f"""s_add_u32 s82, s42, {k}
                  s_cmp_eq_u32 s82, 4
                  s_cselect_b32 s82, -3, 1
                  s_mul_i32 s{83+k}, s82, 2816""")
        A(f"""s_add_u32 s82, s42, 3
              s_and_b32 s82, s82, 3
              s_mul_i32 s87, s82, 2816
              s_mov_b32 s88, s83""")
        if EARLY & 1: A.lg = []
        else: A.vm0(); A.lg = []
        cflag(0)
        for _ in range(NC1 if L == 0 else NC1B): put(witem(wnext)); wnext += 1
        assert wnext <= 35
        put(cpoll_load("v238", 0))
        cpoll_check(f"L_pC1{L}", "v238", 0)
        if "g2" not in sys.argv: TS()

        def xreg(n):
            return f"a[{176+4*n}:{179+4*n}]" if n < 20 else f"v[{128+4*(n-20)}:{131+4*(n-20)}]"
        xq = []
        for kk in range(16):
            for T in range(2):
                pre = [f"s_add_u32 s{44+T}, s{44+T}, 4096"] if (kk % 4 == 0 and kk) else []
                xq.append((pre, f"buffer_load_dwordx4 {xreg(2*kk+T)}, v1, s[4:7], s{44+T} offen offset:{(kk%4)*1024} {LX}", ("xn", kk)))
        PRE = 10
        for it in xq[:PRE]: put(it)
        A("s_barrier")
        frags = []
        for ps, nt in ((0, 4), (1, 3), (2, 4)):
            for kk in range(16):
                for t in range(nt):
                    if ps == 0: addr = ("v1", kk*4096 + t*1024)
                    elif ps == 1: addr = ("v10", kk*3072 + t*1024)
                    elif kk < 12: addr = ("v11", kk*4096 + t*1024)
                    else: addr = ("v10", 16384 + (kk-12)*4096 + t*1024)
                    frags.append((ps, kk, t, addr))
        NF, LOOK = len(frags), 6
        def aread(n):
            ps, kk, t, (va, off) = frags[n]
            r = 96 + 4*(n % 8)
            A(f"ds_read_b128 v[{r}:{r+3}], {va} offset:{off}", ("af", n))
        def acc(ps, t, T): return 32 + 32*(ps & 1) + 8*t + 4*T

        def epi(ps, nt, together=False, packed=False):
            ops, tmp_last, k = [], {}, 0
            for T in range(2):
                cv = []
                for t in range(nt):
                    a = acc(ps, t, T); e = 184 + 2*(k % 3); k += 1
                    b = len(ops); w = tmp_last.get(e, [])
                    if packed:
                        ops += [["t", f"v_exp_f32 v{e}, -v{a}", w], ["t", f"v_exp_f32 v{e+1}, -v{a+1}", w],
                                ["v", f"v_pk_mul_f32 v[{a}:{a+1}], v[{a}:{a+1}], v[{a+2}:{a+3}]", [b, b+1]],
                                ["v", f"v_pk_fma_f32 v[{e}:{e+1}], v[{e}:{e+1}], s[30:31], s[30:31]", [b, b+1]],
                                ["t", f"v_rcp_f32 v{e}, v{e}", [b+3]], ["t", f"v_rcp_f32 v{e+1}, v{e+1}", [b+3]],
                                ["v", f"v_pk_mul_f32 v[{a}:{a+1}], v[{a}:{a+1}], v[{e}:{e+1}]", [b+2, b+4, b+5]],
                                ["v", f"v_cvt_pk_bf16_f32 v{176+4*T+t}, v{a}, v{a+1}", [b+6]]]
                        tmp_last[e] = [b+6]; cv.append(b+7)
                        continue
                    ops += [["t", f"v_exp_f32 v{e}, -v{a}", w], ["t", f"v_exp_f32 v{e+1}, -v{a+1}", w],
                            ["v", f"v_mul_f32 v{a}, v{a}, v{a+2}", [b]], ["v", f"v_mul_f32 v{a+1}, v{a+1}, v{a+3}", [b+1]],
                            ["v", f"v_fma_f32 v{e}, v{e}, s65, s65", [b]], ["v", f"v_fma_f32 v{e+1}, v{e+1}, s65, s65", [b+1]],
                            ["t", f"v_rcp_f32 v{e}, v{e}", [b+4]], ["t", f"v_rcp_f32 v{e+1}, v{e+1}", [b+5]],
                            ["v", f"v_mul_f32 v{a}, v{a}, v{e}", [b+2, b+6]], ["v", f"v_mul_f32 v{a+1}, v{a+1}, v{e+1}", [b+3, b+7]],
                            ["v", f"v_cvt_pk_bf16_f32 v{176+4*T+t}, v{a}, v{a+1}", [b+8, b+9]]]
                    tmp_last[e] = [b+8, b+9]; cv.append(b+10)
                b, so = 176 + 4*T, 78 if T == 0 else 46
                if nt == 4:
                    ops.append(["m", f"buffer_store_dwordx4 v[{b}:{b+3}], v1, s[4:7], s{so} offen offset:{512*ps} {HS}", cv])
                else:
                    n0 = len(ops)
                    ops += [["t", f"v_permlane32_swap_b32 v{b}, v{b+2}", cv], ["t", f"v_permlane32_swap_b32 v{b+1}, v{b+3}", cv],
                            ["t", f"v_permlane16_swap_b32 v{b}, v{b+1}", [n0, n0+1]], ["t", f"v_permlane16_swap_b32 v{b+2}, v{b+3}", [n0, n0+1]],
                            ["m", f"s_mov_b32 exec_hi, 0xffff\nbuffer_store_dwordx4 v[{b}:{b+3}], v1, s[4:7], s{so} offen offset:2048 {HS}\ns_mov_b32 exec_hi, -1", [n0+2, n0+3]]]
            if together:
                ms = [o for o in ops if o[0] == "m"]
                ms[0][2] = ms[0][2] + ms[1][2]
            return ops

        class Fill:
            def __init__(s, ops, tag): s.ops, s.done, s.tag, s.now = ops, {}, tag, 0
            def left(s): return len(s.done) < len(s.ops)
            def take(s, kind):
                for i, (k, text, deps) in enumerate(s.ops):
                    if i in s.done or k != kind: continue
                    if all(d in s.done and s.done[d] < s.now for d in deps):
                        s.done[i] = s.now; A(text, s.tag if k == "m" else None); return True
                return False
            def drain(s, between=None):
                n = 0
                while s.left():
                    s.now += 1
                    if not (s.take("m") or s.take("t") or s.take("v")): raise SystemExit("stuck")
                    s.take("v")
                    n += 1
                    if between: between(n)

        def wait_for(n, vmtag=None):
            parts = []
            if vmtag is not None and vmtag in A.vm: parts.append(f"vmcnt({A.vm_count(vmtag)})")
            if ("af", n) in A.lg: parts.append(f"lgkmcnt({A.lg_count(('af', n))})")
            if parts: A("s_waitcnt " + " ".join(parts))

        def wneed(n):
            ps, kk, t, _ = frags[n]
            return ((0, 65536, 114688)[ps] + kk*(4096, 3072, 4096)[ps] + 1024*t) // 4096
        W = {"vis": wnext - 1, "at": {}}
        N1, N2 = 64, 112
        NFREE = N1 + 34

        def stream(lo, hi, vq, fill, events, extra=False, dense=False, agg=0):
            lastm = lo - 2
            for n in range(lo, hi):
                ps, kk, t, _ = frags[n]
                r = 96 + 4*(n % 8)
                for T in range(2):
                    a = acc(ps, t, T)
                    A(f"{MF} v[{a}:{a+3}], v[{r}:{r+3}], {xreg(2*kk+T)}, " + ("0" if kk == 0 else f"v[{a}:{a+3}]"))
                    if fill: fill.now += 1
                    if T == 0:
                        if vq and vq[0][0]: A(vq[0][0].pop(0))
                        if n + LOOK < NF: aread(n + LOOK)
                        if fill and n >= lo + 2:
                            fill.take("v")
                            if agg & 1: fill.take("v")
                    else:
                        if n + 1 < NF:
                            nps, nkk, nt_, _ = frags[n+1]
                            xt = ("xn", nkk) if (nps == 0 and nt_ == 0) else None
                            need = wneed(n + 1 + LOOK) if n + 1 + LOOK < NF else -1
                            if need > W["vis"] or n + 1 == NFREE:
                                tgt = max([need, W["vis"]] + [j for j, at in W["at"].items() if at <= n - WLAT])
                                assert tgt <= W["vis"] or tgt in W["at"], (L, n, tgt)
                                tags = [t_ for t_ in (xt, ("W", tgt) if tgt > W["vis"] else None) if t_ in A.vm]
                                wait_for(n + 1, min(tags, key=A.vm_count) if tags else None)
                                A("s_barrier"); W["vis"] = tgt
                                if n + 1 == NFREE:
                                    k = max([q + 1 for q, it in enumerate(vq) if isinstance(it[2], tuple) and it[2][0] == "W"] + [0])
                                    vq[k:k] = [witem(j) for j in range(40, 44)]
                            else: wait_for(n + 1, xt)
                            ev = events.get(n + 1)
                            if ev: ev(n + 1)
                        if fill and n >= lo + 2 and n - lastm >= 2 and fill.take("m"): lastm = n
                        elif vq and not vq[0][0] and n - lastm >= (1 if dense and len(vq) > (hi - n) // 2 else 2) and (not fill or not fill.left() or vq[0][2] != "late"):
                            it = vq.pop(0); put(it); lastm = n
                            if isinstance(it[2], tuple) and it[2][0] == "W": W["at"][it[2][1]] = n
                            if extra and fill: fill.take("t") or fill.take("v")
                        elif fill and n >= lo + 2:
                            if not fill.take("t"):
                                fill.take("v"); fill.take("v")
                            elif agg & 2: fill.take("v")
                            if agg & 4: fill.take("t")

        A.lg = []
        for n in range(LOOK): aread(n)
        wait_for(0, ("xn", 0))
        vq = list(xq[PRE:]) + [witem(j) for j in range(wnext, 40)]
        if L == 0: vq.insert(8, ([], "buffer_load_dword v197, v196, s[4:7], s2 offen sc1", "gw2"))
        stream(0, N1, vq, None, {})
        if "g2" not in sys.argv: TS()
        order = [(ks, nu) for ks in (0, 2, 4, 6, 8, 9, 10) for nu in range(4)] + [(ks, nu) for nu in range(4) for ks in (1, 3, 5, 7)]
        def hreg(i):
            if i < 11: return f"v[{192+4*i}:{195+4*i}]"
            if i < 15: return f"v[{160+4*(i-11)}:{163+4*(i-11)}]"
            if i < 16: return "v[96:99]"
            if i < 36: return f"a[{176+4*(i-16)}:{179+4*(i-16)}]"
            return f"v[{128+4*(i-36)}:{131+4*(i-36)}]"
        def hitem(i):
            ks, nu = order[i]; s = f"s{96+nu}"
            if ks < 8:
                return ([f"s_add_u32 {s}, {s}, s{83 + (ks >> 1)}"] if ks >= 2 else ([f"s_add_u32 {s}, {s}, s88"] if ks == 1 else []),
                        f"buffer_load_dwordx4 {hreg(i)}, v1, s[4:7], {s} offen offset:{(ks&1)*1024} {LH}", ("h", i))
            return ([f"s_sub_u32 {s}, {s}, s87"] if ks == 8 else [],
                    f"buffer_load_dwordx4 {hreg(i)}, v{24+ks-8}, s[4:7], {s} offen offset:2048 {LH}", ("h", i))
        w2q = []
        if L == 0:
            A(f"""s_lshl_b32 s49, s35, 2
                  s_add_u32 s49, s49, s37
                  s_mul_i32 s49, s49, 45056
                  s_add_u32 s49, s49, {W2F}
                  s_add_u32 s89, s49, 4096""")
            check("L_pW2", "gw2", "v197", "buffer_load_dword v197, v196, s[4:7], s2 offen sc1")
            for ks in (0, 2, 4, 6, 8, 9, 10, 1, 3, 5, 7):
                for m in range(4):
                    f = 4*ks + m
                    pre = [] if m else [f"s_add_u32 s48, s49, {4096*ks}"]
                    if m == 0 and ks < 8:
                        pre = [f"s_add_u32 s48, s42, {ks >> 1}", "s_and_b32 s48, s48, 3", "s_lshl_b32 s48, s48, 13", f"s_add_u32 s48, s48, s{49 if ks % 2 == 0 else 89}"]
                    w2q.append((pre,
                                f"buffer_load_dwordx4 a[{4*f}:{4*f+3}], v1, s[4:7], s48 offen offset:{m*1024} {LW}", "w2"))
        w2late = w2q[44 - W2LATE:]; w2q = w2q[:44 - W2LATE]
        vq += w2q
        fill = Fill(epi(0, 4), "hA")
        stream(N1, N2, vq, fill, {}, extra=(L == 0), agg=AGGA)
        fill.drain()
        if "g2" not in sys.argv: TS()
        k = max([q + 1 for q, it in enumerate(vq) if isinstance(it[2], tuple) and it[2][0] == "W"] + [0])
        vq[k:k] = [([], "buffer_load_dwordx2 v[246:247], v241, s[4:7], s77 offen sc1", "res"),
                   ([], "buffer_load_dwordx4 v[248:251], v1, s[4:7], s72 offen sc1", "res"),
                   ([], "buffer_load_dwordx4 v[252:255], v1, s[4:7], s72 offen offset:1024 sc1", "res")]
        def evA(n): A.wait_vm("hA"); cflag(4)
        def evP(n): vq.insert(0, cpoll_load("v239", 4))
        def evC(n):
            cpoll_check(f"L_pA{L}", "v239", 4)
            assert not any(it[2] == "res" for it in vq)
            cv = [k for k, o in enumerate(fill.ops) if o[1].startswith("v_cvt")]
            for z in range(8):
                b = len(fill.ops)
                fill.ops += [["v", f"v_lshlrev_b32 v{64+2*z}, 16, v{248+z}", cv], ["v", f"v_and_b32 v{65+2*z}, 0xffff0000, v{248+z}", cv],
                             ["v", f"v_fma_f32 v{64+2*z}, v{64+2*z}, v246, v247", [b]], ["v", f"v_fma_f32 v{65+2*z}, v{65+2*z}, v246, v247", [b+1]]]
            vq.extend(hitem(i) for i in range(NPRE))
        fill = Fill(epi(1, 3, True), "hR")
        ev = {N2 + EVA: evA, N2 + EVP: evP, N2 + EVC: evC}
        if EVR < 0: ev[NF + EVR] = lambda n: (A.wait_vm("hR"), cflag(8))
        stream(N2, NF, vq, fill, ev, extra=(L == 0), dense=(L == 0), agg=AGGR)
        fill.drain()
        while vq: put(vq.pop(0))
        TS()

        hq = [hitem(i) for i in range(NPRE, 44)]
        fill = Fill(epi(2, 4, True, True), "hB")
        def feed(n):
            if n >= EVL and (n - EVL) % LSTEP == 0 and hq[0][2][1] < 16: put(hq.pop(0))
            if n == EVR: (None if EARLY & 2 else A.wait_vm("hR")); cflag(8)
            if sum(1 for i, o in enumerate(fill.ops) if i not in fill.done and o[0] != "m") == 0 and "pollR" not in seen:
                seen.add("pollR"); put(cpoll_load("v239", 8))
        seen = set()
        fill.drain(feed)
        if EARLY & 2: cflag(12)
        if "g2" not in sys.argv: TS()
        def acc2(nu, m): return (32, 48, 80, 64)[nu] + 4*m
        pendw = []
        early = [(s_, mm) for mm in range(4) for s_ in range(2)]
        A.wait_vm(("h", 0))
        for i, (ks, nu) in enumerate(order):
            if i in TSG: TS()
            for m in range(4):
                a = acc2(nu, m)
                c = "0" if (ks == 0 and nu < 3) else f"v[{a}:{a+3}]"
                f = 4*ks + m
                A(f"{MF} v[{a}:{a+3}], a[{4*f}:{4*f+3}], {hreg(i)}, {c}")
                if m == 0 and hq:
                    nxt = hq[0][2][1]
                    if nxt == 16 and i == GR:
                        if "g2" in sys.argv and not TSG: TS()
                        cpoll_check(f"L_pR{L}", "v239", 8)
                        if "g2" in sys.argv and not TSG: TS()
                        for _ in range(BURSTR): put(hq.pop(0))
                    if nxt == 28 and i == GB:
                        if "g2" in sys.argv and not TSG: TS()
                        cpoll_check(f"L_pB{L}", "v239", 12)
                        if "g2" in sys.argv and not TSG: TS()
                        for _ in range(BURST): put(hq.pop(0))
                    if not ((nxt == 16 and i < GR) or (nxt == 28 and i < GB)): put(hq.pop(0))
                    elif nxt == 16 and w2late: put(w2late.pop(0))
                if m == 2 and hq and hq[0][2][1] == 16 and w2late and i < GR: put(w2late.pop(0))
                if m == 1 and hq:
                    for p in hq[0][0]: A(p)
                    hq[0][0].clear()
                if m == 2 and hq and hq[0][2][1] == POLLB and i >= GPB and "pollB" not in seen:
                    seen.add("pollB"); put(cpoll_load("v239", 12))
                if i == 40 and m == 0:
                    A("s_waitcnt lgkmcnt(0)\ns_barrier"); A.lg = []
                if i in (40, 41) and m != 1 and early:
                    for _ in range(2 if m == 2 else 1):
                        s_, mm = early.pop(0); r = 100 + 16*s_ + 4*mm
                        A(f"ds_read_b128 v[{r}:{r+3}], v15 offset:{4096*s_+1024*mm}", ("rd", s_, mm))
                if i in (42, 43):
                    k = 4*(i - 42) + m
                    if k % 2 == 0: A.wait_lg(("rd", 1, k // 2))
                    for z in (2*k, 2*k+1): A(f"v_add_f32 v{100+z}, v{100+z}, v{116+z}")
                if pendw and m == (3 if ks == 1 else 1): A(pendw.pop(0))
                if m == 3 and i + 1 < len(order):
                    if i + 1 == GF_B and not EARLY & 2: A.wait_vm("hB"); cflag(12)
                    A.wait_vm(("h", i + 1))
            if ks == 7 and nu < 3:
                pendw = [f"ds_write_b128 v{12+nu}, v[{acc2(nu, m)}:{acc2(nu, m)+3}] offset:{1024*m}" for m in range(4)]
        assert not pendw and not hq and not w2late
        TS()
        A("""s_waitcnt lgkmcnt(0)
             s_barrier""")
        A.lg = []
        for m in range(4):
            A(f"ds_read_b128 v[{116+4*m}:{119+4*m}], v15 offset:{8192+1024*m}", ("rd", m))
        for z in range(8):
            A(f"v_pk_add_f32 v[{64+2*z}:{65+2*z}], v[{64+2*z}:{65+2*z}], v[{100+2*z}:{101+2*z}]")
        for m in range(4):
            A.wait_lg(("rd", m))
            for z in (2*m, 2*m+1):
                A(f"v_pk_add_f32 v[{64+2*z}:{65+2*z}], v[{64+2*z}:{65+2*z}], v[{116+2*z}:{117+2*z}]")
        TSflush()

    layer(0)
    cur[0] = 1
    TS(0)
    tile_stats()
    A(f"""s_lshl_b32 s83, s35, 10
          s_add_u32 s83, s83, s66
          s_mov_b64 exec, s[56:57]
          buffer_store_dwordx2 v[48:49], v245, s[4:7], s83 offen
          s_mov_b64 exec, s[58:59]
          buffer_store_dwordx2 v[48:49], v245, s[4:7], s83 offen sc1
          s_mov_b64 exec, -1
          s_add_u32 s92, s66, 4096""")
    for z in range(8):
        A(f"v_cvt_pk_bf16_f32 v{80+z}, v{64+2*z}, v{65+2*z}")
    seq_consts()
    TS(1)
    vpoll("L_pS1", """buffer_load_dwordx4 v[52:55], v5, s[4:7], s66 offen sc1
                      buffer_load_dwordx4 v[56:59], v5, s[4:7], s92 offen sc1""", [53, 55, 57, 59])
    TS(2)
    A(f"""s_add_u32 s67, s67, {2*MB}
          s_add_u32 s83, s72, {X2 - XN}""")
    A("""v_add_f32 v48, v52, v56
         v_add_f32 v49, v54, v58""")
    qreduce(48, 49)
    A("""v_mov_b32 v49, v48
         v_permlane32_swap_b32 v48, v49""")
    seq_pass1("v6", lambda: A("""buffer_store_dwordx4 v[80:83], v1, s[4:7], s83 offen sc1
                           buffer_store_dwordx4 v[84:87], v1, s[4:7], s83 offen offset:1024 sc1"""))
    A(f"""s_add_u32 s68, s68, 131072
          s_add_u32 s69, s69, 131072
          s_add_u32 s70, s70, {2*MB}
          s_add_u32 s72, s72, {2*MB*NEWX}
          s_add_u32 s77, s77, {131072*NEWX}
          s_add_u32 s0, s0, {131072*NEWX}
          s_add_u32 s73, s73, {2*MB*NEWX}
          s_add_u32 s74, s74, 64
          s_add_u32 s75, s75, {2*MB*NEWX}
          s_add_u32 s76, s76, 64
          s_add_u32 s78, s78, {HL*NEWX}
          s_add_u32 s79, s79, {HL*NEWX}
          s_add_u32 s8, s52, {X2}
          s_addc_u32 s9, s53, 0
          s_lshl_b32 s82, s37, 5
          s_add_u32 s71, s81, s82
          s_add_u32 s80, s71, 16
          v_lshlrev_b32 v23, 4, v23""")
    if not EARLY & 4: A.vm0()
    gflag("s68")
    TS(3)
    TSflush()
    layer(1)

    for z in range(8):
        A(f"v_cvt_pk_bf16_f32 v{80+z}, v{64+2*z}, v{65+2*z}")
        if z == 3: A(f"buffer_store_dwordx4 v[80:83], v4, s[12:15], 0 offen {OUTF}")
    A(f"buffer_store_dwordx4 v[84:87], v4, s[12:15], 0 offen offset:64 {OUTF}")
    if ts:
        cur[0] = 2
        TS(0); TSflush()
        A(f"""s_lshl_b32 s82, s40, 2
              s_add_u32 s82, s82, s37
              s_lshl_b32 s82, s82, 8
              s_add_u32 s82, s82, {TSO}
              v_lshlrev_b32 v36, 2, v0
              buffer_store_dword v190, v36, s[4:7], s82 offen""")
    if E2E:
        A(f"""s_waitcnt vmcnt(0)
              s_memrealtime s[94:95]
              s_lshl_b32 s82, s40, 2
              s_add_u32 s82, s82, s37
              s_lshl_b32 s82, s82, 3
              s_add_u32 s82, s82, {TSO}
              s_waitcnt lgkmcnt(0)
              v_mov_b32 v36, s100
              v_mov_b32 v37, s94
              s_mov_b64 exec, 1
              buffer_store_dwordx2 v[36:37], off, s[4:7], s82
              s_mov_b64 exec, -1""")
    A("""s_or_b32 s82, s40, s37
         s_cmp_lg_u32 s82, 0
         s_cbranch_scc1 L_exit""")
    gflag("0")
    A("""L_exit:
         s_endpgm""")
    for t in tails: A(t)
    A("""L_end:
         s_endpgm""")
    assert nts[0] <= 20
    return A


HEAD = open("cdna_kernels/%s.s.ref" % NAME).read().split("; Override launch geometry")[0]

def emit(**kw):
    body = pad(gen(**kw).lines)
    k = NAME + "_kernel"
    out = [HEAD.rstrip("\n"), f"; @launch grid=(256,1,1) block=(256,1,1) lds={LDS_BYTES}",
           '.amdgcn_target "amdgcn-amd-amdhsa--gfx950"', ".text", f".globl {k}", ".p2align 8", f".type {k},@function", f"{k}:"]
    out += body
    out += ['.section .rodata,"a"', ".p2align 6", f".amdhsa_kernel {k}", "  .amdhsa_next_free_vgpr 512", "  .amdhsa_next_free_sgpr 102",
            "  .amdhsa_accum_offset 256", "  .amdhsa_group_segment_fixed_size 0", "  .amdhsa_kernarg_size 96", "  .amdhsa_user_sgpr_count 2",
            "  .amdhsa_user_sgpr_kernarg_segment_ptr 1", "  .amdhsa_system_sgpr_workgroup_id_x 1", "  .amdhsa_float_denorm_mode_32 3", ".end_amdhsa_kernel"]
    return "\n".join(out) + "\n"

if __name__ == "__main__":
    sys.stdout.write(emit(ts="ts" in sys.argv, slow="slow" in sys.argv))
```

```python
import re

TRANS = ("v_exp_f32", "v_log_f32", "v_rcp_f32", "v_rsq_f32", "v_sqrt_f32", "v_sin_f32", "v_cos_f32")
REG = re.compile(r"^-?\|?(v|a|s)(\d+)\|?$|^-?(v|a|s)\[(\d+):(\d+)\]$")


def regs_of(tok):
    tok = tok.strip()
    if tok in ("vcc",):
        return [("s", 106), ("s", 107)]
    if tok == "exec":
        return [("s", 126), ("s", 127)]
    if tok == "m0":
        return [("s", 124)]
    m = REG.match(tok)
    if not m:
        return []
    if m.group(1):
        return [(m.group(1), int(m.group(2)))]
    return [(m.group(3), r) for r in range(int(m.group(4)), int(m.group(5)) + 1)]


def split_ops(rest):
    out, depth, cur = [], 0, ""
    for ch in rest:
        if ch == "[":
            depth += 1
        if ch == "]":
            depth -= 1
        if ch == "," and depth == 0:
            out.append(cur.strip()); cur = ""
        else:
            cur += ch
    if cur.strip():
        out.append(cur.strip())
    if out:
        last = out[-1].split()
        out[-1] = last[0]
        mods = last[1:]
    else:
        mods = []
    return out, mods


class Ins:
    def __init__(self, text):
        self.text = text
        t = text.split(";")[0].strip()
        self.label = t[:-1] if t.endswith(":") else None
        self.directive = t.startswith(".")
        self.op = ""; self.rd = []; self.wr = []; self.kind = "other"; self.mods = []
        self.cregs = []; self.ab = []; self.data = []
        if self.label or self.directive or not t:
            return
        p = t.split(None, 1)
        self.op = p[0]
        ops, self.mods = split_ops(p[1]) if len(p) > 1 else ([], [])
        R = [regs_of(o) for o in ops]
        op = self.op
        flat = lambda L: [r for x in L for r in x]
        if op.startswith("v_mfma"):
            self.kind = "mfma"; self.wr = R[0]; self.ab = R[1] + R[2]; self.cregs = R[3]; self.rd = self.ab + self.cregs
        elif op.startswith("v_"):
            self.kind = "valu"
            if op.startswith("v_permlane") or op.startswith("v_swap"):
                self.wr = R[0] + R[1]; self.rd = R[0] + R[1]
            elif op.startswith(("v_add_co", "v_sub_co", "v_addc_co", "v_subb_co")):
                self.wr = R[0] + R[1]; self.rd = flat(R[2:])
            else:
                self.wr = R[0]; self.rd = flat(R[1:])
                if op.startswith(("v_fmac", "v_pk_fmac", "v_dot2c")) or "dpp" in op:
                    self.rd = self.rd + (R[0] if op.startswith(("v_fmac", "v_pk_fmac", "v_dot2c")) else [])
                if op.startswith("v_cndmask") and len(ops) == 3:
                    self.rd += regs_of("vcc")
        elif op.startswith(("buffer_", "global_")):
            self.kind = "vmem"
            lds = "lds" in self.mods
            if op.startswith("buffer_load"):
                if lds:
                    self.rd = flat(R) + regs_of("m0")
                else:
                    self.wr = R[0]; self.rd = flat(R[1:])
            elif op.startswith("global_load"):
                self.wr = R[0]; self.rd = flat(R[1:])
            elif op.startswith("buffer_"):
                self.rd = flat(R); self.data = R[0]
            else:
                self.rd = flat(R); self.data = R[1]
            self.lds = lds
        elif op.startswith("ds_"):
            self.kind = "ds"
            if op.startswith("ds_read"):
                self.wr = R[0]; self.rd = flat(R[1:])
            else:
                self.rd = flat(R)
        elif op.startswith("s_"):
            self.kind = "salu"
            if op.startswith(("s_cmp", "s_cbranch", "s_branch", "s_waitcnt", "s_barrier", "s_nop", "s_sleep", "s_endpgm", "s_setprio", "s_bitcmp")):
                self.rd = flat(R)
            else:
                self.wr = R[0] if R else []; self.rd = flat(R[1:])
                if "saveexec" in op:
                    self.wr = self.wr + regs_of("exec")
        self.target = None
        if op.startswith(("s_cbranch", "s_branch")):
            self.target = ops[0]

    def states(self):
        if self.label or self.directive or not self.op:
            return 0
        if self.op == "s_nop":
            return int(self.text.split()[1]) + 1
        return 1


def need(ins, st):
    n = 0
    def chk(kind, regs, k):
        nonlocal n
        for r in regs:
            d = st.get((kind, r))
            if d is not None and k - d > n:
                n = k - d
    op = ins.op
    if ins.kind == "mfma":
        chk("valu", ins.rd, 2)
        chk("mfma", ins.ab, 8)
        if ins.cregs != ins.wr:
            chk("mfma", ins.cregs, 8); chk("mfma", ins.wr, 8)
    elif ins.kind == "valu":
        chk("mfma", ins.rd + ins.wr, 8)
        chk("mfmac", ins.wr, 3)
        if not op.startswith(TRANS):
            chk("trans", ins.rd, 1)
        if op.startswith("v_permlane") or "dpp" in op or any(m.startswith(("row_", "quad_perm")) for m in ins.mods):
            chk("valu", ins.rd, 2)
        if op.startswith(("v_readfirstlane", "v_readlane")):
            chk("valu", ins.rd, 1)
        chk("valu", [r for r in ins.rd if r[0] == "s"], 2)
        chk("stdata", ins.wr, 2)
    elif ins.kind in ("vmem", "ds"):
        chk("mfma", ins.rd + ins.wr, 8)
        chk("valu", [r for r in ins.rd if r[0] == "s"], 5)
        chk("stdata", ins.wr, 1)
        if ins.kind == "vmem" and getattr(ins, "lds", False):
            chk("m0", regs_of("m0"), 1)
    elif ins.kind == "salu":
        chk("valu", [r for r in ins.rd if r[0] == "s"], 1)
    return n


def advance(ins, st):
    k = ins.states()
    out = {key: d + k for key, d in st.items() if d + k < 12}
    if ins.kind == "mfma":
        for r in ins.wr: out[("mfma", r)] = 0
        for r in ins.cregs: out[("mfmac", r)] = 0
    elif ins.kind == "valu":
        for r in ins.wr:
            out[("valu", r)] = 0
            out.pop(("trans", r), None)
            if ins.op.startswith(TRANS): out[("trans", r)] = 0
    elif ins.kind == "vmem":
        if len(ins.data) >= 3:
            for r in ins.data: out[("stdata", r)] = 0
    elif ins.kind == "salu":
        if ("s", 124) in ins.wr: out[("m0", ("s", 124))] = 0
    return out


def pad(lines):
    ins = [Ins(l) for l in lines]
    at_label = {}
    for _ in range(4):
        out, st = [], {}
        changed = False
        for i in ins:
            if i.label:
                for key, d in at_label.get(i.label, {}).items():
                    if key not in st or d < st[key]: st[key] = d
                out.append(i); continue
            if i.directive or not i.op:
                out.append(i); continue
            n = need(i, st)
            while n > 0:
                k = min(n, 16)
                nop = Ins(f"    s_nop {k-1}")
                out.append(nop); st = advance(nop, st); n -= k
            out.append(i); st = advance(i, st)
            tgt = getattr(i, "target", None)
            if tgt:
                cur = at_label.setdefault(tgt, {})
                for key, d in st.items():
                    if key not in cur or d < cur[key]:
                        cur[key] = d; changed = True
                if i.op == "s_branch": st = {}
            if i.op == "s_endpgm": st = {}
        if not changed:
            break
    return [i.text for i in out]


class Asm:
    def __init__(self):
        self.lines = []
        self.vm = []
        self.lg = []

    def __call__(self, text, tag=None):
        for l in text.strip("\n").split("\n"):
            s = l.strip()
            if not s: continue
            self.lines.append(s if s.endswith(":") or s.startswith(".") else "    " + s)
            op = s.split()[0]
            if op.startswith(("buffer_", "global_")): self.vm.append(tag)
            if op.startswith("ds_"): self.lg.append(tag)

    def note(self, text):
        self.lines.append("; ---- " + text)

    def vm_count(self, tag):
        idx = max(i for i, t in enumerate(self.vm) if t == tag)
        return sum(1 for t in self.vm[idx + 1:] if t not in ("cond", "condtag"))

    def lg_count(self, tag):
        idx = max(i for i, t in enumerate(self.lg) if t == tag)
        return len(self.lg) - 1 - idx

    def wait_vm(self, tag):
        if tag not in self.vm: return
        n = self.vm_count(tag)
        if n <= 63: self(f"s_waitcnt vmcnt({n})")
        else: self("s_waitcnt vmcnt(63)"); assert False, "vmcnt overflow"

    def wait_lg(self, tag):
        if tag not in self.lg: return
        self(f"s_waitcnt lgkmcnt({min(self.lg_count(tag), 15)})")
        assert self.lg_count(tag) <= 15

    def vm0(self):
        self("s_waitcnt vmcnt(0)"); self.vm = []

    def lg0(self):
        self("s_waitcnt lgkmcnt(0)"); self.lg = []


PROMOTE = ("v_mov_b32", "v_add_f32", "v_mul_f32", "v_max_f32", "v_and_b32", "v_xor_b32", "v_lshlrev_b32", "v_lshrrev_b32",
           "v_add_u32", "v_sub_u32", "v_exp_f32", "v_rcp_f32", "v_rsq_f32", "v_cos_f32", "v_sin_f32", "v_cvt_f32_u32", "v_mul_u32_u24", "v_min_u32")


def sizes_of(lines):
    import subprocess, tempfile, os
    with tempfile.TemporaryDirectory() as d:
        src = os.path.join(d, "a.s"); obj = os.path.join(d, "a.o")
        open(src, "w").write('.amdgcn_target "amdgcn-amd-amdhsa--gfx950"\n.text\n' + "\n".join(lines) + "\n")
        subprocess.run(["clang", "-x", "assembler", "-target", "amdgcn-amd-amdhsa", "-mcpu=gfx950", "-c", src, "-o", obj], check=True)
        txt = subprocess.run(["llvm-objdump", "-d", "--mcpu=gfx950", obj], capture_output=True, text=True, check=True).stdout
    enc = [len(l.split("//")[1].split(":")[1].split()) * 4 for l in txt.split("\n") if "//" in l]
    out, k = [], 0
    for l in lines:
        if l.endswith(":"): out.append(0)
        else: out.append(enc[k]); k += 1
    assert k == len(enc)
    return out


def align(lines, window=32):
    sz = sizes_of(lines)
    lines = list(lines); pos = 0; start = []
    for i, l in enumerate(lines):
        if sz[i] == 8 and pos % window == window - 4:
            for j in range(i - 1, max(i - 9, -1), -1):
                op = lines[j].split()[0] if lines[j].strip() else ""
                if start[j] // window != pos // window: break
                if sz[j] == 4 and op in PROMOTE:
                    lines[j] = lines[j].replace(op, op + "_e64", 1); sz[j] = 8
                    for q in range(j + 1, i): start[q] += 4
                    pos += 4
                    break
        start.append(pos); pos += sz[i]
    return lines
```

```python
import os, sys, struct
from asmlib import Asm, pad, align

NAME = "interleave_layers__spectral_fnet__swiglu_ffn__prompt"
MB = 1 << 20
GF, CF, CX, C2, TSO = 0x1F00000, 0x10000, 0x18000, 0x8000, 0xA0000
ST, STQ = 0x20000, 0xC0000
Y, XN, X1, X2, W1F, W2F, H = 0x100000, 0x500000, 0x900000, 0xD00000, 0xF00000, 0x1200000, 0x1400000
HL = 0x580000
PR = X1
YB, ZB, RB, IB, LDS_BYTES = 81664, 147200, 98304, 147456, 163840
SPIN, NFAST = 400000, 48
LW, LY, LX, LH = [os.environ.get(k, 'sc1').replace('none', '').replace('+', ' ') for k in ('LW', 'LY', 'LX', 'LH')]
def P(name, default): return int(os.environ.get(name, default))
NC1, NC1B, NSIDE1 = P('NC1', 12), P('NC1B', 0), P('NSIDE1', 10)
GFS, GSLEEP, GDELAY = P('GFS', 3), P('GSLEEP', 0), P('GDELAY', 0)
EARLY = P('EARLY', 0)
W2T, T0 = P('W2T', 0), P('T0', 4)
CPOS = P('CPOS', 0)
SENT, FORCE, CLEAR, CNT = P('SENT', 0), P('FORCE', 0), P('CLEAR', 0), P('CNT', 0)
NOBAR = P('NOBAR', 0)
DEFB = P('DEFB', 0)
GPRE = P('GPRE', 0)
XPRE = P('XPRE', 11)
E2E = P('E2E', 0)
NGAP = P('NGAP', 3)
OUTF = os.environ.get('OUTF', 'sc1').replace('none', '').replace('+', ' ')
WARM, NEWX = P('WARM', 0), P('NEWX', 1)
ROTW, ROTH = P('ROTW', 0), P('ROTH', 0)
WLAT, NSIDE0, W1EARLY, W2LATE = P('WLAT', 22), P('NSIDE0', 14), P('W1EARLY', 2), P('W2LATE', 8)
LOG2E = 1.4426950408889634
TSG = [int(x) for x in os.environ.get('TSG', '').split('_') if x]
HSC = ['' if c == 'p' else 'sc1' for c in os.environ.get('HPLAIN', 'sss')]
CLK = 's_memtime' if 'cyc' in sys.argv else 's_memrealtime'
MF = "v_mfma_f32_16x16x32_bf16"


def f2u(x):
    return "0x%08x" % struct.unpack("<I", struct.pack("<f", x))[0]


def gen(ts=False, slow=False):
    A = Asm()
    nts, pend = [0], []

    cur = [0]
    def TSflush():
        if not ts or not pend: return
        A("s_waitcnt lgkmcnt(0)"); A.lg = []
        for n, k in enumerate(pend): A(f"v_writelane_b32 v190, s{TSR[n]}, {k}")
        pend.clear()

    TSR = (16, 18, 20, 22, 100, 94)
    def TS(k=None):
        if not ts: return
        if k is None:
            k = nts[0]; nts[0] += 1
        A(f"{CLK} s[{TSR[len(pend)]}:{TSR[len(pend)]+1}]")
        pend.append(20*cur[0] + k)

    def vpoll(label, load, regs, mask=None, dual=None, late=None, sleep=0):
        TSflush()
        if mask: A(f"s_mov_b64 exec, {mask}")
        A("s_mov_b32 s82, 0")
        if dual:
            for dst, fast, delta in dual: A(f"s_mov_b32 {dst}, {fast}")
        A(f"{label}:")
        A(load)
        A("s_waitcnt vmcnt(0)")
        A(f"v_cmp_eq_u32 vcc, s28, v{regs[0]}")
        for k, r in enumerate(regs[1:]):
            A(f"v_cmp_eq_u32 s[{84+2*k}:{85+2*k}], s28, v{r}")
        for k, r in enumerate(regs[1:]):
            A(f"s_and_b64 vcc, vcc, s[{84+2*k}:{85+2*k}]")
        A(f"""s_cmp_eq_u64 vcc, exec
              s_cbranch_scc1 {label}_ok
              s_add_u32 s82, s82, 1""")
        if sleep: A(f"s_sleep {sleep}")
        if late:
            A(f"""s_cmp_lg_u32 s82, {NFAST - 1}
                  s_cbranch_scc1 {label}_nl
                  {late}
                  {label}_nl:""")
        if dual:
            A(f"""s_cmp_ge_u32 s82, {NFAST}
                  s_cselect_b32 s84, s82, 0
                  s_and_b32 s84, s84, 1""")
            for dst, fast, delta in dual:
                A(f"""s_mul_i32 s85, s84, {delta}
                      s_add_u32 {dst}, {fast}, s85""")
        A(f"""s_cmp_lt_u32 s82, {SPIN}
              s_cbranch_scc1 {label}
              {label}_ok:""")
        if late: A(late)
        if mask: A("s_mov_b64 exec, -1")
        A.vm = []

    tails = []
    def cpoll_load(vaddr, off):
        return ([], f"buffer_load_dword v240, {vaddr}, s[4:7], s76 offen offset:{off} sc1", "poll")

    def check(label, tag, reg, load):
        A.wait_vm(tag)
        A(f"""v_cmp_ne_u32 vcc, s28, {reg}
              s_cbranch_vccnz {label}_re
              {label}_ok:""")
        tails.append(f"""{label}_re:
              s_mov_b32 s82, 0
              {label}_lp:
              {load}
              s_add_u32 s82, s82, 1
              s_cmp_gt_u32 s82, {SPIN}
              s_cbranch_scc1 {label}_ok
              s_waitcnt vmcnt(0)
              v_cmp_ne_u32 vcc, s28, {reg}
              s_cbranch_vccnz {label}_lp
              s_branch {label}_ok""")

    def cpoll_check(label, vaddr, off):
        check(label, "poll", "v240", cpoll_load(vaddr, off)[1])

    def witem(j, base="s47"):
        lds, va = (4096*j, "v242") if j < 40 else (81920 + 4096*(j - 40), "v243")
        return ([f"s_add_u32 m0, {base}, {lds}"], f"buffer_load_dwordx4 {va}, s[4:7], m0 offen {LW} lds", ("W", j))

    def wgroup(lo, hi, ra, rb):
        n = hi - lo; h = n // 2
        if not ROTW: return [witem(j) for j in range(lo, hi)]
        A(f"""s_and_b32 s82, s32, 1
              s_mul_i32 {ra}, s82, {4096*h}
              s_add_u32 {ra}, {ra}, s47
              s_mul_i32 {rb}, s82, {4096*(n - h)}
              s_sub_u32 {rb}, s47, {rb}""")
        return [witem(j, ra if j - lo + h < n else rb) for j in range(lo, hi)]

    def warm(nh):
        A(f"""v_lshlrev_b32 v43, 8, v0
              v_add_u32 v43, s73, v43
              v_mov_b32 v44, s0
              v_cmp_eq_u32 vcc, 16, v0
              v_subrev_u32 v45, 17, v0
              v_cndmask_b32 v43, v43, v44, vcc
              v_cmp_lt_u32 vcc, 21, v45
              v_lshlrev_b32 v45, 7, v45
              v_add_u32 v45, s78, v45
              v_add_u32 v44, {45056 - 22*128}, v45
              v_cndmask_b32 v45, v45, v44, vcc
              v_cmp_lt_u32 vcc, 16, v0
              s_mov_b32 exec_hi, {(1 << max(17 + nh - 32, 0)) - 1}
              v_cndmask_b32 v43, v43, v45, vcc
              s_mov_b32 exec_lo, {(1 << min(17 + nh, 32)) - 1}
              buffer_load_dword v46, v43, s[4:7], 0 offen sc1
              s_mov_b64 exec, -1""")

    def clear_h():
        A("s_add_u32 s46, s78, 45056")
        if SENT or CLEAR:
            for k in range(4): A(f"v_mov_b32 v{186+k}, -1")
            for so in ("s78", "s46"):
                A(f"""buffer_store_dwordx4 v[186:189], v1, s[4:7], {so} offen offset:1024 sc1
                      s_mov_b32 exec_hi, 0xffff
                      buffer_store_dwordx4 v[186:189], v1, s[4:7], {so} offen offset:2048 sc1
                      s_mov_b32 exec_hi, -1""")

    def cflag(off):
        A("s_mov_b64 exec, s[60:61]")
        A(f"buffer_store_dword v30, off, s[4:7], s74 offset:{off}")
        A("s_mov_b64 exec, s[62:63]")
        A(f"buffer_store_dword v30, off, s[4:7], s74 offset:{off} sc1", "cond")
        A("s_mov_b64 exec, -1")

    def gflag(soff):
        A(f"""s_mov_b64 exec, 1
              buffer_store_dword v30, off, s[4:7], {soff} sc1
              s_mov_b64 exec, -1""")

    def put(item):
        if item is None: return
        for p in item[0]: A(p)
        A(item[1], item[2])

    def qreduce(a, b):
        A(f"""v_permlane32_swap_b32 v{a}, v{b}
              v_add_f32 v{a}, v{a}, v{b}
              v_mov_b32 v{b}, v{a}
              v_permlane16_swap_b32 v{a}, v{b}
              v_add_f32 v{a}, v{a}, v{b}""")

    def finish_stats(s, ss, r, scale=None):
        out = [f"v_mul_f32 v{s}, s64, v{s}", f"v_mul_f32 v{r+1}, v{s}, v{s}", f"v_fma_f32 v{ss}, v{ss}, s64, -v{r+1}",
               f"v_max_f32 v{ss}, 0, v{ss}", f"v_add_f32 v{ss}, {f2u(1e-5)}, v{ss}", f"v_rsq_f32 v{r}, v{ss}"]
        if scale: out.append(f"v_mul_f32 v{r}, {f2u(scale)}, v{r}")
        out.append(f"v_mul_f32 v{r+1}, v{s}, v{r}")
        return out

    def normalize(x, r):
        return f"v_pk_fma_f32 v[{x}:{x+1}], v[{x}:{x+1}], v[{r}:{r+1}], v[{r}:{r+1}] op_sel:[0,0,1] op_sel_hi:[1,0,1] neg_lo:[0,0,1] neg_hi:[0,0,1]"

    TLB = "" if not P('TLB', 0) else """s_lshr_b32 s86, s2, 3
          s_lshl_b32 s86, s86, 2
          s_add_u32 s86, s86, s37
          s_and_b32 s86, s86, 15
          s_lshl_b32 s86, s86, 21
          s_add_u32 s86, s52, s86
          s_addc_u32 s87, s53, 0
          s_load_dword s92, s[86:87], 64
          s_load_dword s93, s[50:51], 0"""
    def xr(z): return 96 + 4*z if z < 8 else 192 + 4*(z - 8)
    XLOAD = "\n".join([f"buffer_load_dwordx4 v[{128+4*z}:{131+4*z}], v4, s[8:11], s83 offen offset:{64*z}" for z in range(2)] +
                      [f"buffer_load_dwordx4 v[{xr(z)}:{xr(z)+3}], v4, s[8:11], 0 offen offset:{64*z}" for z in range(16)])
    if ts or E2E: A(f"{CLK} s[100:101]")
    A(f"""s_cmp_ge_u32 s2, 256
          s_cbranch_scc1 L_end
          s_load_dwordx2 s[30:31], s[0:1], 0
          s_load_dwordx4 s[44:47], s[0:1], 48
          s_load_dwordx4 s[48:51], s[0:1], 64
          s_load_dwordx2 s[52:53], s[0:1], 88
          s_getpc_b64 s[84:85]
          L_pc:
          v_lshlrev_b32 v1, 7, v0
          v_add_u32 v2, 32768, v1
          v_cmp_gt_u32 vcc, L_end-L_pc, v2
          v_min_u32 v1, L_end-L_pc, v1
          v_min_u32 v2, L_end-L_pc, v2
          {"global_load_dword v169, v1, s[84:85]" if P('PF', 1) else ""}
          s_and_saveexec_b64 s[86:87], vcc
          s_cbranch_execz L_pf2
          global_load_dword v169, v2, s[84:85]
          L_pf2:
          s_mov_b64 exec, -1
          s_and_b32 s82, s2, 7
          s_lshr_b32 s83, s2, 3
          s_and_b32 s33, s83, 15
          s_lshr_b32 s83, s83, 4
          s_lshl_b32 s32, s82, 1
          s_add_u32 s32, s32, s83
          s_lshr_b32 s34, s33, 3
          s_and_b32 s35, s33, 7
          s_lshl_b32 s40, s32, 4
          s_add_u32 s40, s40, s33
          s_sub_u32 s82, 32, s32
          s_cmp_eq_u32 s32, 0
          s_cselect_b32 s82, 16, s82
          s_cmp_eq_u32 s34, 0
          s_cselect_b32 s36, s32, s82
          v_lshrrev_b32 v5, 6, v0
          v_and_b32 v0, 63, v0
          v_readfirstlane_b32 s37, v5
          v_and_b32 v2, 15, v0
          v_lshrrev_b32 v3, 4, v0
          v_lshlrev_b32 v1, 4, v0
          s_lshr_b32 s82, s37, 1
          s_lshl_b32 s82, s82, 5
          s_add_u32 s82, s82, s36
          s_and_b32 s83, s37, 1
          s_lshl_b32 s83, s83, 10
          s_add_u32 s82, s82, s83
          s_lshl_b32 s82, s82, 10
          s_lshl_b32 s83, s35, 7
          s_add_u32 s39, s82, s83
          v_lshrrev_b32 v6, 2, v0
          v_and_b32 v7, 3, v0
          v_lshlrev_b32 v4, 16, v6
          v_lshl_add_u32 v4, v7, 4, v4
          v_add_u32 v4, s82, v4
          v_mul_u32_u24 v6, 160, v6
          v_lshl_add_u32 v244, v7, 3, v6
          s_mov_b32 s10, {2*MB}
          s_mov_b32 s11, 0x20000
          s_waitcnt lgkmcnt(0)
          s_load_dword s42, s[52:53], 0
          {TLB}
          s_mov_b32 s8, s30
          s_mov_b32 s9, s31
          s_mov_b32 s81, 0x3f803f80""")
    xl = XLOAD.split("\n")
    for z, l in enumerate(xl[:XPRE]): A(l, ("x", z - 2))
    mark0 = len(A.lines)
    A(f"""s_mov_b32 s12, s44
          s_mov_b32 s13, s45
          s_mov_b32 s14, {512*2752}
          s_mov_b32 s15, 0x20000
          s_mov_b32 s96, s46
          s_mov_b32 s97, s47
          s_mov_b32 s98, {512*2752}
          s_mov_b32 s99, 0x20000""")
    A(f"""s_lshl_b32 s82, s32, 5
          s_lshl_b32 s83, s37, 3
          s_add_u32 s82, s82, s83
          v_add_u32 v170, s82, v3
          v_mul_u32_u24 v170, 2752, v170
          s_mul_i32 s83, s33, 11
          v_add_u32 v171, s83, v2
          v_lshl_add_u32 v174, v171, 4, v170
          v_cmp_gt_u32 vcc, 172, v171
          v_cmp_gt_u32 s[84:85], 11, v2
          v_mov_b32 v172, 0x7f000000
          s_and_b64 vcc, vcc, s[84:85]
          v_cndmask_b32 v174, v172, v174, vcc
          v_add_u32 v175, {4*2752}, v174
          buffer_load_dwordx4 v[144:147], v174, s[12:15], 0 offen
          buffer_load_dwordx4 v[148:151], v174, s[96:99], 0 offen
          buffer_load_dwordx4 v[152:155], v175, s[12:15], 0 offen
          buffer_load_dwordx4 v[156:159], v175, s[96:99], 0 offen""")
    A(f"""s_mov_b32 s4, s52
          s_mov_b32 s5, s53
          s_mov_b32 s6, {256*MB}
          s_mov_b32 s7, 0x20000
          s_mov_b32 s24, s48
          s_mov_b32 s25, s49
          s_mov_b32 s26, {1376*1024}
          s_mov_b32 s27, 0x20000""")
    def w2addr():
        A("""v_lshrrev_b32 v41, 3, v0
             v_and_b32 v42, 1, v41
             v_lshl_add_u32 v40, v3, 3, v42
             v_and_b32 v42, 7, v0
             v_lshlrev_b32 v42, 4, v42
             v_lshl_add_u32 v40, v40, 10, v42
             v_lshl_add_u32 v41, v41, 10, v42
             s_add_u32 s2, s40, 256""")
        for G, dst in (("s40", 46), ("s2", 47)):
            A(f"""s_mul_i32 s82, {G}, 5958
                  s_lshr_b32 s82, s82, 16
                  s_mul_i32 s83, s82, 11
                  s_sub_u32 s83, {G}, s83
                  s_lshr_b32 s84, s82, 2
                  s_and_b32 s82, s82, 3
                  s_mul_i32 s82, s82, 352
                  s_lshl_b32 s84, s84, 7
                  s_lshr_b32 s85, s83, 1
                  s_mul_i32 s85, s85, 88
                  s_and_b32 s86, s83, 1
                  s_lshl_b32 s86, s86, 5
                  s_add_u32 s85, s85, s86
                  s_lshl_b32 s86, s37, 1
                  s_add_u32 s85, s85, s86
                  s_lshl_b32 s86, s83, 2
                  s_add_u32 s86, s86, s37
                  s_sub_u32 s86, s86, 32
                  s_mul_i32 s87, s86, 43
                  s_lshr_b32 s87, s87, 7
                  s_mul_i32 s87, s87, 64
                  s_lshl_b32 s86, s86, 3
                  s_add_u32 s86, s86, s87
                  s_add_u32 s86, s86, 64
                  s_cmp_ge_u32 s83, 8
                  s_cselect_b32 s85, s86, s85
                  s_cselect_b64 vcc, -1, 0
                  s_add_u32 s82, s82, s85
                  s_lshl_b32 s82, s82, 10
                  s_add_u32 s82, s82, s84
                  v_cndmask_b32 v{dst}, v40, v41, vcc
                  v_add_u32 v{dst}, s82, v{dst}""")
    A(f"""s_lshl_b32 s82, s37, 19
          s_lshl_b32 s83, s36, 11
          s_add_u32 s82, s82, s83
          s_lshl_b32 s83, s35, 8
          s_add_u32 s82, s82, s83
          s_add_u32 s67, s82, {Y}
          s_lshl_b32 s82, s37, 15
          s_lshr_b32 s83, s35, 1
          s_lshl_b32 s83, s83, 13
          s_add_u32 s82, s82, s83
          s_lshl_b32 s83, s36, 1
          s_and_b32 s84, s35, 1
          s_add_u32 s83, s83, s84
          s_lshr_b32 s84, s83, {GFS}
          s_lshl_b32 s84, s84, 7
          s_add_u32 s82, s82, s84
          s_and_b32 s83, s83, {(1 << GFS) - 1}
          s_lshl_b32 s83, s83, 2
          s_add_u32 s82, s82, s83
          s_add_u32 s68, s82, {GF}
          s_mov_b32 s64, {f2u(1/512)}
          v_lshlrev_b32 v5, 4, v2
          v_lshl_add_u32 v5, v3, 10, v5
          s_mul_i32 s82, s37, {16*160}
          s_add_u32 s82, s82, {IB}
          v_add_u32 v244, s82, v244
          v_lshrrev_b32 v32, 2, v2
          v_lshl_add_u32 v33, v3, 2, v32
          v_and_b32 v34, 3, v2
          v_mul_u32_u24 v7, 160, v33
          v_lshl_add_u32 v7, v34, 3, v7
          v_add_u32 v7, {IB}, v7
          v_lshrrev_b32 v8, 1, v2
          v_lshlrev_b32 v8, 16, v8
          v_and_b32 v35, 1, v2
          v_lshl_add_u32 v8, v35, 4, v8
          v_lshl_add_u32 v8, v3, 5, v8""")
    A(f"""s_getreg_b32 s3, hwreg(HW_REG_XCC_ID, 0, 4)
          s_waitcnt lgkmcnt(0)
          s_mul_i32 s28, s42, 0x9E3779B1
          s_add_u32 s28, s28, 0x7F4A7C15
          s_mov_b32 s29, s28
          s_add_u32 s3, s3, s28
          v_mov_b32 v30, s28
          v_mov_b32 v236, s3
          s_lshl_b32 s82, s40, 7
          s_add_u32 s38, s82, {CX}""")
    if ts:
        A("v_mov_b32 v190, 0\nv_writelane_b32 v190, s100, 62")

    LANE = """v_lshrrev_b32 v32, 2, v2
              v_lshl_add_u32 v33, v3, 2, v32
              v_and_b32 v34, 3, v2
              v_and_b32 v35, 1, v2
              v_lshrrev_b32 v36, 3, v0
              v_and_b32 v37, 7, v0
              v_and_b32 v38, 1, v3"""
    def setup_touch():
        A(f"""s_lshl_b32 s82, s36, 13
              s_lshl_b32 s83, s37, 8
              s_add_u32 s82, s82, s83
              s_add_u32 s66, s82, {ST}
              s_lshl_b32 s82, s40, 7
              s_lshl_b32 s83, s37, 4
              s_add_u32 s82, s82, s83
              s_add_u32 s74, s82, {CF}
              s_lshl_b32 s82, s35, 10
              s_add_u32 s82, s82, s66
              v_lshlrev_b32 v44, 7, v0
              v_add_u32 v44, s82, v44
              v_mov_b32 v45, s74
              v_cmp_gt_u32 vcc, 2, v0
              v_cndmask_b32 v44, v45, v44, vcc""")

    def setup_gather():
        A(f"""s_lshr_b32 s82, s33, 2
              s_and_b32 s82, s82, 1
              s_lshl_b32 s82, s82, 5
              s_add_u32 s43, s36, s82
              s_sub_u32 s82, 64, s43
              s_cmp_le_u32 s43, 31
              s_cselect_b32 s41, s43, s82
              s_and_b32 s41, s41, 31
              s_and_b32 s82, s33, 3
              s_lshl_b32 s82, s82, 9
              s_add_u32 s55, s43, s82
              s_lshr_b32 s82, s41, 3
              s_lshl_b32 s82, s82, 15
              s_lshl_b32 s83, s37, 13
              s_add_u32 s82, s82, s83
              s_add_u32 s69, s82, {GF}
              s_lshl_b32 s82, s41, 16
              s_lshl_b32 s83, s37, 9
              s_add_u32 s82, s82, s83
              s_add_u32 s70, s82, {Y}
              s_lshl_b32 s82, s37, 7
              s_add_u32 s82, s82, s55
              s_lshl_b32 s71, s82, 10
              s_add_u32 s80, s71, 65536
              v_lshrrev_b32 v36, 3, v0
              v_and_b32 v37, 7, v0
              v_and_b32 v38, 1, v3
              v_lshrrev_b32 v9, {GFS}, v0
              v_and_b32 v39, {(1 << GFS) - 1}, v0
              v_lshlrev_b32 v9, 7, v9
              v_lshl_add_u32 v9, v39, 2, v9
              v_lshlrev_b32 v16, 2, v38
              v_xor_b32 v16, v16, v37
              v_lshlrev_b32 v16, 4, v16
              v_lshl_add_u32 v16, v36, 11, v16
              v_lshrrev_b32 v39, 1, v3
              v_lshl_add_u32 v39, v2, 1, v39
              v_lshl_add_u32 v23, v38, 5, v39
              v_lshlrev_b32 v23, 4, v23""")

    def setup_spectral():
        A(f"""{LANE}
              s_lshl_b32 s82, s37, 14
              s_add_u32 s82, s82, {YB}
              v_lshrrev_b32 v18, 1, v33
              v_lshlrev_b32 v18, 7, v18
              v_lshl_add_u32 v18, v38, 6, v18
              v_and_b32 v39, 1, v33
              v_lshl_add_u32 v18, v39, 4, v18
              v_lshrrev_b32 v39, 1, v34
              v_lshl_add_u32 v18, v39, 5, v18
              v_lshl_add_u32 v18, v35, 3, v18
              v_add_u32 v18, s82, v18
              v_xor_b32 v17, 64, v18
              v_mul_u32_u24 v19, 1032, v2
              v_lshl_add_u32 v19, v3, 3, v19
              s_lshl_b32 s82, s37, 8
              s_and_b32 s83, s37, 1
              s_lshl_b32 s83, s83, 5
              s_add_u32 s82, s82, {ZB}
              s_add_u32 s84, s82, s83
              s_xor_b32 s83, s83, 32
              s_add_u32 s85, s82, s83
              v_add_u32 v20, s85, v19
              v_add_u32 v19, s84, v19
              v_lshrrev_b32 v28, 1, v37
              v_mul_u32_u24 v28, 4128, v28
              v_and_b32 v39, 1, v37
              v_lshl_add_u32 v28, v39, 10, v28
              v_lshl_add_u32 v28, v36, 4, v28
              v_add_u32 v28, s82, v28
              v_xor_b32 v31, 16, v28
              v_lshlrev_b32 v29, 8, v36
              v_lshl_add_u32 v29, v37, 4, v29
              v_lshlrev_b32 v21, 6, v33
              v_lshl_add_u32 v21, v38, 5, v21
              v_lshl_add_u32 v21, v34, 3, v21
              s_mul_i32 s82, s37, 4128
              s_add_u32 s82, s82, {ZB}
              v_xor_b32 v22, 32, v21
              v_add_u32 v21, s82, v21
              v_add_u32 v22, s82, v22
              v_lshrrev_b32 v39, 1, v3
              v_lshl_add_u32 v39, v2, 1, v39
              v_and_b32 v27, 1, v32
              v_xor_b32 v27, v27, v39
              v_lshlrev_b32 v27, 4, v27
              v_lshl_add_u32 v27, v38, 3, v27
              v_add_u32 v27, s82, v27
              v_lshrrev_b32 v39, 5, v0
              v_lshlrev_b32 v245, 4, v2
              v_lshl_add_u32 v245, v39, 3, v245
              v_add_u32 v242, s54, v1
              s_lshl_b32 s47, s37, 10
              s_lshl_b32 s82, s40, 9
              s_lshl_b32 s83, s37, 7
              s_add_u32 s82, s82, s83
              s_add_u32 s0, s82, {PR}
              s_lshr_b32 s82, s40, 1
              s_lshl_b32 s82, s82, 14
              s_and_b32 s83, s33, 1
              s_lshl_b32 s83, s83, 7
              s_add_u32 s81, s82, s83
              s_lshl_b32 s83, s37, 12
              s_add_u32 s82, s81, s83
              s_add_u32 s73, s82, {XN}
              s_mul_i32 s82, s32, {8*45056}
              s_add_u32 s82, s82, {H}
              s_mul_i32 s83, s37, {2*45056}
              s_add_u32 s78, s82, s83
              s_mul_i32 s83, s33, 2816
              s_add_u32 s78, s78, s83
              s_mul_i32 s83, s34, {4*45056}
              s_add_u32 s82, s82, s83
              s_mul_i32 s83, s37, {4*2816}
              s_add_u32 s79, s82, s83""")

    def setup_gemm():
        A(f"""s_lshl_b32 s82, s32, 3
              s_lshl_b32 s83, s34, 2
              s_add_u32 s82, s82, s83
              s_add_u32 s82, s82, s37
              s_lshl_b32 s84, s82, 10
              s_add_u32 s77, s84, {PR}
              s_lshl_b32 s82, s82, 14
              s_lshl_b32 s83, s35, 11
              s_add_u32 s82, s82, s83
              s_add_u32 s72, s82, {XN}
              s_lshl_b32 s82, s32, 11
              s_lshl_b32 s83, s37, 9
              s_add_u32 s82, s82, s83
              s_add_u32 s76, s82, {CF}
              s_lshl_b32 s82, s32, 17
              s_lshl_b32 s83, s37, 15
              s_add_u32 s82, s82, s83
              s_add_u32 s75, s82, {XN}
              s_mov_b32 s65, {f2u(LOG2E*LOG2E)}
              s_mov_b32 s30, s65
              s_mov_b32 s31, s65
              v_and_b32 v34, 3, v2
              v_and_b32 v35, 1, v2
              v_lshlrev_b32 v238, 7, v3
              v_lshl_add_u32 v239, v35, 4, v238
              s_lshl_b32 s82, s34, 5
              v_add_u32 v239, s82, v239
              v_lshl_add_u32 v238, v34, 4, v238
              v_add_u32 v10, 65536, v1
              v_add_u32 v11, 114688, v1
              v_add_u32 v243, 81920, v242
              v_lshrrev_b32 v241, 1, v2
              v_lshlrev_b32 v241, 7, v241
              v_lshl_add_u32 v241, v35, 3, v241""")

    def setup_tail():
        out = []
        for nu in range(3):
            out += [f"s_add_u32 s82, s37, {1+nu}", "s_and_b32 s82, s82, 3", "s_mul_i32 s82, s82, 12288",
                    f"s_add_u32 s82, s82, {RB + 4096*nu}", f"v_add_u32 v{12+nu}, s82, v1"]
        out += ["s_mul_i32 s82, s37, 12288", f"s_add_u32 s82, s82, {RB}", "v_add_u32 v15, s82, v1",
                f"s_mul_i32 s82, s37, {16*160}", f"s_add_u32 s82, s82, {IB}", "v_mul_u32_u24 v6, 160, v2",
                "v_lshl_add_u32 v6, v3, 3, v6", "v_add_u32 v6, s82, v6",
                "v_lshlrev_b32 v4, 16, v2", "v_lshl_add_u32 v4, v3, 4, v4", "v_add_u32 v4, s39, v4"]
        for k in range(3):
            out += [f"v_add_u32 v36, {4*k}, v3", "v_mul_u32_u24 v37, 43, v36", "v_lshrrev_b32 v37, 7, v37", "v_mul_u32_u24 v38, 3, v37",
                    "v_sub_u32 v36, v36, v38", "v_mul_u32_u24 v37, 2816, v37", "v_lshl_add_u32 v37, v36, 8, v37", f"v_lshl_add_u32 v{24+k}, v2, 4, v37"]
        A("\n".join(out))

    def seq_consts():
        A(f"""s_lshl_b32 s82, s37, 4
              v_add_u32 v60, s82, v2
              v_lshrrev_b32 v61, 1, v60
              v_cmp_eq_u32 vcc, 1, v60
              v_and_b32 v62, 1, v60
              v_cvt_f32_u32 v63, v3
              v_cndmask_b32 v61, v61, 32, vcc
              v_cndmask_b32 v62, v62, 0, vcc
              v_and_b32 v60, 1, v61
              v_cvt_f32_u32 v61, v61
              v_cvt_f32_u32 v62, v62
              v_mul_f32 v61, {f2u(1/64)}, v61
              v_mul_f32 v62, {f2u(0.25)}, v62
              v_mul_f32 v63, {f2u(8.0)}, v63
              v_fma_f32 v62, v61, v63, v62
              v_mul_u32_u24 v60, 0x8000, v60
              v_lshl_or_b32 v60, v60, 16, v60""")
        for ks in range(2):
            for pr in range(2):
                for b in range(2):
                    A(f"""v_fmamk_f32 v{136+b}, v61, {f2u(float(ks + 2*(2*pr+b)))}, v62
                          v_cos_f32 v{136+b}, v{136+b}""")
                A(f"""v_cvt_pk_bf16_f32 v{88+4*ks+pr}, v136, v137
                      v_xor_b32 v{90+4*ks+pr}, v60, v{88+4*ks+pr}""")

    def tile_stats():
        A("""v_pk_add_f32 v[60:61], v[64:65], v[66:67]
             v_pk_mul_f32 v[62:63], v[64:65], v[64:65]
             v_pk_fma_f32 v[62:63], v[66:67], v[66:67], v[62:63]""")
        for z in range(2, 8):
            A(f"""v_pk_add_f32 v[60:61], v[60:61], v[{64+2*z}:{65+2*z}]
                  v_pk_fma_f32 v[62:63], v[{64+2*z}:{65+2*z}], v[{64+2*z}:{65+2*z}], v[62:63]""")
        A("""v_add_f32 v48, v60, v61
             v_add_f32 v49, v62, v63""")
        qreduce(48, 49)
        A("v_mov_b32 v49, s28")

    def seq_pass1(img, extra_stores=None):
        for l in finish_stats(48, 49, 60): A(l)
        for z in range(8):
            A(normalize(64+2*z, 60))
            A(f"v_cvt_pk_bf16_f32 v{128+z}, v{64+2*z}, v{65+2*z}")
            if z & 1: A(f"ds_write_b64 {img}, v[{127+z}:{128+z}] offset:{32*(z>>1)}")
        A("""s_waitcnt lgkmcnt(0)
             s_barrier""")
        A.lg = []
        for m in range(4):
            for ks in range(2):
                for hh in range(2):
                    r = 96 + 8*m + 4*ks + 2*hh
                    A(f"ds_read_b64_tr_b16 v[{r}:{r+1}], v7 offset:{ks*5120+hh*2560+32*m}", ("p1", m))
        if extra_stores: extra_stores()
        for m in range(4):
            A.wait_lg(("p1", m))
            A(f"{MF} v[{32+4*m}:{35+4*m}], v[{96+8*m}:{99+8*m}], v[88:91], 0")
            A(f"{MF} v[{32+4*m}:{35+4*m}], v[{100+8*m}:{103+8*m}], v[92:95], v[{32+4*m}:{35+4*m}]")
        for z in range(8):
            A(f"v_cvt_pk_bf16_f32 v{128+z}, v{32+2*z}, v{33+2*z}")
            if z == 3: A("buffer_store_dwordx4 v[128:131], v8, s[4:7], s67 offen sc1")
        A("buffer_store_dwordx4 v[132:135], v8, s[4:7], s67 offen offset:128 sc1")

    seq_consts()
    bg = A.lines[mark0:]; del A.lines[mark0:]
    w1l = [l for l in bg if "buffer_load" in l]
    A.vm = [t for t in A.vm if t is not None]
    for l in bg:
        if l not in w1l: A(l)
    A.wait_vm(("x", -1))
    TS(0)
    nx = XPRE
    for z in range(8):
        if z % 4 == 0 and nx < 18: A(xl[nx], ("x", nx - 2)); nx += 1
        A(f"""v_lshlrev_b32 v{64+2*z}, 16, v{128+z}
              v_and_b32 v{65+2*z}, 0xffff0000, v{128+z}""")
    for z in range(16):
        A.wait_vm(("x", z))
        if nx < 18: A(xl[nx], ("x", nx - 2)); nx += 1
        elif w1l and W1EARLY: A(w1l.pop(0))
        for k in range(4):
            r = xr(z) + k; first = z == 0 and k == 0
            A(f"""v_dot2_f32_bf16 v48, v{r}, s81, {0 if first else "v48"}
                  v_dot2_f32_bf16 v49, v{r}, v{r}, {0 if first else "v49"}""")
    A("""s_nop 2
         v_add_f32_dpp v48, v48, v48 quad_perm:[1,0,3,2] row_mask:0xf bank_mask:0xf
         v_add_f32_dpp v49, v49, v49 quad_perm:[1,0,3,2] row_mask:0xf bank_mask:0xf
         v_add_f32_dpp v48, v48, v48 quad_perm:[2,3,0,1] row_mask:0xf bank_mask:0xf
         v_add_f32_dpp v49, v49, v49 quad_perm:[2,3,0,1] row_mask:0xf bank_mask:0xf""")
    TS(2)
    seq_pass1("v244")
    def relayout(later):
        A("""v_lshrrev_b32 v32, 2, v2
             v_and_b32 v34, 3, v2""")
        A(f"""s_lshl_b32 s82, s37, 12
              v_lshlrev_b32 v40, 5, v0
              v_add_u32 v40, s82, v40
              v_lshlrev_b32 v43, 9, v32
              v_lshl_add_u32 v43, v3, 5, v43
              v_lshl_add_u32 v43, v34, 3, v43
              v_add_u32 v43, s82, v43
              s_mul_i32 s54, s33, 180224
              s_add_u32 s54, s54, {W1F}
              s_lshl_b32 s84, s37, 8
              s_add_u32 s83, s54, s84
              s_lshl_b32 s85, s32, 12
              s_add_u32 s85, s85, s83
              s_add_u32 s86, s85, 114688
              s_mul_i32 s87, s32, 3072
              s_add_u32 s87, s87, s83
              s_add_u32 s87, s87, 65536""")
        for rq in range(2):
            b = 144 + 8*rq
            A(f"""s_waitcnt vmcnt({later + 2 - 2*rq})
                  v_swap_b32 v{b+1}, v{b+4}
                  v_swap_b32 v{b+3}, v{b+5}
                  v_swap_b32 v{b+2}, v{b+4}
                  v_swap_b32 v{b+5}, v{b+6}
                  ds_write_b128 v40, v[{b}:{b+3}] offset:{2048*rq}
                  ds_write_b128 v40, v[{b+4}:{b+7}] offset:{2048*rq+16}""")
        A("s_waitcnt lgkmcnt(0)")
        for z in range(3):
            d = 170 if (z == 1 and DEFB) else 144 + 4*z
            A(f"""ds_read_b64_tr_b16 v[{d}:{d+1}], v43 offset:{128*z}
                  ds_read_b64_tr_b16 v[{d+2}:{d+3}], v43 offset:{128*z+2048}""")
        A(f"""s_waitcnt lgkmcnt(4)
             buffer_store_dwordx4 v[144:147], v5, s[4:7], s85 offen sc1
             {"s_mov_b32 s49, s86" if DEFB else "s_waitcnt lgkmcnt(2)"}
             {"" if DEFB else "buffer_store_dwordx4 v[148:151], v5, s[4:7], s86 offen sc1"}
             s_waitcnt lgkmcnt(0)
             s_mov_b32 exec_hi, 0xffff
             buffer_store_dwordx4 v[152:155], v5, s[4:7], s87 offen sc1
             s_mov_b32 exec_hi, -1""")
    relayout(2)
    w2addr()
    setup_touch()
    A(f"s_waitcnt vmcnt({2 if DEFB else 3})")
    gflag("s68")
    TS(3)
    A("""buffer_load_dwordx4 v[176:179], v46, s[24:27], 0 offen
         buffer_load_dwordx4 v[180:183], v47, s[24:27], 0 offen
         s_mov_b64 exec, 7
         buffer_load_dword v168, v44, s[4:7], 0 offen sc1
         s_cmp_eq_u32 s37, 0
         s_cselect_b64 exec, 1, 0
         buffer_store_dword v236, off, s[4:7], s38 offset:16 sc1
         s_mov_b64 exec, -1""")
    A(f"""s_lshl_b32 s82, s37, 2
          s_add_u32 s1, s82, s38
          s_mov_b32 s12, s50
          s_mov_b32 s13, s51
          s_mov_b32 s14, {2*MB}""")
    setup_gather()

    def layer(L):
        nts[0] = 4
        def resload():
            for r in range(2):
                A(f"buffer_load_dwordx4 v[{160+4*r}:{163+4*r}], v23, s[8:11], s{71 if r == 0 else 80} offen sc1", "res")
        if L == 0: resload()
        XS = "" if WARM & (8 if L == 0 else 1) else "sc1"
        HS = "" if (WARM & 2 and L == 1) else "sc1"
        D = dict(GPB=0, LSTEP=5, EVL=16, BURSTR=2, EVA=14, EVP=32, EVC=48, NPRE=7, EVR=1 if SENT else 15, GR=8 if SENT else 10, GFB=11, POLLB=18 if SENT else 26, GB=14 if SENT else 24, BURST=0 if SENT else 9, AGGA=0, AGGR=0)
        GPB, LSTEP, EVL, BURSTR, EVA, EVP, EVC, NPRE, EVR, GR, GF_B, POLLB, GB, BURST, AGGA, AGGR = [P(f"{k}{L}", P(k, v)) for k, v in D.items()]
        B2, BA, TC, TSN, BB = 192, 200, 206, 214, 222
        A(f"""s_cmp_eq_u32 s43, 32
              s_cselect_b32 s84, 0, 1.0
              s_cselect_b32 s85, 1.0, 0
              s_cmp_gt_u32 s43, 32
              s_cselect_b32 s86, -1.0, 1.0
              s_and_b32 s82, s43, 31
              s_cmp_eq_u32 s82, 0
              s_cselect_b32 s86, 0, s86
              v_lshrrev_b32 v32, 1, v2
              v_lshlrev_b32 v32, 6, v32
              v_add_u32 v32, s55, v32
              v_cvt_f32_u32 v32, v32
              v_and_b32 v33, 1, v2
              v_cvt_f32_u32 v39, v33
              v_cvt_f32_u32 v34, v3
              v_cvt_f32_u32 v40, v2
              v_mul_f32 v32, {f2u(1/2048)}, v32
              v_mul_f32 v39, {f2u(0.25)}, v39
              v_add_f32 v35, v34, v34
              v_fma_f32 v39, v32, v35, v39
              v_mul_u32_u24 v33, 0x8000, v33
              v_lshl_or_b32 v33, v33, 16, v33
              v_mul_f32 v34, 4.0, v34""")
        for ks in range(2):
            for z in range(4):
                A(f"""v_fmamk_f32 v35, v32, {f2u(float(16*ks + 8*(z>>1) + (z&1)))}, v39
                      v_cos_f32 v36, v35
                      v_sin_f32 v37, v35
                      v_mul_f32 v38, s85, v36
                      v_mul_f32 v36, s84, v36
                      v_fma_f32 v37, v37, s86, v38
                      v_cvt_pk_bf16_f32 v{B2+4*ks+z}, v36, v37""")
        def sincos4(scale, cdst, sdst, add=0):
            A(f"""v_mul_f32 v32, {f2u(scale)}, v40
                  v_mul_f32 v39, v32, v34""")
            for j in range(4):
                A(f"""v_fmamk_f32 v35, v32, {f2u(float(j+add))}, v39
                      v_cos_f32 v{cdst+j}, v35
                      v_sin_f32 v{sdst+j}, v35""")
        sincos4(1/16, 44, 48)
        A(f"""v_cvt_pk_bf16_f32 v{BA+2}, v44, v45
              v_cvt_pk_bf16_f32 v{BA+3}, v46, v47
              v_cvt_pk_bf16_f32 v{BA+4}, v48, v49
              v_cvt_pk_bf16_f32 v{BA+5}, v50, v51
              v_xor_b32 v{BA}, 0x80008000, v{BA+4}
              v_xor_b32 v{BA+1}, 0x80008000, v{BA+5}""")
        sincos4(1/512, TC, TSN)
        sincos4(1/512, TC+4, TSN+4, 16)
        sincos4(1/32, 44, 48)
        for ks in range(2):
            A(f"""v_cvt_pk_bf16_f32 v{BB+4*ks}, v{44+4*ks}, v{45+4*ks}
                  v_cvt_pk_bf16_f32 v{BB+4*ks+1}, v{46+4*ks}, v{47+4*ks}
                  v_xor_b32 v{BB+4*ks+2}, v33, v{BB+4*ks}
                  v_xor_b32 v{BB+4*ks+3}, v33, v{BB+4*ks+1}""")
        for z in range(8):
            A(f"v_xor_b32 v{BB+8+z}, 0x80000000, v{BB+z}")
        A(f"""s_mov_b32 s90, s70
              s_lshl_b32 s91, s37, 14
              s_add_u32 s91, s91, {YB}
              s_mov_b32 m0, s91
              s_lshl_b32 s92, s32, 11
              s_add_u32 s92, s92, {CX + 16}
              v_lshlrev_b32 v41, 7, v2""")
        if L == 0:
            A(f"""s_lshl_b32 s93, s33, 7
                  s_add_u32 s93, s93, {CX}
                  v_lshlrev_b32 v184, 11, v2
                  v_lshl_add_u32 v184, v3, 2, v184""")
            A("buffer_load_dword v36, v9, s[4:7], s69 offen sc1\ns_waitcnt vmcnt(5)") if GPRE else A("s_waitcnt vmcnt(6)")
            gflag("s1")
            if GPRE: A("s_waitcnt vmcnt(1)\nv_cmp_ne_u32 vcc, s28, v36\ns_cbranch_vccz L_pG0_ok")
        if L == 1 and WARM & 3: warm(44 if WARM & 2 else 0)
        TS()
        vpoll(f"L_pG{L}", "buffer_load_dword v36, v9, s[4:7], s69 offen sc1", [36], sleep=GSLEEP)
        TS()
        m0_ = len(A.lines)
        if L == 0:
            A(f"""s_lshl_b32 s82, s37, 12
                  v_add_u32 v42, s82, v1
                  v_lshrrev_b32 v44, 2, v2
                  v_and_b32 v45, 3, v2
                  v_lshlrev_b32 v44, 7, v44
                  v_lshl_add_u32 v44, v45, 4, v44
                  v_lshrrev_b32 v45, 1, v3
                  v_lshl_add_u32 v44, v45, 6, v44
                  v_and_b32 v45, 1, v3
                  v_lshl_add_u32 v44, v45, 3, v44
                  v_add_u32 v44, s82, v44
                  ds_write_b128 v42, v[176:179]
                  ds_write_b128 v42, v[180:183] offset:1024
                  s_waitcnt lgkmcnt(0)
                  ds_read_b64_tr_b16 v[176:177], v44
                  ds_read_b64_tr_b16 v[178:179], v44 offset:512
                  ds_read_b64_tr_b16 v[180:181], v44 offset:1024
                  ds_read_b64_tr_b16 v[182:183], v44 offset:1536
                  s_waitcnt lgkmcnt(0)""")
            setup_spectral()
        weave = A.lines[m0_:]; del A.lines[m0_:]
        per = -(-len(weave) // 13)
        for z in range(16):
            if z >= 3:
                for l in weave[per*(z-3):per*(z-2)]: A(l)
            if z and z % 4 == 0: A("s_add_u32 m0, m0, 4096")
            A(f"buffer_load_dwordx4 v16, s[4:7], s90 offen offset:{(z%4)*1024} {LY} lds", ("y", z >> 2))
            if z < 15: A(f"s_add_u32 s90, s90, {16384 - 1024}" if z % 4 != 3 else f"s_sub_u32 s90, s90, {3*(16384 - 1024) - 128}")
        A("s_barrier")
        if L == 0:
            A("buffer_load_dword v185, v184, s[4:7], s93 offen sc1", "gw")
            A("buffer_load_dword v168, v41, s[4:7], s92 offen sc1", "res")
        else: resload()
        if CPOS == 1 and L == 0 or CPOS == 2: clear_h()
        A.lg = []
        def p2mfma(mt):
            A.wait_lg(("p2", mt))
            A(f"{MF} v[{32+4*mt}:{35+4*mt}], v[{96+8*mt}:{99+8*mt}], v[{B2}:{B2+3}], 0")
            A(f"{MF} v[{32+4*mt}:{35+4*mt}], v[{100+8*mt}:{103+8*mt}], v[{B2+4}:{B2+7}], v[{32+4*mt}:{35+4*mt}]")
        def p2out(m):
            A(f"""v_cvt_pk_bf16_f32 v{64+2*m}, v{32+4*m}, v{33+4*m}
                  v_cvt_pk_bf16_f32 v{65+2*m}, v{34+4*m}, v{35+4*m}""")
            A(f"ds_write_b64 v{19+(m&1)}, v[{64+2*m}:{65+2*m}] offset:{64*(m>>1)}")
        for cg in range(4):
            A.wait_vm(("y", cg))
            if cg == 0: TS()
            for mt in (2*cg, 2*cg+1):
                for ks in range(2):
                    for hh in range(2):
                        r = 96 + 8*mt + 4*ks + 2*hh
                        A(f"ds_read_b64_tr_b16 v[{r}:{r+1}], v{18 - (mt & 1)} offset:{cg*4096+ks*2048+hh*1024}", ("p2", mt))
            if cg >= 1: p2out(2*cg-2); p2out(2*cg-1)
            p2mfma(2*cg); p2mfma(2*cg+1)
            if cg == 3:
                if L == 0:
                    A(f"""s_lshl_b32 s82, s40, 12
                          s_lshl_b32 s83, s37, 8
                          s_add_u32 s82, s82, s83
                          s_add_u32 s82, s82, {W2F}
                          s_add_u32 s83, s82, {256*4096}""")
                    if DEFB: A("buffer_store_dwordx4 v[170:173], v5, s[4:7], s49 offen sc1")
                    A("buffer_store_dwordx4 v[176:179], v5, s[4:7], s82 offen sc1", "w2s")
                    A("""s_cmp_lt_u32 s40, 96
                         s_cselect_b64 exec, -1, 0""")
                    A("buffer_store_dwordx4 v[180:183], v5, s[4:7], s83 offen sc1", "cond")
                    A("s_mov_b64 exec, -1")
        p2out(6); p2out(7)
        if L == 0: check("L_pW", "gw", "v185", "buffer_load_dword v185, v184, s[4:7], s93 offen sc1")
        A("""s_waitcnt lgkmcnt(0)
             s_barrier""")
        A.lg = []
        TS()
        for r in range(2):
            for h in range(2):
                for cc in range(2):
                    reg = 96 + 8*r + 4*h + 2*cc
                    A(f"ds_read_b64_tr_b16 v[{reg}:{reg+1}], v{21+h} offset:{r*2064+cc*1032}", ("sa", r))
        A("s_add_u32 s46, s78, 45056")
        if CPOS == 0: clear_h()
        wnext = 0 if L == 0 else 19
        side = wgroup(wnext, wnext + (NSIDE0 if L == 0 else NSIDE1), "s90", "s91")
        wnext += len(side)
        mark = len(A.lines)
        for r in range(2):
            A.wait_lg(("sa", r))
            for h in range(2):
                for c2 in range(2):
                    d = 32 + 16*r + 8*c2 + 4*h
                    b = BA + 2 if c2 == 0 else BA
                    A(f"{MF} v[{d}:{d+3}], v[{96+8*r+4*h}:{99+8*r+4*h}], v[{b}:{b+3}], 0")
        for r in range(2):
            for z in range(4):
                ur, ui = 32 + 16*r + 2*z, 40 + 16*r + 2*z
                A(f"""v_pk_mul_f32 v[64:65], v[{ui}:{ui+1}], v[{TSN+2*z}:{TSN+2*z+1}]
                      v_pk_mul_f32 v[66:67], v[{ur}:{ur+1}], v[{TSN+2*z}:{TSN+2*z+1}]
                      v_pk_fma_f32 v[64:65], v[{ur}:{ur+1}], v[{TC+2*z}:{TC+2*z+1}], v[64:65]
                      v_pk_fma_f32 v[66:67], v[{ui}:{ui+1}], v[{TC+2*z}:{TC+2*z+1}], v[66:67] neg_lo:[0,0,1] neg_hi:[0,0,1]
                      v_cvt_pk_bf16_f32 v{112+8*r+z}, v64, v65
                      v_cvt_pk_bf16_f32 v{116+8*r+z}, v66, v67""")
            for g in range(2):
                d = 80 + 8*r + 4*g
                A(f"{MF} v[{d}:{d+3}], v[{112+8*r}:{115+8*r}], v[{BB+8*g}:{BB+8*g+3}], 0")
            for g in range(2):
                d = 80 + 8*r + 4*g
                A(f"{MF} v[{d}:{d+3}], v[{116+8*r}:{119+8*r}], v[{BB+8*g+4}:{BB+8*g+7}], v[{d}:{d+3}]")
        A("RESWAIT")
        nres = A.vm_count("res")
        for r in range(2):
            A(f"""v_permlane16_swap_b32 v{160+4*r}, v{162+4*r}
                  v_permlane16_swap_b32 v{161+4*r}, v{163+4*r}""")
        for r in range(2):
            for z in range(4):
                A(f"""v_lshlrev_b32 v{128+8*r+2*z}, 16, v{160+4*r+z}
                      v_and_b32 v{129+8*r+2*z}, 0xffff0000, v{160+4*r+z}""")
        if L == 0:
            A(f"""v_cmp_ne_u32 vcc, s3, v168
                  s_cmp_eq_u64 vcc, {-2 if slow else 0}
                  s_cselect_b64 s[60:61], 1, 0
                  s_cselect_b64 s[62:63], 0, 1
                  s_cselect_b32 s56, 0xffff, 0
                  s_cselect_b32 s57, 0xffff, 0
                  s_cselect_b32 s58, 0, 0xffff
                  s_cselect_b32 s59, 0, 0xffff""")
        for r in range(2):
            x = 80 + 8*r
            for z in range(4): A(f"v_pk_add_f32 v[{x+2*z}:{x+2*z+1}], v[{x+2*z}:{x+2*z+1}], v[{x+48+2*z}:{x+49+2*z}]")
            A(f"""v_pk_add_f32 v[{32+4*r}:{33+4*r}], v[{x}:{x+1}], v[{x+2}:{x+3}]
                  v_pk_mul_f32 v[{34+4*r}:{35+4*r}], v[{x}:{x+1}], v[{x}:{x+1}]""")
            for z in range(1, 4):
                if z > 1: A(f"v_pk_add_f32 v[{32+4*r}:{33+4*r}], v[{32+4*r}:{33+4*r}], v[{x+2*z}:{x+2*z+1}]")
                A(f"v_pk_fma_f32 v[{34+4*r}:{35+4*r}], v[{x+2*z}:{x+2*z+1}], v[{x+2*z}:{x+2*z+1}], v[{34+4*r}:{35+4*r}]")
            A(f"""v_add_f32 v{40+2*r}, v{32+4*r}, v{33+4*r}
                  v_add_f32 v{41+2*r}, v{34+4*r}, v{35+4*r}""")
        A("""v_permlane32_swap_b32 v40, v42
             v_permlane32_swap_b32 v41, v43
             v_add_f32 v40, v40, v42
             v_add_f32 v41, v41, v43
             DGAP
             v_permlane16_swap_b32 v40, v41
             v_add_f32 v40, v40, v41""")
        for sh in (8, 4, 2, 1):
            A(f"DGAP\nv_add_f32_dpp v40, v40, v40 row_ror:{sh} row_mask:0xf bank_mask:0xf")
        A("""v_mov_b32 v41, v40
             DGAP
             v_permlane16_swap_b32 v40, v41""")
        for l in finish_stats(40, 41, 44, LOG2E): A(l)
        A("""v_mov_b32 v48, v44
             v_mov_b32 v49, v45
             v_rcp_f32 v46, v44
             v_permlane32_swap_b32 v44, v48
             v_permlane32_swap_b32 v45, v49
             v_mov_b32 v47, v40""")
        for r in range(2):
            for z in range(4):
                x = 80 + 8*r + 2*z
                A(normalize(x, 44+4*r))
                A(f"v_cvt_pk_bf16_f32 v{64+4*r+z}, v{x}, v{x+1}")
                if z & 1: A(f"ds_write_b64 v27, v[{63+4*r+z}:{64+4*r+z}] offset:{1024*r+512*(z>>1)}")
        body = A.lines[mark:]; del A.lines[mark:]
        first_gap = min(k for k, l in enumerate(body) if "DGAP" in l)
        ngap = NGAP
        step = (first_gap - 4) // (len(side) - ngap); issued = 0; held = None; seen_gap = 0
        for k, l in enumerate(body):
            if "RESWAIT" in l: A(f"s_waitcnt vmcnt({issued + nres})"); continue
            if "DGAP" in l:
                seen_gap += 1
                if ngap and (seen_gap % 2 == 1 or NGAP > 3): put(side.pop(0)); ngap -= 1
                continue
            A.lines.append(l)
            if held and "s_cmp" not in l and "s_cselect" not in l: A(held[1], held[2]); issued += 1; held = None
            elif k % step == 1 and len(side) > ngap and k < first_gap and "s_cmp" not in l and "s_cselect" not in l and "v_cmp" not in l:
                held = side.pop(0); A(held[0][0])
        assert held is None
        assert not side
        if L == 0:
            A.wait_vm("w2s")
            A("s_add_u32 s1, s1, 32")
            gflag("s1")
        A(f"""s_mov_b32 exec_lo, 1
              s_mov_b32 exec_hi, 1
              buffer_store_dwordx2 v[46:47], v245, s[4:7], s0 offen {XS}
              s_mov_b64 exec, -1
              s_waitcnt lgkmcnt(0)
              s_barrier
              ds_read_b128 v[48:51], v28
              ds_read_b128 v[52:55], v31 offset:128
              s_waitcnt lgkmcnt(1)
              buffer_store_dwordx4 v[48:51], v29, s[4:7], s73 offen {XS}
              s_waitcnt lgkmcnt(0)
              buffer_store_dwordx4 v[52:55], v29, s[4:7], s73 offen offset:2048 {XS}""")
        TS()
        TSflush()
        if L == 0: setup_gemm()
        A(f"""s_mov_b32 s44, s75
              s_add_u32 s45, s75, 16384
              """)
        for nu in range(4):
            A(f"""s_add_u32 s82, s37, {1+nu}
                  s_and_b32 s82, s82, 3
                  s_mul_i32 s82, s82, 45056
                  s_add_u32 s{96+nu}, s79, s82""")
        if L == 0:
            A(f"""s_lshl_b32 s82, s35, 2
                  s_add_u32 s82, s82, s37
                  s_mul_i32 s82, s82, 11
                  v_min_u32 v196, 10, v2
                  v_add_u32 v196, s82, v196
                  v_and_b32 v196, 255, v196
                  v_lshlrev_b32 v196, 7, v196
                  v_lshl_add_u32 v196, v3, 2, v196
                  s_mov_b32 s2, {CX + 32}""")
        A(f"""s_lshl_b32 s82, s32, 1
              s_add_u32 s82, s82, s34
              s_add_u32 s82, s82, s35
              s_and_b32 s42, s82, {3 if ROTH else 0}
              s_mul_i32 s83, s42, 2816""")
        for nu in range(4): A(f"s_add_u32 s{96+nu}, s{96+nu}, s83")
        for k in range(1, 4):
            A(f"""s_add_u32 s82, s42, {k}
                  s_cmp_eq_u32 s82, 4
                  s_cselect_b32 s82, -3, 1
                  s_mul_i32 s{83+k}, s82, 2816""")
        A(f"""s_add_u32 s82, s42, 3
              s_and_b32 s82, s82, 3
              s_mul_i32 s87, s82, 2816
              s_mov_b32 s88, s83""")
        if EARLY & 1: A.lg = []
        else: A.vm0(); A.lg = []
        cflag(0)
        for _ in range(NC1 if L == 0 else NC1B): put(witem(wnext)); wnext += 1
        assert wnext <= 35
        GW2 = "buffer_load_dword v197, v196, s[4:7], s2 offen sc1"
        put(cpoll_load("v238", 0))
        if L == 0 and W2T: A(GW2, "gw2")
        cpoll_check(f"L_pC1{L}", "v238", 0)
        if "g2" not in sys.argv: TS()

        def xreg(n):
            return f"a[{176+4*n}:{179+4*n}]" if n < 20 else f"v[{128+4*(n-20)}:{131+4*(n-20)}]"
        xq = []
        for kk in range(16):
            for T in range(2):
                pre = [f"s_add_u32 s{44+T}, s{44+T}, 4096"] if (kk % 4 == 0 and kk) else []
                xq.append((pre, f"buffer_load_dwordx4 {xreg(2*kk+T)}, v1, s[4:7], s{44+T} offen offset:{(kk%4)*1024} {LX}", ("xn", kk)))
        PRE = 10
        for it in xq[:PRE]: put(it)
        tq = []
        if L == 0:
            setup_tail()
            A(f"""s_lshl_b32 s49, s35, 2
                  s_add_u32 s49, s49, s37
                  s_mul_i32 s49, s49, 45056
                  s_add_u32 s49, s49, {W2F}""")
        if L == 0 and W2T:
            A(f"""s_and_b32 s82, s32, 1
                  s_lshl_b32 s82, s82, 1
                  s_add_u32 s82, s82, s34
                  s_mul_i32 s82, s82, {88*128}
                  s_add_u32 s82, s82, s49
                  v_lshrrev_b32 v198, 3, v0
                  v_lshlrev_b32 v198, 7, v198
                  v_add_u32 v198, s82, v198
                  s_mov_b32 s89, 4096
                  s_mov_b32 s48, 8192""")
            check("L_pW2", "gw2", "v197", GW2)
            tq = [f"buffer_load_dword v199, v198, s[4:7], {('0', 's89', 's48')[k >> 2]} offen offset:{1024*(k & 3)} sc1" for k in range(11)]
        if L == 0 or not NOBAR: A("s_barrier")
        frags = []
        for ps, nt in ((0, 4), (1, 3), (2, 4)):
            for kk in range(16):
                for t in range(nt):
                    if ps == 0: addr = ("v1", kk*4096 + t*1024)
                    elif ps == 1: addr = ("v10", kk*3072 + t*1024)
                    elif kk < 12: addr = ("v11", kk*4096 + t*1024)
                    else: addr = ("v10", 16384 + (kk-12)*4096 + t*1024)
                    frags.append((ps, kk, t, addr))
        NF, LOOK = len(frags), 6
        def aread(n):
            ps, kk, t, (va, off) = frags[n]
            r = 96 + 4*(n % 8)
            A(f"ds_read_b128 v[{r}:{r+3}], {va} offset:{off}", ("af", n))
        def acc(ps, t, T): return 32 + 32*(ps & 1) + 8*t + 4*T

        def epi(ps, nt, together=False, packed=False):
            ops, tmp_last, k = [], {}, 0
            for T in range(2):
                cv = []
                for t in range(nt):
                    a = acc(ps, t, T); e = 184 + 2*(k % 3); k += 1
                    b = len(ops); w = tmp_last.get(e, [])
                    if packed:
                        ops += [["t", f"v_exp_f32 v{e}, -v{a}", w], ["t", f"v_exp_f32 v{e+1}, -v{a+1}", w],
                                ["v", f"v_pk_mul_f32 v[{a}:{a+1}], v[{a}:{a+1}], v[{a+2}:{a+3}]", [b, b+1]],
                                ["v", f"v_pk_fma_f32 v[{e}:{e+1}], v[{e}:{e+1}], s[30:31], s[30:31]", [b, b+1]],
                                ["t", f"v_rcp_f32 v{e}, v{e}", [b+3]], ["t", f"v_rcp_f32 v{e+1}, v{e+1}", [b+3]],
                                ["v", f"v_pk_mul_f32 v[{a}:{a+1}], v[{a}:{a+1}], v[{e}:{e+1}]", [b+2, b+4, b+5]],
                                ["v", f"v_cvt_pk_bf16_f32 v{176+4*T+t}, v{a}, v{a+1}", [b+6]]]
                        tmp_last[e] = [b+6]; cv.append(b+7)
                        continue
                    ops += [["t", f"v_exp_f32 v{e}, -v{a}", w], ["t", f"v_exp_f32 v{e+1}, -v{a+1}", w],
                            ["v", f"v_mul_f32 v{a}, v{a}, v{a+2}", [b]], ["v", f"v_mul_f32 v{a+1}, v{a+1}, v{a+3}", [b+1]],
                            ["v", f"v_fma_f32 v{e}, v{e}, s65, s65", [b]], ["v", f"v_fma_f32 v{e+1}, v{e+1}, s65, s65", [b+1]],
                            ["t", f"v_rcp_f32 v{e}, v{e}", [b+4]], ["t", f"v_rcp_f32 v{e+1}, v{e+1}", [b+5]],
                            ["v", f"v_mul_f32 v{a}, v{a}, v{e}", [b+2, b+6]], ["v", f"v_mul_f32 v{a+1}, v{a+1}, v{e+1}", [b+3, b+7]],
                            ["v", f"v_cvt_pk_bf16_f32 v{176+4*T+t}, v{a}, v{a+1}", [b+8, b+9]]]
                    tmp_last[e] = [b+8, b+9]; cv.append(b+10)
                b, so = 176 + 4*T, 78 if T == 0 else 46
                if nt == 4:
                    ops.append(["m", f"buffer_store_dwordx4 v[{b}:{b+3}], v1, s[4:7], s{so} offen offset:{512*ps} {HS}", cv])
                else:
                    n0 = len(ops)
                    ops += [["t", f"v_permlane32_swap_b32 v{b}, v{b+2}", cv], ["t", f"v_permlane32_swap_b32 v{b+1}, v{b+3}", cv],
                            ["t", f"v_permlane16_swap_b32 v{b}, v{b+1}", [n0, n0+1]], ["t", f"v_permlane16_swap_b32 v{b+2}, v{b+3}", [n0, n0+1]],
                            ["m", f"s_mov_b32 exec_hi, 0xffff\nbuffer_store_dwordx4 v[{b}:{b+3}], v1, s[4:7], s{so} offen offset:2048 {HS}\ns_mov_b32 exec_hi, -1", [n0+2, n0+3]]]
            if together:
                ms = [o for o in ops if o[0] == "m"]
                ms[0][2] = ms[0][2] + ms[1][2]
            return ops

        class Fill:
            def __init__(s, ops, tag): s.ops, s.done, s.tag, s.now = ops, {}, tag, 0
            def left(s): return len(s.done) < len(s.ops)
            def take(s, kind):
                for i, (k, text, deps) in enumerate(s.ops):
                    if i in s.done or k != kind: continue
                    if all(d in s.done and s.done[d] < s.now for d in deps):
                        s.done[i] = s.now; A(text, s.tag if k == "m" else None); return True
                return False
            def drain(s, between=None):
                n = 0
                while s.left():
                    s.now += 1
                    if not (s.take("m") or s.take("t") or s.take("v")): raise SystemExit("stuck")
                    s.take("v")
                    n += 1
                    if between: between(n)

        def wait_for(n, vmtag=None):
            parts = []
            if vmtag is not None and vmtag in A.vm: parts.append(f"vmcnt({A.vm_count(vmtag)})")
            if ("af", n) in A.lg: parts.append(f"lgkmcnt({A.lg_count(('af', n))})")
            if parts: A("s_waitcnt " + " ".join(parts))

        def wneed(n):
            ps, kk, t, _ = frags[n]
            return ((0, 65536, 114688)[ps] + kk*(4096, 3072, 4096)[ps] + 1024*t) // 4096
        W = {"vis": wnext - 1, "at": {}, "bar": True}
        if L == 1 and NOBAR: W = {"vis": 18, "at": {j: -1000 for j in range(19, wnext)}, "bar": False}
        N1, N2 = 64, 112
        NFREE = N1 + 34

        def stream(lo, hi, vq, fill, events, extra=False, dense=False, agg=0):
            lastm = lo - 2
            for n in range(lo, hi):
                ps, kk, t, _ = frags[n]
                r = 96 + 4*(n % 8)
                for T in range(2):
                    a = acc(ps, t, T)
                    A(f"{MF} v[{a}:{a+3}], v[{r}:{r+3}], {xreg(2*kk+T)}, " + ("0" if kk == 0 else f"v[{a}:{a+3}]"))
                    if fill: fill.now += 1
                    if T == 0:
                        if vq and vq[0][0]: A(vq[0][0].pop(0))
                        if n + LOOK < NF: aread(n + LOOK)
                        if fill and n >= lo + 2:
                            fill.take("v")
                            if agg & 1: fill.take("v")
                    else:
                        if n + 1 < NF:
                            nps, nkk, nt_, _ = frags[n+1]
                            xt = ("xn", nkk) if (nps == 0 and nt_ == 0) else None
                            need = wneed(n + 1 + LOOK) if n + 1 + LOOK < NF else -1
                            if need > W["vis"] or n + 1 == NFREE:
                                tgt = max([need, W["vis"]] + [j for j, at in W["at"].items() if at <= n - WLAT])
                                assert tgt <= W["vis"] or tgt in W["at"], (L, n, tgt)
                                tags = [t_ for t_ in (xt, ("W", tgt) if tgt > W["vis"] else None) if t_ in A.vm]
                                wait_for(n + 1, min(tags, key=A.vm_count) if tags else None)
                                A("s_barrier"); W["vis"] = tgt; W["bar"] = True
                                if n + 1 == NFREE:
                                    k = max([q + 1 for q, it in enumerate(vq) if isinstance(it[2], tuple) and it[2][0] == "W"] + [0])
                                    vq[k:k] = [witem(j) for j in range(40, 44)]
                            else: wait_for(n + 1, xt)
                            ev = events.get(n + 1)
                            if ev: ev(n + 1)
                        if fill and n >= lo + 2 and n - lastm >= 2 and fill.take("m"): lastm = n
                        elif vq and not vq[0][0] and (W["bar"] or vq[0][2] != ("W", 35)) and n - lastm >= (1 if dense and len(vq) > (hi - n) // 2 else 2) and (not fill or not fill.left() or vq[0][2] != "late"):
                            it = vq.pop(0); put(it); lastm = n
                            if isinstance(it[2], tuple) and it[2][0] == "W": W["at"][it[2][1]] = n
                            if extra and fill: fill.take("t") or fill.take("v")
                        elif tq and n >= T0 and (n - T0) // W2T > 11 - len(tq) - 1: A(tq.pop(0))
                        elif fill and n >= lo + 2:
                            if not fill.take("t"):
                                fill.take("v"); fill.take("v")
                            elif agg & 2: fill.take("v")
                            if agg & 4: fill.take("t")

        A.lg = []
        for n in range(LOOK): aread(n)
        wait_for(0, ("xn", 0))
        vq = list(xq[PRE:]) + [witem(j) for j in range(wnext, 40)]
        if L == 0 and not W2T: vq.insert(8, ([], GW2, "gw2"))
        GW3 = """buffer_load_dword v198, v184, s[4:7], s93 offen offset:32 sc1"""
        if L == 0 and DEFB:
            assert wnext <= 28
            vq.insert(9, ([], GW3, "gw3"))
        stream(0, N1, vq, None, {44: lambda n: check("L_pW3", "gw3", "v198", GW3)} if (L == 0 and DEFB) else {})
        if "g2" not in sys.argv: TS()
        order = [(ks, nu) for ks in (0, 2, 4, 6, 8, 9, 10) for nu in range(4)] + [(ks, nu) for nu in range(4) for ks in (1, 3, 5, 7)]
        def hreg(i):
            if i < 11: return f"v[{192+4*i}:{195+4*i}]"
            if i < 15: return f"v[{160+4*(i-11)}:{163+4*(i-11)}]"
            if i < 16: return "v[96:99]"
            if i < 36: return f"a[{176+4*(i-16)}:{179+4*(i-16)}]"
            return f"v[{128+4*(i-36)}:{131+4*(i-36)}]"
        def hitem(i):
            ks, nu = order[i]; s = f"s{96+nu}"
            if ks < 8:
                return ([f"s_add_u32 {s}, {s}, s{83 + (ks >> 1)}"] if ks >= 2 else ([f"s_add_u32 {s}, {s}, s88"] if ks == 1 else []),
                        f"buffer_load_dwordx4 {hreg(i)}, v1, s[4:7], {s} offen offset:{(ks&1)*1024} {LH}", ("h", i))
            return ([f"s_sub_u32 {s}, {s}, s87"] if ks == 8 else [],
                    f"buffer_load_dwordx4 {hreg(i)}, v{24+ks-8}, s[4:7], {s} offen offset:2048 {LH}", ("h", i))
        w2q = []
        if L == 0:
            if not W2T: check("L_pW2", "gw2", "v197", GW2)
            for ks in (0, 2, 4, 6, 8, 9, 10, 1, 3, 5, 7):
                for m in range(4):
                    f = 4*ks + m
                    pre = [] if m else [f"s_add_u32 s48, s49, {4096*ks}"]
                    if m == 0 and ks < 8 and ROTH:
                        pre = [f"s_add_u32 s48, s42, {ks >> 1}", "s_and_b32 s48, s48, 3", "s_lshl_b32 s48, s48, 13", f"s_add_u32 s48, s48, s{49 if ks % 2 == 0 else 89}"]
                    w2q.append((pre,
                                f"buffer_load_dwordx4 a[{4*f}:{4*f+3}], v1, s[4:7], s48 offen offset:{m*1024} {LW}", "w2"))
        w2late = w2q[44 - W2LATE:]; w2q = w2q[:44 - W2LATE]
        vq += w2q
        fill = Fill(epi(0, 4), "hA")
        stream(N1, N2, vq, fill, {}, extra=(L == 0), agg=AGGA)
        fill.drain()
        if "g2" not in sys.argv: TS()
        k = max([q + 1 for q, it in enumerate(vq) if isinstance(it[2], tuple) and it[2][0] == "W"] + [0])
        vq[k:k] = [([], "buffer_load_dwordx2 v[246:247], v241, s[4:7], s77 offen sc1", "res"),
                   ([], "buffer_load_dwordx4 v[248:251], v1, s[4:7], s72 offen sc1", "res"),
                   ([], "buffer_load_dwordx4 v[252:255], v1, s[4:7], s72 offen offset:1024 sc1", "res")]
        def evA(n):
            A.wait_vm("hA"); cflag(4)
            if FORCE: cflag(8); cflag(12)
        def evP(n): vq.insert(0, cpoll_load("v239", 4))
        def evC(n):
            cpoll_check(f"L_pA{L}", "v239", 4)
            assert not any(it[2] == "res" for it in vq)
            cv = [k for k, o in enumerate(fill.ops) if o[1].startswith("v_cvt")]
            for z in range(8):
                b = len(fill.ops)
                fill.ops += [["v", f"v_lshlrev_b32 v{64+2*z}, 16, v{248+z}", cv], ["v", f"v_and_b32 v{65+2*z}, 0xffff0000, v{248+z}", cv],
                             ["v", f"v_fma_f32 v{64+2*z}, v{64+2*z}, v246, v247", [b]], ["v", f"v_fma_f32 v{65+2*z}, v{65+2*z}, v246, v247", [b+1]]]
            vq.extend(hitem(i) for i in range(NPRE))
        fill = Fill(epi(1, 3, True), "hR")
        ev = {N2 + EVA: evA, N2 + EVP: evP, N2 + EVC: evC}
        if EVR < 0: ev[NF + EVR] = lambda n: (A.wait_vm("hR"), cflag(8))
        stream(N2, NF, vq, fill, ev, extra=(L == 0), dense=(L == 0), agg=AGGR)
        fill.drain()
        while vq: put(vq.pop(0))
        TS()

        hq = [hitem(i) for i in range(NPRE, 44)]
        fill = Fill(epi(2, 4, True, True), "hB")
        def feed(n):
            if n >= EVL and (n - EVL) % LSTEP == 0 and hq[0][2][1] < 16: put(hq.pop(0))
            if n == EVR: (None if SENT else A.wait_vm("hR")); cflag(8)
            if sum(1 for i, o in enumerate(fill.ops) if i not in fill.done and o[0] != "m") == 0 and "pollR" not in seen:
                seen.add("pollR"); put(cpoll_load("v239", 8))
        seen = set()
        fill.drain(feed)
        if SENT: cflag(12)
        if "g2" not in sys.argv: TS()
        def acc2(nu, m): return (32, 48, 80, 64)[nu] + 4*m
        def validate(nu):
            if not SENT: return
            lab = f"L_v{L}{nu}"
            A(f"""v_cmp_u_f32 vcc, v{acc2(nu, 0)}, v{acc2(nu, 0)}
                  s_cbranch_vccnz {lab}_re
                  {lab}_ok:""")
            t = [f"{lab}_re:"] + ([f"s_mov_b64 exec, 1", "v_mov_b32 v240, 1", f"s_mov_b32 s82, {TSO + 16384 + 16*L + 4*nu}", "buffer_atomic_add v240, off, s[4:7], s82", "s_mov_b64 exec, -1"] if CNT else []) + [f"s_sub_u32 s83, s76, {CF - C2 + 60*L}", "s_mov_b32 s82, 0", f"{lab}_lp:",
                 "buffer_load_dword v240, v239, s[4:7], s83 offen sc1", "s_add_u32 s82, s82, 1", f"s_cmp_gt_u32 s82, {SPIN}",
                 f"s_cbranch_scc1 {lab}_go", "s_waitcnt vmcnt(0)", "v_cmp_ne_u32 vcc, s28, v240", f"s_cbranch_vccnz {lab}_lp", f"{lab}_go:",
                 f"s_add_u32 s82, s37, {1+nu}", "s_and_b32 s82, s82, 3", "s_mul_i32 s82, s82, 45056", "s_add_u32 s82, s82, s79"]
            mine = [(i, ks) for i, (ks, n_) in enumerate(order) if n_ == nu]
            for i, ks in mine:
                if ks >= 8: t.append(f"buffer_load_dwordx4 {hreg(i)}, v{24+ks-8}, s[4:7], s82 offen offset:2048 sc1")
            for i, ks in mine:
                if ks < 8 and ks & 1:
                    t += [f"buffer_load_dwordx4 {hreg(i)}, v1, s[4:7], s82 offen offset:1024 sc1", "s_add_u32 s82, s82, 2816"]
            if nu == 3:
                for z in range(8):
                    t += [f"v_lshlrev_b32 v{64+2*z}, 16, v{248+z}", f"v_and_b32 v{65+2*z}, 0xffff0000, v{248+z}",
                          f"v_fma_f32 v{64+2*z}, v{64+2*z}, v246, v247", f"v_fma_f32 v{65+2*z}, v{65+2*z}, v246, v247"]
            t.append("s_waitcnt vmcnt(0)")
            for i, ks in mine:
                for m in range(4):
                    a = acc2(nu, m); f = 4*ks + m
                    t.append(f"{MF} v[{a}:{a+3}], a[{4*f}:{4*f+3}], {hreg(i)}, " + ("0" if (ks == 0 and nu < 3) else f"v[{a}:{a+3}]"))
            t += ["s_nop 7", f"s_branch {lab}_ok"]
            tails.append("\n".join(t))
        assert not (SENT and ROTH)
        pendw = []
        early = [(s_, mm) for mm in range(4) for s_ in range(2)]
        A.wait_vm(("h", 0))
        for i, (ks, nu) in enumerate(order):
            if i in TSG: TS()
            for m in range(4):
                a = acc2(nu, m)
                c = "0" if (ks == 0 and nu < 3) else f"v[{a}:{a+3}]"
                f = 4*ks + m
                A(f"{MF} v[{a}:{a+3}], a[{4*f}:{4*f+3}], {hreg(i)}, {c}")
                if m == 0 and hq:
                    nxt = hq[0][2][1]
                    if nxt == 16 and i == GR:
                        if "g2" in sys.argv and not TSG: TS()
                        cpoll_check(f"L_pR{L}", "v239", 8)
                        if "g2" in sys.argv and not TSG: TS()
                        for _ in range(BURSTR): put(hq.pop(0))
                    if nxt == 28 and i == GB:
                        if "g2" in sys.argv and not TSG: TS()
                        cpoll_check(f"L_pB{L}", "v239", 12)
                        if "g2" in sys.argv and not TSG: TS()
                        for _ in range(BURST): put(hq.pop(0))
                    if not ((nxt == 16 and i < GR) or (nxt == 28 and i < GB)): put(hq.pop(0))
                    elif nxt == 16 and w2late: put(w2late.pop(0))
                if m == 2 and hq and hq[0][2][1] == 16 and w2late and i < GR: put(w2late.pop(0))
                if m == 1 and hq:
                    for p in hq[0][0]: A(p)
                    hq[0][0].clear()
                if m == 2 and hq and hq[0][2][1] == POLLB and i >= GPB and "pollB" not in seen:
                    seen.add("pollB"); put(cpoll_load("v239", 12))
                if i == 40 and m == 0:
                    A("s_waitcnt lgkmcnt(0)\ns_barrier"); A.lg = []
                if i in (40, 41) and m != 1 and early:
                    for _ in range(2 if m == 2 else 1):
                        s_, mm = early.pop(0); r = 100 + 16*s_ + 4*mm
                        A(f"ds_read_b128 v[{r}:{r+3}], v15 offset:{4096*s_+1024*mm}", ("rd", s_, mm))
                if i in (42, 43):
                    k = 4*(i - 42) + m
                    if k % 2 == 0: A.wait_lg(("rd", 1, k // 2))
                    for z in (2*k, 2*k+1): A(f"v_add_f32 v{100+z}, v{100+z}, v{116+z}")
                if pendw and m == (3 if ks == 1 else 1):
                    if len(pendw) == 4: validate(nu - 1)
                    A(pendw.pop(0))
                if m == 3 and i + 1 < len(order):
                    if i + 1 == GF_B and not SENT: A.wait_vm("hB"); cflag(12)
                    if i + 1 == 26 and SENT:
                        A.wait_vm("hB")
                        A(f"s_sub_u32 s82, s74, {CF - C2 + 60*L}")
                        gflag("s82")
                    A.wait_vm(("h", i + 1))
            if ks == 7 and nu < 3:
                pendw = [f"ds_write_b128 v{12+nu}, v[{acc2(nu, m)}:{acc2(nu, m)+3}] offset:{1024*m}" for m in range(4)]
        assert not pendw and not hq and not w2late
        validate(3)
        TS()
        A("""s_waitcnt lgkmcnt(0)
             s_barrier""")
        A.lg = []
        for m in range(4):
            A(f"ds_read_b128 v[{116+4*m}:{119+4*m}], v15 offset:{8192+1024*m}", ("rd", m))
        if L == 0:
            A("""s_lshl_b32 s83, s35, 10
                 s_add_u32 s83, s83, s66""")
        for z in range(8):
            A(f"v_pk_add_f32 v[{64+2*z}:{65+2*z}], v[{64+2*z}:{65+2*z}], v[{100+2*z}:{101+2*z}]")
        for m in range(4):
            A.wait_lg(("rd", m))
            for z in (2*m, 2*m+1):
                A(f"v_pk_add_f32 v[{64+2*z}:{65+2*z}], v[{64+2*z}:{65+2*z}], v[{116+2*z}:{117+2*z}]")
        TSflush()

    layer(0)
    cur[0] = 1
    TS(0)
    tile_stats()
    A(f"""s_mov_b64 exec, s[56:57]
          buffer_store_dwordx2 v[48:49], v245, s[4:7], s83 offen
          s_mov_b64 exec, s[58:59]
          buffer_store_dwordx2 v[48:49], v245, s[4:7], s83 offen sc1
          s_mov_b64 exec, -1
          s_add_u32 s92, s66, 4096
          s_add_u32 s67, s67, {2*MB}
          s_add_u32 s93, s72, {X2 - XN}""")
    for z in range(8):
        A(f"v_cvt_pk_bf16_f32 v{80+z}, v{64+2*z}, v{65+2*z}")
    seq_consts()
    TS(1)
    vpoll("L_pS1", """buffer_load_dwordx4 v[52:55], v5, s[4:7], s66 offen sc1
                      buffer_load_dwordx4 v[56:59], v5, s[4:7], s92 offen sc1""", [53, 55, 57, 59])
    TS(2)
    A("""buffer_store_dwordx4 v[80:83], v1, s[4:7], s93 offen sc1
         v_add_f32 v48, v52, v56
         v_add_f32 v49, v54, v58""")
    qreduce(48, 49)
    A("""v_mov_b32 v49, v48
         buffer_store_dwordx4 v[84:87], v1, s[4:7], s93 offen offset:1024 sc1
         v_permlane32_swap_b32 v48, v49""")
    seq_pass1("v6")
    A(f"""s_add_u32 s68, s68, 131072
          s_add_u32 s69, s69, 131072
          s_add_u32 s70, s70, {2*MB}
          s_add_u32 s72, s72, {2*MB*NEWX}
          s_add_u32 s77, s77, {131072*NEWX}
          s_add_u32 s0, s0, {131072*NEWX}
          s_add_u32 s73, s73, {2*MB*NEWX}
          s_add_u32 s74, s74, 64
          s_add_u32 s75, s75, {2*MB*NEWX}
          s_add_u32 s76, s76, 64
          s_add_u32 s78, s78, {HL*NEWX}
          s_add_u32 s79, s79, {HL*NEWX}
          s_add_u32 s8, s52, {X2}
          s_addc_u32 s9, s53, 0
          s_lshl_b32 s82, s37, 5
          s_add_u32 s71, s81, s82
          s_add_u32 s80, s71, 16
          v_lshlrev_b32 v23, 4, v23""")
    if not EARLY & 4: A.vm0()
    gflag("s68")
    if CPOS == 1: clear_h()
    TS(3)
    TSflush()
    layer(1)

    for z in range(8):
        A(f"v_cvt_pk_bf16_f32 v{80+z}, v{64+2*z}, v{65+2*z}")
        if z == 3: A(f"buffer_store_dwordx4 v[80:83], v4, s[12:15], 0 offen {OUTF}")
    A(f"buffer_store_dwordx4 v[84:87], v4, s[12:15], 0 offen offset:64 {OUTF}")
    if ts:
        cur[0] = 2
        TS(0); TSflush()
        A(f"""s_lshl_b32 s82, s40, 2
              s_add_u32 s82, s82, s37
              s_lshl_b32 s82, s82, 8
              s_add_u32 s82, s82, {TSO}
              v_lshlrev_b32 v36, 2, v0
              buffer_store_dword v190, v36, s[4:7], s82 offen""")
    if E2E:
        A(f"""s_waitcnt vmcnt(0)
              s_memrealtime s[94:95]
              s_lshl_b32 s82, s40, 2
              s_add_u32 s82, s82, s37
              s_lshl_b32 s82, s82, 3
              s_add_u32 s82, s82, {TSO}
              s_waitcnt lgkmcnt(0)
              v_mov_b32 v36, s100
              v_mov_b32 v37, s94
              s_mov_b64 exec, 1
              buffer_store_dwordx2 v[36:37], off, s[4:7], s82
              s_mov_b64 exec, -1""")
    A("""s_or_b32 s82, s40, s37
         s_cmp_lg_u32 s82, 0
         s_cbranch_scc1 L_exit""")
    gflag("0")
    A("""L_exit:
         s_endpgm""")
    for t in tails: A(t)
    A("""L_end:
         s_endpgm""")
    assert nts[0] <= 20
    return A


HEAD = open("cdna_kernels/%s.s.ref" % NAME).read().split("; Override launch geometry")[0]

def emit(**kw):
    body = pad(gen(**kw).lines)
    if P('ALIGN', 0): body = align(body, P('ALIGN', 0))
    k = NAME + "_kernel"
    out = [HEAD.rstrip("\n"), f"; @launch grid=(256,1,1) block=(256,1,1) lds={LDS_BYTES}",
           '.amdgcn_target "amdgcn-amd-amdhsa--gfx950"', ".text", f".globl {k}", ".p2align 8", f".type {k},@function", f"{k}:"]
    out += body
    out += ['.section .rodata,"a"', ".p2align 6", f".amdhsa_kernel {k}", "  .amdhsa_next_free_vgpr 512", "  .amdhsa_next_free_sgpr 102",
            "  .amdhsa_accum_offset 256", "  .amdhsa_group_segment_fixed_size 0", "  .amdhsa_kernarg_size 96", "  .amdhsa_user_sgpr_count 2",
            "  .amdhsa_user_sgpr_kernarg_segment_ptr 1", "  .amdhsa_system_sgpr_workgroup_id_x 1", "  .amdhsa_float_denorm_mode_32 3", ".end_amdhsa_kernel"]
    return "\n".join(out) + "\n"

if __name__ == "__main__":
    sys.stdout.write(emit(ts="ts" in sys.argv, slow="slow" in sys.argv))
```

```python
import os, sys, struct
from asmlib import Asm, pad, align

NAME = "interleave_layers__spectral_fnet__swiglu_ffn__prompt"
MB = 1 << 20
GF, CF, CX, C2, TSO = 0x1F00000, 0x10000, 0x18000, 0x8000, 0xA0000
ST, STQ = 0x20000, 0xC0000
Y, XN, X1, X2, W1F, W2F, H = 0x100000, 0x500000, 0x900000, 0xD00000, 0xF00000, 0x1200000, 0x1400000
HL = 0x580000
PR = X1
YB, ZB, RB, IB, LDS_BYTES = 81664, 147200, 98304, 147456, 163840
SPIN, NFAST = 400000, 48
LW, LY, LX, LH = [os.environ.get(k, 'sc1').replace('none', '').replace('+', ' ') for k in ('LW', 'LY', 'LX', 'LH')]
def P(name, default): return int(os.environ.get(name, default))
NC1, NC1B, NSIDE1 = P('NC1', 12), P('NC1B', 0), P('NSIDE1', 10)
GFS, GSLEEP, GDELAY = P('GFS', 3), P('GSLEEP', 0), P('GDELAY', 0)
EARLY = P('EARLY', 0)
PF2 = P("PF2", 1)
OUTLDS = P('OUTLDS', 0)
W2T, T0 = P('W2T', 0), P('T0', 4)
CPOS = P('CPOS', 0)
SENT, FORCE, CLEAR, CNT = P('SENT', 0), P('FORCE', 0), P('CLEAR', 0), P('CNT', 0)
NOBAR = P('NOBAR', 0)
DEFB = P('DEFB', 0)
GPRE = P('GPRE', 0)
XPRE = P('XPRE', 11)
E2E = P('E2E', 0)
NGAP = P('NGAP', 3)
OUTF = os.environ.get('OUTF', 'sc1').replace('none', '').replace('+', ' ')
WARM, NEWX = P('WARM', 0), P('NEWX', 1)
ROTW, ROTH = P('ROTW', 0), P('ROTH', 0)
WLAT, NSIDE0, W1EARLY, W2LATE = P('WLAT', 22), P('NSIDE0', 14), P('W1EARLY', 2), P('W2LATE', 8)
LOG2E = 1.4426950408889634
TSG = [int(x) for x in os.environ.get('TSG', '').split('_') if x]
HSC = ['' if c == 'p' else 'sc1' for c in os.environ.get('HPLAIN', 'sss')]
CLK = 's_memtime' if 'cyc' in sys.argv else 's_memrealtime'
MF = "v_mfma_f32_16x16x32_bf16"


def f2u(x):
    return "0x%08x" % struct.unpack("<I", struct.pack("<f", x))[0]


def gen(ts=False, slow=False):
    A = Asm()
    nts, pend = [0], []

    cur = [0]
    def TSflush():
        if not ts or not pend: return
        A("s_waitcnt lgkmcnt(0)"); A.lg = []
        for n, k in enumerate(pend): A(f"v_writelane_b32 v190, s{TSR[n]}, {k}")
        pend.clear()

    TSR = (16, 18, 20, 22, 100, 94)
    def TS(k=None):
        if not ts: return
        if k is None:
            k = nts[0]; nts[0] += 1
        A(f"{CLK} s[{TSR[len(pend)]}:{TSR[len(pend)]+1}]")
        pend.append(20*cur[0] + k)

    def vpoll(label, load, regs, mask=None, dual=None, late=None, sleep=0):
        TSflush()
        if mask: A(f"s_mov_b64 exec, {mask}")
        A("s_mov_b32 s82, 0")
        if dual:
            for dst, fast, delta in dual: A(f"s_mov_b32 {dst}, {fast}")
        A(f"{label}:")
        A(load)
        A("s_waitcnt vmcnt(0)")
        A(f"v_cmp_eq_u32 vcc, s28, v{regs[0]}")
        for k, r in enumerate(regs[1:]):
            A(f"v_cmp_eq_u32 s[{84+2*k}:{85+2*k}], s28, v{r}")
        for k, r in enumerate(regs[1:]):
            A(f"s_and_b64 vcc, vcc, s[{84+2*k}:{85+2*k}]")
        A(f"""s_cmp_eq_u64 vcc, exec
              s_cbranch_scc1 {label}_ok
              s_add_u32 s82, s82, 1""")
        if sleep: A(f"s_sleep {sleep}")
        if late:
            A(f"""s_cmp_lg_u32 s82, {NFAST - 1}
                  s_cbranch_scc1 {label}_nl
                  {late}
                  {label}_nl:""")
        if dual:
            A(f"""s_cmp_ge_u32 s82, {NFAST}
                  s_cselect_b32 s84, s82, 0
                  s_and_b32 s84, s84, 1""")
            for dst, fast, delta in dual:
                A(f"""s_mul_i32 s85, s84, {delta}
                      s_add_u32 {dst}, {fast}, s85""")
        A(f"""s_cmp_lt_u32 s82, {SPIN}
              s_cbranch_scc1 {label}
              {label}_ok:""")
        if late: A(late)
        if mask: A("s_mov_b64 exec, -1")
        A.vm = []

    tails = []
    def cpoll_load(vaddr, off):
        return ([], f"buffer_load_dword v240, {vaddr}, s[4:7], s76 offen offset:{off} sc1", "poll")

    def check(label, tag, reg, load):
        A.wait_vm(tag)
        A(f"""v_cmp_ne_u32 vcc, s28, {reg}
              s_cbranch_vccnz {label}_re
              {label}_ok:""")
        tails.append(f"""{label}_re:
              s_mov_b32 s82, 0
              {label}_lp:
              {load}
              s_add_u32 s82, s82, 1
              s_cmp_gt_u32 s82, {SPIN}
              s_cbranch_scc1 {label}_ok
              s_waitcnt vmcnt(0)
              v_cmp_ne_u32 vcc, s28, {reg}
              s_cbranch_vccnz {label}_lp
              s_branch {label}_ok""")

    def cpoll_check(label, vaddr, off):
        check(label, "poll", "v240", cpoll_load(vaddr, off)[1])

    def witem(j, base="s47"):
        lds, va = (4096*j, "v242") if j < 40 else (81920 + 4096*(j - 40), "v243")
        return ([f"s_add_u32 m0, {base}, {lds}"], f"buffer_load_dwordx4 {va}, s[4:7], m0 offen {LW} lds", ("W", j))

    def wgroup(lo, hi, ra, rb):
        n = hi - lo; h = n // 2
        if not ROTW: return [witem(j) for j in range(lo, hi)]
        A(f"""s_and_b32 s82, s32, 1
              s_mul_i32 {ra}, s82, {4096*h}
              s_add_u32 {ra}, {ra}, s47
              s_mul_i32 {rb}, s82, {4096*(n - h)}
              s_sub_u32 {rb}, s47, {rb}""")
        return [witem(j, ra if j - lo + h < n else rb) for j in range(lo, hi)]

    def warm(nh):
        A(f"""v_lshlrev_b32 v43, 8, v0
              v_add_u32 v43, s73, v43
              v_mov_b32 v44, s0
              v_cmp_eq_u32 vcc, 16, v0
              v_subrev_u32 v45, 17, v0
              v_cndmask_b32 v43, v43, v44, vcc
              v_cmp_lt_u32 vcc, 21, v45
              v_lshlrev_b32 v45, 7, v45
              v_add_u32 v45, s78, v45
              v_add_u32 v44, {45056 - 22*128}, v45
              v_cndmask_b32 v45, v45, v44, vcc
              v_cmp_lt_u32 vcc, 16, v0
              s_mov_b32 exec_hi, {(1 << max(17 + nh - 32, 0)) - 1}
              v_cndmask_b32 v43, v43, v45, vcc
              s_mov_b32 exec_lo, {(1 << min(17 + nh, 32)) - 1}
              buffer_load_dword v46, v43, s[4:7], 0 offen sc1
              s_mov_b64 exec, -1""")

    def clear_h():
        A("s_add_u32 s46, s78, 45056")
        if SENT or CLEAR:
            for k in range(4): A(f"v_mov_b32 v{186+k}, -1")
            for so in ("s78", "s46"):
                A(f"""buffer_store_dwordx4 v[186:189], v1, s[4:7], {so} offen offset:1024 sc1
                      s_mov_b32 exec_hi, 0xffff
                      buffer_store_dwordx4 v[186:189], v1, s[4:7], {so} offen offset:2048 sc1
                      s_mov_b32 exec_hi, -1""")

    npf = [0]
    def code_ahead(lines):
        npf[0] += 1; lab = f"L_pf_{npf[0]}"
        A(f"""s_getpc_b64 s[84:85]
              {lab}:
              s_mul_i32 s82, s37, {128*lines}
              v_min_u32 v36, {lines - 1}, v0
              v_lshlrev_b32 v36, 7, v36
              v_add_u32 v36, s82, v36
              v_min_u32 v36, L_end-{lab}, v36
              global_load_dword v169, v36, s[84:85]""")

    def cflag(off):
        A("s_mov_b64 exec, s[60:61]")
        A(f"buffer_store_dword v30, off, s[4:7], s74 offset:{off}")
        A("s_mov_b64 exec, s[62:63]")
        A(f"buffer_store_dword v30, off, s[4:7], s74 offset:{off} sc1", "cond")
        A("s_mov_b64 exec, -1")

    def gflag(soff):
        A(f"""s_mov_b64 exec, 1
              buffer_store_dword v30, off, s[4:7], {soff} sc1
              s_mov_b64 exec, -1""")

    def put(item):
        if item is None: return
        for p in item[0]: A(p)
        A(item[1], item[2])

    def qreduce(a, b):
        A(f"""v_permlane32_swap_b32 v{a}, v{b}
              v_add_f32 v{a}, v{a}, v{b}
              v_mov_b32 v{b}, v{a}
              v_permlane16_swap_b32 v{a}, v{b}
              v_add_f32 v{a}, v{a}, v{b}""")

    def finish_stats(s, ss, r, scale=None):
        out = [f"v_mul_f32 v{s}, s64, v{s}", f"v_mul_f32 v{r+1}, v{s}, v{s}", f"v_fma_f32 v{ss}, v{ss}, s64, -v{r+1}",
               f"v_max_f32 v{ss}, 0, v{ss}", f"v_add_f32 v{ss}, {f2u(1e-5)}, v{ss}", f"v_rsq_f32 v{r}, v{ss}"]
        if scale: out.append(f"v_mul_f32 v{r}, {f2u(scale)}, v{r}")
        out.append(f"v_mul_f32 v{r+1}, v{s}, v{r}")
        return out

    def normalize(x, r):
        return f"v_pk_fma_f32 v[{x}:{x+1}], v[{x}:{x+1}], v[{r}:{r+1}], v[{r}:{r+1}] op_sel:[0,0,1] op_sel_hi:[1,0,1] neg_lo:[0,0,1] neg_hi:[0,0,1]"

    TLB = "" if not P('TLB', 0) else """s_lshr_b32 s86, s2, 3
          s_lshl_b32 s86, s86, 2
          s_add_u32 s86, s86, s37
          s_and_b32 s86, s86, 15
          s_lshl_b32 s86, s86, 21
          s_add_u32 s86, s52, s86
          s_addc_u32 s87, s53, 0
          s_load_dword s92, s[86:87], 64
          s_load_dword s93, s[50:51], 0"""
    def xr(z): return 96 + 4*z if z < 8 else 192 + 4*(z - 8)
    XLOAD = "\n".join([f"buffer_load_dwordx4 v[{128+4*z}:{131+4*z}], v4, s[8:11], s83 offen offset:{64*z}" for z in range(2)] +
                      [f"buffer_load_dwordx4 v[{xr(z)}:{xr(z)+3}], v4, s[8:11], 0 offen offset:{64*z}" for z in range(16)])
    if ts or E2E: A(f"{CLK} s[100:101]")
    A(f"""s_cmp_ge_u32 s2, 256
          s_cbranch_scc1 L_end
          s_load_dwordx2 s[30:31], s[0:1], 0
          s_load_dwordx4 s[44:47], s[0:1], 48
          s_load_dwordx4 s[48:51], s[0:1], 64
          s_load_dwordx2 s[52:53], s[0:1], 88
          s_getpc_b64 s[84:85]
          L_pc:
          v_lshlrev_b32 v1, 7, v0
          v_add_u32 v2, 32768, v1
          v_cmp_gt_u32 vcc, L_end-L_pc, v2
          v_min_u32 v1, L_end-L_pc, v1
          v_min_u32 v2, L_end-L_pc, v2
          {"global_load_dword v169, v1, s[84:85]" if P('PF', 1) else ""}
          s_and_saveexec_b64 s[86:87], vcc
          s_cbranch_execz L_pf2
          global_load_dword v169, v2, s[84:85]
          L_pf2:
          s_mov_b64 exec, -1
          s_and_b32 s82, s2, 7
          s_lshr_b32 s83, s2, 3
          s_and_b32 s33, s83, 15
          s_lshr_b32 s83, s83, 4
          s_lshl_b32 s32, s82, 1
          s_add_u32 s32, s32, s83
          s_lshr_b32 s34, s33, 3
          s_and_b32 s35, s33, 7
          s_lshl_b32 s40, s32, 4
          s_add_u32 s40, s40, s33
          s_sub_u32 s82, 32, s32
          s_cmp_eq_u32 s32, 0
          s_cselect_b32 s82, 16, s82
          s_cmp_eq_u32 s34, 0
          s_cselect_b32 s36, s32, s82
          v_lshrrev_b32 v5, 6, v0
          v_and_b32 v0, 63, v0
          v_readfirstlane_b32 s37, v5
          v_and_b32 v2, 15, v0
          v_lshrrev_b32 v3, 4, v0
          v_lshlrev_b32 v1, 4, v0
          s_lshr_b32 s82, s37, 1
          s_lshl_b32 s82, s82, 5
          s_add_u32 s82, s82, s36
          s_and_b32 s83, s37, 1
          s_lshl_b32 s83, s83, 10
          s_add_u32 s82, s82, s83
          s_lshl_b32 s82, s82, 10
          s_lshl_b32 s83, s35, 7
          s_add_u32 s39, s82, s83
          v_lshrrev_b32 v6, 2, v0
          v_and_b32 v7, 3, v0
          v_lshlrev_b32 v4, 16, v6
          v_lshl_add_u32 v4, v7, 4, v4
          v_add_u32 v4, s82, v4
          v_mul_u32_u24 v6, 160, v6
          v_lshl_add_u32 v244, v7, 3, v6
          s_mov_b32 s10, {2*MB}
          s_mov_b32 s11, 0x20000
          s_waitcnt lgkmcnt(0)
          s_load_dword s42, s[52:53], 0
          {TLB}
          s_mov_b32 s8, s30
          s_mov_b32 s9, s31
          s_mov_b32 s81, 0x3f803f80""")
    xl = XLOAD.split("\n")
    for z, l in enumerate(xl[:XPRE]): A(l, ("x", z - 2))
    mark0 = len(A.lines)
    A(f"""s_mov_b32 s12, s44
          s_mov_b32 s13, s45
          s_mov_b32 s14, {512*2752}
          s_mov_b32 s15, 0x20000
          s_mov_b32 s96, s46
          s_mov_b32 s97, s47
          s_mov_b32 s98, {512*2752}
          s_mov_b32 s99, 0x20000""")
    A(f"""s_lshl_b32 s82, s32, 5
          s_lshl_b32 s83, s37, 3
          s_add_u32 s82, s82, s83
          v_add_u32 v170, s82, v3
          v_mul_u32_u24 v170, 2752, v170
          s_mul_i32 s83, s33, 11
          v_add_u32 v171, s83, v2
          v_lshl_add_u32 v174, v171, 4, v170
          v_cmp_gt_u32 vcc, 172, v171
          v_cmp_gt_u32 s[84:85], 11, v2
          v_mov_b32 v172, 0x7f000000
          s_and_b64 vcc, vcc, s[84:85]
          v_cndmask_b32 v174, v172, v174, vcc
          v_add_u32 v175, {4*2752}, v174
          buffer_load_dwordx4 v[144:147], v174, s[12:15], 0 offen
          buffer_load_dwordx4 v[148:151], v174, s[96:99], 0 offen
          buffer_load_dwordx4 v[152:155], v175, s[12:15], 0 offen
          buffer_load_dwordx4 v[156:159], v175, s[96:99], 0 offen""")
    A(f"""s_mov_b32 s4, s52
          s_mov_b32 s5, s53
          s_mov_b32 s6, {256*MB}
          s_mov_b32 s7, 0x20000
          s_mov_b32 s24, s48
          s_mov_b32 s25, s49
          s_mov_b32 s26, {1376*1024}
          s_mov_b32 s27, 0x20000""")
    def w2addr():
        A("""v_lshrrev_b32 v41, 3, v0
             v_and_b32 v42, 1, v41
             v_lshl_add_u32 v40, v3, 3, v42
             v_and_b32 v42, 7, v0
             v_lshlrev_b32 v42, 4, v42
             v_lshl_add_u32 v40, v40, 10, v42
             v_lshl_add_u32 v41, v41, 10, v42
             s_add_u32 s2, s40, 256""")
        for G, dst in (("s40", 46), ("s2", 47)):
            A(f"""s_mul_i32 s82, {G}, 5958
                  s_lshr_b32 s82, s82, 16
                  s_mul_i32 s83, s82, 11
                  s_sub_u32 s83, {G}, s83
                  s_lshr_b32 s84, s82, 2
                  s_and_b32 s82, s82, 3
                  s_mul_i32 s82, s82, 352
                  s_lshl_b32 s84, s84, 7
                  s_lshr_b32 s85, s83, 1
                  s_mul_i32 s85, s85, 88
                  s_and_b32 s86, s83, 1
                  s_lshl_b32 s86, s86, 5
                  s_add_u32 s85, s85, s86
                  s_lshl_b32 s86, s37, 1
                  s_add_u32 s85, s85, s86
                  s_lshl_b32 s86, s83, 2
                  s_add_u32 s86, s86, s37
                  s_sub_u32 s86, s86, 32
                  s_mul_i32 s87, s86, 43
                  s_lshr_b32 s87, s87, 7
                  s_mul_i32 s87, s87, 64
                  s_lshl_b32 s86, s86, 3
                  s_add_u32 s86, s86, s87
                  s_add_u32 s86, s86, 64
                  s_cmp_ge_u32 s83, 8
                  s_cselect_b32 s85, s86, s85
                  s_cselect_b64 vcc, -1, 0
                  s_add_u32 s82, s82, s85
                  s_lshl_b32 s82, s82, 10
                  s_add_u32 s82, s82, s84
                  v_cndmask_b32 v{dst}, v40, v41, vcc
                  v_add_u32 v{dst}, s82, v{dst}""")
    A(f"""s_lshl_b32 s82, s37, 19
          s_lshl_b32 s83, s36, 11
          s_add_u32 s82, s82, s83
          s_lshl_b32 s83, s35, 8
          s_add_u32 s82, s82, s83
          s_add_u32 s67, s82, {Y}
          s_lshl_b32 s82, s37, 15
          s_lshr_b32 s83, s35, 1
          s_lshl_b32 s83, s83, 13
          s_add_u32 s82, s82, s83
          s_lshl_b32 s83, s36, 1
          s_and_b32 s84, s35, 1
          s_add_u32 s83, s83, s84
          s_lshr_b32 s84, s83, {GFS}
          s_lshl_b32 s84, s84, 7
          s_add_u32 s82, s82, s84
          s_and_b32 s83, s83, {(1 << GFS) - 1}
          s_lshl_b32 s83, s83, 2
          s_add_u32 s82, s82, s83
          s_add_u32 s68, s82, {GF}
          s_mov_b32 s64, {f2u(1/512)}
          v_lshlrev_b32 v5, 4, v2
          v_lshl_add_u32 v5, v3, 10, v5
          s_mul_i32 s82, s37, {16*160}
          s_add_u32 s82, s82, {IB}
          v_add_u32 v244, s82, v244
          v_lshrrev_b32 v32, 2, v2
          v_lshl_add_u32 v33, v3, 2, v32
          v_and_b32 v34, 3, v2
          v_mul_u32_u24 v7, 160, v33
          v_lshl_add_u32 v7, v34, 3, v7
          v_add_u32 v7, {IB}, v7
          v_lshrrev_b32 v8, 1, v2
          v_lshlrev_b32 v8, 16, v8
          v_and_b32 v35, 1, v2
          v_lshl_add_u32 v8, v35, 4, v8
          v_lshl_add_u32 v8, v3, 5, v8""")
    A(f"""s_getreg_b32 s3, hwreg(HW_REG_XCC_ID, 0, 4)
          s_waitcnt lgkmcnt(0)
          s_mul_i32 s28, s42, 0x9E3779B1
          s_add_u32 s28, s28, 0x7F4A7C15
          s_mov_b32 s29, s28
          s_add_u32 s3, s3, s28
          v_mov_b32 v30, s28
          v_mov_b32 v236, s3
          s_lshl_b32 s82, s40, 7
          s_add_u32 s38, s82, {CX}""")
    if ts:
        A("v_mov_b32 v190, 0\nv_writelane_b32 v190, s100, 62")

    LANE = """v_lshrrev_b32 v32, 2, v2
              v_lshl_add_u32 v33, v3, 2, v32
              v_and_b32 v34, 3, v2
              v_and_b32 v35, 1, v2
              v_lshrrev_b32 v36, 3, v0
              v_and_b32 v37, 7, v0
              v_and_b32 v38, 1, v3"""
    def setup_touch():
        A(f"""s_lshl_b32 s82, s36, 13
              s_lshl_b32 s83, s37, 8
              s_add_u32 s82, s82, s83
              s_add_u32 s66, s82, {ST}
              s_lshl_b32 s82, s40, 7
              s_lshl_b32 s83, s37, 4
              s_add_u32 s82, s82, s83
              s_add_u32 s74, s82, {CF}
              s_lshl_b32 s82, s35, 10
              s_add_u32 s82, s82, s66
              v_lshlrev_b32 v44, 7, v0
              v_add_u32 v44, s82, v44
              v_mov_b32 v45, s74
              v_cmp_gt_u32 vcc, 2, v0
              v_cndmask_b32 v44, v45, v44, vcc""")

    def setup_gather():
        A(f"""s_lshr_b32 s82, s33, 2
              s_and_b32 s82, s82, 1
              s_lshl_b32 s82, s82, 5
              s_add_u32 s43, s36, s82
              s_sub_u32 s82, 64, s43
              s_cmp_le_u32 s43, 31
              s_cselect_b32 s41, s43, s82
              s_and_b32 s41, s41, 31
              s_and_b32 s82, s33, 3
              s_lshl_b32 s82, s82, 9
              s_add_u32 s55, s43, s82
              s_lshr_b32 s82, s41, 3
              s_lshl_b32 s82, s82, 15
              s_lshl_b32 s83, s37, 13
              s_add_u32 s82, s82, s83
              s_add_u32 s69, s82, {GF}
              s_lshl_b32 s82, s41, 16
              s_lshl_b32 s83, s37, 9
              s_add_u32 s82, s82, s83
              s_add_u32 s70, s82, {Y}
              s_lshl_b32 s82, s37, 7
              s_add_u32 s82, s82, s55
              s_lshl_b32 s71, s82, 10
              s_add_u32 s80, s71, 65536
              v_lshrrev_b32 v36, 3, v0
              v_and_b32 v37, 7, v0
              v_and_b32 v38, 1, v3
              v_lshrrev_b32 v9, {GFS}, v0
              v_and_b32 v39, {(1 << GFS) - 1}, v0
              v_lshlrev_b32 v9, 7, v9
              v_lshl_add_u32 v9, v39, 2, v9
              v_lshlrev_b32 v16, 2, v38
              v_xor_b32 v16, v16, v37
              v_lshlrev_b32 v16, 4, v16
              v_lshl_add_u32 v16, v36, 11, v16
              v_lshrrev_b32 v39, 1, v3
              v_lshl_add_u32 v39, v2, 1, v39
              v_lshl_add_u32 v23, v38, 5, v39
              v_lshlrev_b32 v23, 4, v23""")
    if OUTLDS:
        A(f"""s_mul_i32 s82, s37, {16*144}
              s_add_u32 s82, s82, {IB}
              v_mul_u32_u24 v6, 144, v2
              v_lshl_add_u32 v6, v3, 4, v6
              v_add_u32 v6, s82, v6
              v_lshrrev_b32 v36, 3, v0
              v_and_b32 v37, 7, v0
              v_mul_u32_u24 v7, 144, v36
              v_lshl_add_u32 v7, v37, 4, v7
              v_add_u32 v7, s82, v7
              v_lshlrev_b32 v4, 16, v36
              v_lshl_add_u32 v4, v37, 4, v4
              v_add_u32 v4, s39, v4""")

    def setup_spectral():
        A(f"""{LANE}
              s_lshl_b32 s82, s37, 14
              s_add_u32 s82, s82, {YB}
              v_lshrrev_b32 v18, 1, v33
              v_lshlrev_b32 v18, 7, v18
              v_lshl_add_u32 v18, v38, 6, v18
              v_and_b32 v39, 1, v33
              v_lshl_add_u32 v18, v39, 4, v18
              v_lshrrev_b32 v39, 1, v34
              v_lshl_add_u32 v18, v39, 5, v18
              v_lshl_add_u32 v18, v35, 3, v18
              v_add_u32 v18, s82, v18
              v_xor_b32 v17, 64, v18
              v_mul_u32_u24 v19, 1032, v2
              v_lshl_add_u32 v19, v3, 3, v19
              s_lshl_b32 s82, s37, 8
              s_and_b32 s83, s37, 1
              s_lshl_b32 s83, s83, 5
              s_add_u32 s82, s82, {ZB}
              s_add_u32 s84, s82, s83
              s_xor_b32 s83, s83, 32
              s_add_u32 s85, s82, s83
              v_add_u32 v20, s85, v19
              v_add_u32 v19, s84, v19
              v_lshrrev_b32 v28, 1, v37
              v_mul_u32_u24 v28, 4128, v28
              v_and_b32 v39, 1, v37
              v_lshl_add_u32 v28, v39, 10, v28
              v_lshl_add_u32 v28, v36, 4, v28
              v_add_u32 v28, s82, v28
              v_xor_b32 v31, 16, v28
              v_lshlrev_b32 v29, 8, v36
              v_lshl_add_u32 v29, v37, 4, v29
              v_lshlrev_b32 v21, 6, v33
              v_lshl_add_u32 v21, v38, 5, v21
              v_lshl_add_u32 v21, v34, 3, v21
              s_mul_i32 s82, s37, 4128
              s_add_u32 s82, s82, {ZB}
              v_xor_b32 v22, 32, v21
              v_add_u32 v21, s82, v21
              v_add_u32 v22, s82, v22
              v_lshrrev_b32 v39, 1, v3
              v_lshl_add_u32 v39, v2, 1, v39
              v_and_b32 v27, 1, v32
              v_xor_b32 v27, v27, v39
              v_lshlrev_b32 v27, 4, v27
              v_lshl_add_u32 v27, v38, 3, v27
              v_add_u32 v27, s82, v27
              v_lshrrev_b32 v39, 5, v0
              v_lshlrev_b32 v245, 4, v2
              v_lshl_add_u32 v245, v39, 3, v245
              v_add_u32 v242, s54, v1
              s_lshl_b32 s47, s37, 10
              s_lshl_b32 s82, s40, 9
              s_lshl_b32 s83, s37, 7
              s_add_u32 s82, s82, s83
              s_add_u32 s0, s82, {PR}
              s_lshr_b32 s82, s40, 1
              s_lshl_b32 s82, s82, 14
              s_and_b32 s83, s33, 1
              s_lshl_b32 s83, s83, 7
              s_add_u32 s81, s82, s83
              s_lshl_b32 s83, s37, 12
              s_add_u32 s82, s81, s83
              s_add_u32 s73, s82, {XN}
              s_mul_i32 s82, s32, {8*45056}
              s_add_u32 s82, s82, {H}
              s_mul_i32 s83, s37, {2*45056}
              s_add_u32 s78, s82, s83
              s_mul_i32 s83, s33, 2816
              s_add_u32 s78, s78, s83
              s_mul_i32 s83, s34, {4*45056}
              s_add_u32 s82, s82, s83
              s_mul_i32 s83, s37, {4*2816}
              s_add_u32 s79, s82, s83""")

    def setup_gemm():
        A(f"""s_lshl_b32 s82, s32, 3
              s_lshl_b32 s83, s34, 2
              s_add_u32 s82, s82, s83
              s_add_u32 s82, s82, s37
              s_lshl_b32 s84, s82, 10
              s_add_u32 s77, s84, {PR}
              s_lshl_b32 s82, s82, 14
              s_lshl_b32 s83, s35, 11
              s_add_u32 s82, s82, s83
              s_add_u32 s72, s82, {XN}
              s_lshl_b32 s82, s32, 11
              s_lshl_b32 s83, s37, 9
              s_add_u32 s82, s82, s83
              s_add_u32 s76, s82, {CF}
              s_lshl_b32 s82, s32, 17
              s_lshl_b32 s83, s37, 15
              s_add_u32 s82, s82, s83
              s_add_u32 s75, s82, {XN}
              s_mov_b32 s65, {f2u(LOG2E*LOG2E)}
              s_mov_b32 s30, s65
              s_mov_b32 s31, s65
              v_and_b32 v34, 3, v2
              v_and_b32 v35, 1, v2
              v_lshlrev_b32 v238, 7, v3
              v_lshl_add_u32 v239, v35, 4, v238
              s_lshl_b32 s82, s34, 5
              v_add_u32 v239, s82, v239
              v_lshl_add_u32 v238, v34, 4, v238
              v_add_u32 v10, 65536, v1
              v_add_u32 v11, 114688, v1
              v_add_u32 v243, 81920, v242
              v_lshrrev_b32 v241, 1, v2
              v_lshlrev_b32 v241, 7, v241
              v_lshl_add_u32 v241, v35, 3, v241""")

    def setup_tail():
        out = []
        for nu in range(3):
            out += [f"s_add_u32 s82, s37, {1+nu}", "s_and_b32 s82, s82, 3", "s_mul_i32 s82, s82, 12288",
                    f"s_add_u32 s82, s82, {RB + 4096*nu}", f"v_add_u32 v{12+nu}, s82, v1"]
        out += ["s_mul_i32 s82, s37, 12288", f"s_add_u32 s82, s82, {RB}", "v_add_u32 v15, s82, v1",
                f"s_mul_i32 s82, s37, {16*160}", f"s_add_u32 s82, s82, {IB}", "v_mul_u32_u24 v6, 160, v2",
                "v_lshl_add_u32 v6, v3, 3, v6", "v_add_u32 v6, s82, v6",
                "v_lshlrev_b32 v4, 16, v2", "v_lshl_add_u32 v4, v3, 4, v4", "v_add_u32 v4, s39, v4"]
        for k in range(3):
            out += [f"v_add_u32 v36, {4*k}, v3", "v_mul_u32_u24 v37, 43, v36", "v_lshrrev_b32 v37, 7, v37", "v_mul_u32_u24 v38, 3, v37",
                    "v_sub_u32 v36, v36, v38", "v_mul_u32_u24 v37, 2816, v37", "v_lshl_add_u32 v37, v36, 8, v37", f"v_lshl_add_u32 v{24+k}, v2, 4, v37"]
        A("\n".join(out))

    def seq_consts():
        A(f"""s_lshl_b32 s82, s37, 4
              v_add_u32 v60, s82, v2
              v_lshrrev_b32 v61, 1, v60
              v_cmp_eq_u32 vcc, 1, v60
              v_and_b32 v62, 1, v60
              v_cvt_f32_u32 v63, v3
              v_cndmask_b32 v61, v61, 32, vcc
              v_cndmask_b32 v62, v62, 0, vcc
              v_and_b32 v60, 1, v61
              v_cvt_f32_u32 v61, v61
              v_cvt_f32_u32 v62, v62
              v_mul_f32 v61, {f2u(1/64)}, v61
              v_mul_f32 v62, {f2u(0.25)}, v62
              v_mul_f32 v63, {f2u(8.0)}, v63
              v_fma_f32 v62, v61, v63, v62
              v_mul_u32_u24 v60, 0x8000, v60
              v_lshl_or_b32 v60, v60, 16, v60""")
        for ks in range(2):
            for pr in range(2):
                for b in range(2):
                    A(f"""v_fmamk_f32 v{136+b}, v61, {f2u(float(ks + 2*(2*pr+b)))}, v62
                          v_cos_f32 v{136+b}, v{136+b}""")
                A(f"""v_cvt_pk_bf16_f32 v{88+4*ks+pr}, v136, v137
                      v_xor_b32 v{90+4*ks+pr}, v60, v{88+4*ks+pr}""")

    def tile_stats():
        A("""v_pk_add_f32 v[60:61], v[64:65], v[66:67]
             v_pk_mul_f32 v[62:63], v[64:65], v[64:65]
             v_pk_fma_f32 v[62:63], v[66:67], v[66:67], v[62:63]""")
        for z in range(2, 8):
            A(f"""v_pk_add_f32 v[60:61], v[60:61], v[{64+2*z}:{65+2*z}]
                  v_pk_fma_f32 v[62:63], v[{64+2*z}:{65+2*z}], v[{64+2*z}:{65+2*z}], v[62:63]""")
        A("""v_add_f32 v48, v60, v61
             v_add_f32 v49, v62, v63""")
        qreduce(48, 49)
        A("v_mov_b32 v49, s28")

    def seq_pass1(img, extra_stores=None):
        for l in finish_stats(48, 49, 60): A(l)
        for z in range(8):
            A(normalize(64+2*z, 60))
            A(f"v_cvt_pk_bf16_f32 v{128+z}, v{64+2*z}, v{65+2*z}")
            if z & 1: A(f"ds_write_b64 {img}, v[{127+z}:{128+z}] offset:{32*(z>>1)}")
        A("""s_waitcnt lgkmcnt(0)
             s_barrier""")
        A.lg = []
        for m in range(4):
            for ks in range(2):
                for hh in range(2):
                    r = 96 + 8*m + 4*ks + 2*hh
                    A(f"ds_read_b64_tr_b16 v[{r}:{r+1}], v7 offset:{ks*5120+hh*2560+32*m}", ("p1", m))
        if extra_stores: extra_stores()
        for m in range(4):
            A.wait_lg(("p1", m))
            A(f"{MF} v[{32+4*m}:{35+4*m}], v[{96+8*m}:{99+8*m}], v[88:91], 0")
            A(f"{MF} v[{32+4*m}:{35+4*m}], v[{100+8*m}:{103+8*m}], v[92:95], v[{32+4*m}:{35+4*m}]")
        for z in range(8):
            A(f"v_cvt_pk_bf16_f32 v{128+z}, v{32+2*z}, v{33+2*z}")
            if z == 3: A("buffer_store_dwordx4 v[128:131], v8, s[4:7], s67 offen sc1")
        A("buffer_store_dwordx4 v[132:135], v8, s[4:7], s67 offen offset:128 sc1")

    seq_consts()
    bg = A.lines[mark0:]; del A.lines[mark0:]
    w1l = [l for l in bg if "buffer_load" in l]
    A.vm = [t for t in A.vm if t is not None]
    for l in bg:
        if l not in w1l: A(l)
    A.wait_vm(("x", -1))
    TS(0)
    nx = XPRE
    for z in range(8):
        if z % 4 == 0 and nx < 18: A(xl[nx], ("x", nx - 2)); nx += 1
        A(f"""v_lshlrev_b32 v{64+2*z}, 16, v{128+z}
              v_and_b32 v{65+2*z}, 0xffff0000, v{128+z}""")
    for z in range(16):
        A.wait_vm(("x", z))
        if nx < 18: A(xl[nx], ("x", nx - 2)); nx += 1
        elif w1l and W1EARLY: A(w1l.pop(0))
        for k in range(4):
            r = xr(z) + k; first = z == 0 and k == 0
            A(f"""v_dot2_f32_bf16 v48, v{r}, s81, {0 if first else "v48"}
                  v_dot2_f32_bf16 v49, v{r}, v{r}, {0 if first else "v49"}""")
    A("""s_nop 2
         v_add_f32_dpp v48, v48, v48 quad_perm:[1,0,3,2] row_mask:0xf bank_mask:0xf
         v_add_f32_dpp v49, v49, v49 quad_perm:[1,0,3,2] row_mask:0xf bank_mask:0xf
         v_add_f32_dpp v48, v48, v48 quad_perm:[2,3,0,1] row_mask:0xf bank_mask:0xf
         v_add_f32_dpp v49, v49, v49 quad_perm:[2,3,0,1] row_mask:0xf bank_mask:0xf""")
    TS(2)
    seq_pass1("v244")
    def relayout(later):
        A("""v_lshrrev_b32 v32, 2, v2
             v_and_b32 v34, 3, v2""")
        A(f"""s_lshl_b32 s82, s37, 12
              v_lshlrev_b32 v40, 5, v0
              v_add_u32 v40, s82, v40
              v_lshlrev_b32 v43, 9, v32
              v_lshl_add_u32 v43, v3, 5, v43
              v_lshl_add_u32 v43, v34, 3, v43
              v_add_u32 v43, s82, v43
              s_mul_i32 s54, s33, 180224
              s_add_u32 s54, s54, {W1F}
              s_lshl_b32 s84, s37, 8
              s_add_u32 s83, s54, s84
              s_lshl_b32 s85, s32, 12
              s_add_u32 s85, s85, s83
              s_add_u32 s86, s85, 114688
              s_mul_i32 s87, s32, 3072
              s_add_u32 s87, s87, s83
              s_add_u32 s87, s87, 65536""")
        for rq in range(2):
            b = 144 + 8*rq
            A(f"""s_waitcnt vmcnt({later + 2 - 2*rq})
                  v_swap_b32 v{b+1}, v{b+4}
                  v_swap_b32 v{b+3}, v{b+5}
                  v_swap_b32 v{b+2}, v{b+4}
                  v_swap_b32 v{b+5}, v{b+6}
                  ds_write_b128 v40, v[{b}:{b+3}] offset:{2048*rq}
                  ds_write_b128 v40, v[{b+4}:{b+7}] offset:{2048*rq+16}""")
        A("s_waitcnt lgkmcnt(0)")
        for z in range(3):
            d = 170 if (z == 1 and DEFB) else 144 + 4*z
            A(f"""ds_read_b64_tr_b16 v[{d}:{d+1}], v43 offset:{128*z}
                  ds_read_b64_tr_b16 v[{d+2}:{d+3}], v43 offset:{128*z+2048}""")
        A(f"""s_waitcnt lgkmcnt(4)
             buffer_store_dwordx4 v[144:147], v5, s[4:7], s85 offen sc1
             {"s_mov_b32 s49, s86" if DEFB else "s_waitcnt lgkmcnt(2)"}
             {"" if DEFB else "buffer_store_dwordx4 v[148:151], v5, s[4:7], s86 offen sc1"}
             s_waitcnt lgkmcnt(0)
             s_mov_b32 exec_hi, 0xffff
             buffer_store_dwordx4 v[152:155], v5, s[4:7], s87 offen sc1
             s_mov_b32 exec_hi, -1""")
    relayout(2)
    w2addr()
    setup_touch()
    A(f"s_waitcnt vmcnt({2 if DEFB else 3})")
    gflag("s68")
    TS(3)
    A("""buffer_load_dwordx4 v[176:179], v46, s[24:27], 0 offen
         buffer_load_dwordx4 v[180:183], v47, s[24:27], 0 offen
         s_mov_b64 exec, 7
         buffer_load_dword v168, v44, s[4:7], 0 offen sc1
         s_cmp_eq_u32 s37, 0
         s_cselect_b64 exec, 1, 0
         buffer_store_dword v236, off, s[4:7], s38 offset:16 sc1
         s_mov_b64 exec, -1""")
    A(f"""s_lshl_b32 s82, s37, 2
          s_add_u32 s1, s82, s38
          s_mov_b32 s12, s50
          s_mov_b32 s13, s51
          s_mov_b32 s14, {2*MB}""")
    setup_gather()

    def layer(L):
        nts[0] = 4
        def resload():
            for r in range(2):
                A(f"buffer_load_dwordx4 v[{160+4*r}:{163+4*r}], v23, s[8:11], s{71 if r == 0 else 80} offen sc1", "res")
        if L == 0: resload()
        XS = "" if WARM & (8 if L == 0 else 1) else "sc1"
        HS = "" if (WARM & 2 and L == 1) else "sc1"
        D = dict(GPB=0, LSTEP=5, EVL=8, BURSTR=2, EVA=14, EVP=32, EVC=48, NPRE=7, EVR=7, GR=12, GFB=13, POLLB=30, GB=28, BURST=5, AGGA=0, AGGR=0)
        GPB, LSTEP, EVL, BURSTR, EVA, EVP, EVC, NPRE, EVR, GR, GF_B, POLLB, GB, BURST, AGGA, AGGR = [P(f"{k}{L}", P(k, v)) for k, v in D.items()]
        B2, BA, TC, TSN, BB = 192, 200, 206, 214, 222
        A(f"""s_cmp_eq_u32 s43, 32
              s_cselect_b32 s84, 0, 1.0
              s_cselect_b32 s85, 1.0, 0
              s_cmp_gt_u32 s43, 32
              s_cselect_b32 s86, -1.0, 1.0
              s_and_b32 s82, s43, 31
              s_cmp_eq_u32 s82, 0
              s_cselect_b32 s86, 0, s86
              v_lshrrev_b32 v32, 1, v2
              v_lshlrev_b32 v32, 6, v32
              v_add_u32 v32, s55, v32
              v_cvt_f32_u32 v32, v32
              v_and_b32 v33, 1, v2
              v_cvt_f32_u32 v39, v33
              v_cvt_f32_u32 v34, v3
              v_cvt_f32_u32 v40, v2
              v_mul_f32 v32, {f2u(1/2048)}, v32
              v_mul_f32 v39, {f2u(0.25)}, v39
              v_add_f32 v35, v34, v34
              v_fma_f32 v39, v32, v35, v39
              v_mul_u32_u24 v33, 0x8000, v33
              v_lshl_or_b32 v33, v33, 16, v33
              v_mul_f32 v34, 4.0, v34""")
        for ks in range(2):
            for z in range(4):
                A(f"""v_fmamk_f32 v35, v32, {f2u(float(16*ks + 8*(z>>1) + (z&1)))}, v39
                      v_cos_f32 v36, v35
                      v_sin_f32 v37, v35
                      v_mul_f32 v38, s85, v36
                      v_mul_f32 v36, s84, v36
                      v_fma_f32 v37, v37, s86, v38
                      v_cvt_pk_bf16_f32 v{B2+4*ks+z}, v36, v37""")
        def sincos4(scale, cdst, sdst, add=0):
            A(f"""v_mul_f32 v32, {f2u(scale)}, v40
                  v_mul_f32 v39, v32, v34""")
            for j in range(4):
                A(f"""v_fmamk_f32 v35, v32, {f2u(float(j+add))}, v39
                      v_cos_f32 v{cdst+j}, v35
                      v_sin_f32 v{sdst+j}, v35""")
        sincos4(1/16, 44, 48)
        A(f"""v_cvt_pk_bf16_f32 v{BA+2}, v44, v45
              v_cvt_pk_bf16_f32 v{BA+3}, v46, v47
              v_cvt_pk_bf16_f32 v{BA+4}, v48, v49
              v_cvt_pk_bf16_f32 v{BA+5}, v50, v51
              v_xor_b32 v{BA}, 0x80008000, v{BA+4}
              v_xor_b32 v{BA+1}, 0x80008000, v{BA+5}""")
        sincos4(1/512, TC, TSN)
        sincos4(1/512, TC+4, TSN+4, 16)
        sincos4(1/32, 44, 48)
        for ks in range(2):
            A(f"""v_cvt_pk_bf16_f32 v{BB+4*ks}, v{44+4*ks}, v{45+4*ks}
                  v_cvt_pk_bf16_f32 v{BB+4*ks+1}, v{46+4*ks}, v{47+4*ks}
                  v_xor_b32 v{BB+4*ks+2}, v33, v{BB+4*ks}
                  v_xor_b32 v{BB+4*ks+3}, v33, v{BB+4*ks+1}""")
        for z in range(8):
            A(f"v_xor_b32 v{BB+8+z}, 0x80000000, v{BB+z}")
        A(f"""s_mov_b32 s90, s70
              s_lshl_b32 s91, s37, 14
              s_add_u32 s91, s91, {YB}
              s_mov_b32 m0, s91
              s_lshl_b32 s92, s32, 11
              s_add_u32 s92, s92, {CX + 16}
              v_lshlrev_b32 v41, 7, v2""")
        if L == 0:
            A(f"""s_lshl_b32 s93, s33, 7
                  s_add_u32 s93, s93, {CX}
                  v_lshlrev_b32 v184, 11, v2
                  v_lshl_add_u32 v184, v3, 2, v184""")
            A("buffer_load_dword v36, v9, s[4:7], s69 offen sc1\ns_waitcnt vmcnt(5)") if GPRE else A("s_waitcnt vmcnt(6)")
            gflag("s1")
            if GPRE: A("s_waitcnt vmcnt(1)\nv_cmp_ne_u32 vcc, s28, v36\ns_cbranch_vccz L_pG0_ok")
        if L == 1 and WARM & 3: warm(44 if WARM & 2 else 0)
        TS()
        vpoll(f"L_pG{L}", "buffer_load_dword v36, v9, s[4:7], s69 offen sc1", [36], sleep=GSLEEP)
        TS()
        m0_ = len(A.lines)
        if L == 0:
            A(f"""s_lshl_b32 s82, s37, 12
                  v_add_u32 v42, s82, v1
                  v_lshrrev_b32 v44, 2, v2
                  v_and_b32 v45, 3, v2
                  v_lshlrev_b32 v44, 7, v44
                  v_lshl_add_u32 v44, v45, 4, v44
                  v_lshrrev_b32 v45, 1, v3
                  v_lshl_add_u32 v44, v45, 6, v44
                  v_and_b32 v45, 1, v3
                  v_lshl_add_u32 v44, v45, 3, v44
                  v_add_u32 v44, s82, v44
                  ds_write_b128 v42, v[176:179]
                  ds_write_b128 v42, v[180:183] offset:1024
                  s_waitcnt lgkmcnt(0)
                  ds_read_b64_tr_b16 v[176:177], v44
                  ds_read_b64_tr_b16 v[178:179], v44 offset:512
                  ds_read_b64_tr_b16 v[180:181], v44 offset:1024
                  ds_read_b64_tr_b16 v[182:183], v44 offset:1536
                  s_waitcnt lgkmcnt(0)""")
            setup_spectral()
        weave = A.lines[m0_:]; del A.lines[m0_:]
        per = -(-len(weave) // 13)
        for z in range(16):
            if z >= 3:
                for l in weave[per*(z-3):per*(z-2)]: A(l)
            if z and z % 4 == 0: A("s_add_u32 m0, m0, 4096")
            A(f"buffer_load_dwordx4 v16, s[4:7], s90 offen offset:{(z%4)*1024} {LY} lds", ("y", z >> 2))
            if z < 15: A(f"s_add_u32 s90, s90, {16384 - 1024}" if z % 4 != 3 else f"s_sub_u32 s90, s90, {3*(16384 - 1024) - 128}")
        A("s_barrier")
        if L == 0:
            A("buffer_load_dword v185, v184, s[4:7], s93 offen sc1", "gw")
            A("buffer_load_dword v168, v41, s[4:7], s92 offen sc1", "res")
        else: resload()
        if CPOS == 1 and L == 0 or CPOS == 2: clear_h()
        A.lg = []
        def p2mfma(mt):
            A.wait_lg(("p2", mt))
            A(f"{MF} v[{32+4*mt}:{35+4*mt}], v[{96+8*mt}:{99+8*mt}], v[{B2}:{B2+3}], 0")
            A(f"{MF} v[{32+4*mt}:{35+4*mt}], v[{100+8*mt}:{103+8*mt}], v[{B2+4}:{B2+7}], v[{32+4*mt}:{35+4*mt}]")
        def p2out(m):
            A(f"""v_cvt_pk_bf16_f32 v{64+2*m}, v{32+4*m}, v{33+4*m}
                  v_cvt_pk_bf16_f32 v{65+2*m}, v{34+4*m}, v{35+4*m}""")
            A(f"ds_write_b64 v{19+(m&1)}, v[{64+2*m}:{65+2*m}] offset:{64*(m>>1)}")
        for cg in range(4):
            A.wait_vm(("y", cg))
            if cg == 0: TS()
            for mt in (2*cg, 2*cg+1):
                for ks in range(2):
                    for hh in range(2):
                        r = 96 + 8*mt + 4*ks + 2*hh
                        A(f"ds_read_b64_tr_b16 v[{r}:{r+1}], v{18 - (mt & 1)} offset:{cg*4096+ks*2048+hh*1024}", ("p2", mt))
            if cg >= 1: p2out(2*cg-2); p2out(2*cg-1)
            p2mfma(2*cg); p2mfma(2*cg+1)
            if cg == 3:
                if L == 0:
                    A(f"""s_lshl_b32 s82, s40, 12
                          s_lshl_b32 s83, s37, 8
                          s_add_u32 s82, s82, s83
                          s_add_u32 s82, s82, {W2F}
                          s_add_u32 s83, s82, {256*4096}""")
                    if DEFB: A("buffer_store_dwordx4 v[170:173], v5, s[4:7], s49 offen sc1")
                    A("buffer_store_dwordx4 v[176:179], v5, s[4:7], s82 offen sc1", "w2s")
                    A("""s_cmp_lt_u32 s40, 96
                         s_cselect_b64 exec, -1, 0""")
                    A("buffer_store_dwordx4 v[180:183], v5, s[4:7], s83 offen sc1", "cond")
                    A("s_mov_b64 exec, -1")
        p2out(6); p2out(7)
        if L == 0: check("L_pW", "gw", "v185", "buffer_load_dword v185, v184, s[4:7], s93 offen sc1")
        A("""s_waitcnt lgkmcnt(0)
             s_barrier""")
        A.lg = []
        TS()
        for r in range(2):
            for h in range(2):
                for cc in range(2):
                    reg = 96 + 8*r + 4*h + 2*cc
                    A(f"ds_read_b64_tr_b16 v[{reg}:{reg+1}], v{21+h} offset:{r*2064+cc*1032}", ("sa", r))
        A("s_add_u32 s46, s78, 45056")
        if CPOS == 0: clear_h()
        wnext = 0 if L == 0 else 19
        side = wgroup(wnext, wnext + (NSIDE0 if L == 0 else NSIDE1), "s90", "s91")
        wnext += len(side)
        mark = len(A.lines)
        for r in range(2):
            A.wait_lg(("sa", r))
            for h in range(2):
                for c2 in range(2):
                    d = 32 + 16*r + 8*c2 + 4*h
                    b = BA + 2 if c2 == 0 else BA
                    A(f"{MF} v[{d}:{d+3}], v[{96+8*r+4*h}:{99+8*r+4*h}], v[{b}:{b+3}], 0")
        for r in range(2):
            for z in range(4):
                ur, ui = 32 + 16*r + 2*z, 40 + 16*r + 2*z
                A(f"""v_pk_mul_f32 v[64:65], v[{ui}:{ui+1}], v[{TSN+2*z}:{TSN+2*z+1}]
                      v_pk_mul_f32 v[66:67], v[{ur}:{ur+1}], v[{TSN+2*z}:{TSN+2*z+1}]
                      v_pk_fma_f32 v[64:65], v[{ur}:{ur+1}], v[{TC+2*z}:{TC+2*z+1}], v[64:65]
                      v_pk_fma_f32 v[66:67], v[{ui}:{ui+1}], v[{TC+2*z}:{TC+2*z+1}], v[66:67] neg_lo:[0,0,1] neg_hi:[0,0,1]
                      v_cvt_pk_bf16_f32 v{112+8*r+z}, v64, v65
                      v_cvt_pk_bf16_f32 v{116+8*r+z}, v66, v67""")
            for g in range(2):
                d = 80 + 8*r + 4*g
                A(f"{MF} v[{d}:{d+3}], v[{112+8*r}:{115+8*r}], v[{BB+8*g}:{BB+8*g+3}], 0")
            for g in range(2):
                d = 80 + 8*r + 4*g
                A(f"{MF} v[{d}:{d+3}], v[{116+8*r}:{119+8*r}], v[{BB+8*g+4}:{BB+8*g+7}], v[{d}:{d+3}]")
        A("RESWAIT")
        nres = A.vm_count("res")
        for r in range(2):
            A(f"""v_permlane16_swap_b32 v{160+4*r}, v{162+4*r}
                  v_permlane16_swap_b32 v{161+4*r}, v{163+4*r}""")
        for r in range(2):
            for z in range(4):
                A(f"""v_lshlrev_b32 v{128+8*r+2*z}, 16, v{160+4*r+z}
                      v_and_b32 v{129+8*r+2*z}, 0xffff0000, v{160+4*r+z}""")
        if L == 0:
            A(f"""v_cmp_ne_u32 vcc, s3, v168
                  s_cmp_eq_u64 vcc, {-2 if slow else 0}
                  s_cselect_b64 s[60:61], 1, 0
                  s_cselect_b64 s[62:63], 0, 1
                  s_cselect_b32 s56, 0xffff, 0
                  s_cselect_b32 s57, 0xffff, 0
                  s_cselect_b32 s58, 0, 0xffff
                  s_cselect_b32 s59, 0, 0xffff""")
        for r in range(2):
            x = 80 + 8*r
            for z in range(4): A(f"v_pk_add_f32 v[{x+2*z}:{x+2*z+1}], v[{x+2*z}:{x+2*z+1}], v[{x+48+2*z}:{x+49+2*z}]")
            A(f"""v_pk_add_f32 v[{32+4*r}:{33+4*r}], v[{x}:{x+1}], v[{x+2}:{x+3}]
                  v_pk_mul_f32 v[{34+4*r}:{35+4*r}], v[{x}:{x+1}], v[{x}:{x+1}]""")
            for z in range(1, 4):
                if z > 1: A(f"v_pk_add_f32 v[{32+4*r}:{33+4*r}], v[{32+4*r}:{33+4*r}], v[{x+2*z}:{x+2*z+1}]")
                A(f"v_pk_fma_f32 v[{34+4*r}:{35+4*r}], v[{x+2*z}:{x+2*z+1}], v[{x+2*z}:{x+2*z+1}], v[{34+4*r}:{35+4*r}]")
            A(f"""v_add_f32 v{40+2*r}, v{32+4*r}, v{33+4*r}
                  v_add_f32 v{41+2*r}, v{34+4*r}, v{35+4*r}""")
        A("""v_permlane32_swap_b32 v40, v42
             v_permlane32_swap_b32 v41, v43
             v_add_f32 v40, v40, v42
             v_add_f32 v41, v41, v43
             DGAP
             v_permlane16_swap_b32 v40, v41
             v_add_f32 v40, v40, v41""")
        for sh in (8, 4, 2, 1):
            A(f"DGAP\nv_add_f32_dpp v40, v40, v40 row_ror:{sh} row_mask:0xf bank_mask:0xf")
        A("""v_mov_b32 v41, v40
             DGAP
             v_permlane16_swap_b32 v40, v41""")
        for l in finish_stats(40, 41, 44, LOG2E): A(l)
        A("""v_mov_b32 v48, v44
             v_mov_b32 v49, v45
             v_rcp_f32 v46, v44
             v_permlane32_swap_b32 v44, v48
             v_permlane32_swap_b32 v45, v49
             v_mov_b32 v47, v40""")
        for r in range(2):
            for z in range(4):
                x = 80 + 8*r + 2*z
                A(normalize(x, 44+4*r))
                A(f"v_cvt_pk_bf16_f32 v{64+4*r+z}, v{x}, v{x+1}")
                if z & 1: A(f"ds_write_b64 v27, v[{63+4*r+z}:{64+4*r+z}] offset:{1024*r+512*(z>>1)}")
        body = A.lines[mark:]; del A.lines[mark:]
        first_gap = min(k for k, l in enumerate(body) if "DGAP" in l)
        ngap = NGAP
        step = (first_gap - 4) // (len(side) - ngap); issued = 0; held = None; seen_gap = 0
        for k, l in enumerate(body):
            if "RESWAIT" in l: A(f"s_waitcnt vmcnt({issued + nres})"); continue
            if "DGAP" in l:
                seen_gap += 1
                if ngap and (seen_gap % 2 == 1 or NGAP > 3): put(side.pop(0)); ngap -= 1
                continue
            A.lines.append(l)
            if held and "s_cmp" not in l and "s_cselect" not in l: A(held[1], held[2]); issued += 1; held = None
            elif k % step == 1 and len(side) > ngap and k < first_gap and "s_cmp" not in l and "s_cselect" not in l and "v_cmp" not in l:
                held = side.pop(0); A(held[0][0])
        assert held is None
        assert not side
        if L == 0:
            A.wait_vm("w2s")
            A("s_add_u32 s1, s1, 32")
            gflag("s1")
        A(f"""s_mov_b32 exec_lo, 1
              s_mov_b32 exec_hi, 1
              buffer_store_dwordx2 v[46:47], v245, s[4:7], s0 offen {XS}
              s_mov_b64 exec, -1
              s_waitcnt lgkmcnt(0)
              s_barrier
              ds_read_b128 v[48:51], v28
              ds_read_b128 v[52:55], v31 offset:128
              s_waitcnt lgkmcnt(1)
              buffer_store_dwordx4 v[48:51], v29, s[4:7], s73 offen {XS}
              s_waitcnt lgkmcnt(0)
              buffer_store_dwordx4 v[52:55], v29, s[4:7], s73 offen offset:2048 {XS}""")
        TS()
        TSflush()
        if (L == 0 and PF2 & 2) or (L == 1 and PF2 & 4): code_ahead(28)
        if L == 0: setup_gemm()
        A(f"""s_mov_b32 s44, s75
              s_add_u32 s45, s75, 16384
              """)
        for nu in range(4):
            A(f"""s_add_u32 s82, s37, {1+nu}
                  s_and_b32 s82, s82, 3
                  s_mul_i32 s82, s82, 45056
                  s_add_u32 s{96+nu}, s79, s82""")
        if L == 0:
            A(f"""s_lshl_b32 s82, s35, 2
                  s_add_u32 s82, s82, s37
                  s_mul_i32 s82, s82, 11
                  v_min_u32 v196, 10, v2
                  v_add_u32 v196, s82, v196
                  v_and_b32 v196, 255, v196
                  v_lshlrev_b32 v196, 7, v196
                  v_lshl_add_u32 v196, v3, 2, v196
                  s_mov_b32 s2, {CX + 32}""")
        A(f"""s_lshl_b32 s82, s32, 1
              s_add_u32 s82, s82, s34
              s_add_u32 s82, s82, s35
              s_and_b32 s42, s82, {3 if ROTH else 0}
              s_mul_i32 s83, s42, 2816""")
        for nu in range(4): A(f"s_add_u32 s{96+nu}, s{96+nu}, s83")
        for k in range(1, 4):
            A(f"""s_add_u32 s82, s42, {k}
                  s_cmp_eq_u32 s82, 4
                  s_cselect_b32 s82, -3, 1
                  s_mul_i32 s{83+k}, s82, 2816""")
        A(f"""s_add_u32 s82, s42, 3
              s_and_b32 s82, s82, 3
              s_mul_i32 s87, s82, 2816
              s_mov_b32 s88, s83""")
        if EARLY & 1: A.lg = []
        else: A.vm0(); A.lg = []
        cflag(0)
        for _ in range(NC1 if L == 0 else NC1B): put(witem(wnext)); wnext += 1
        assert wnext <= 35
        GW2 = "buffer_load_dword v197, v196, s[4:7], s2 offen sc1"
        put(cpoll_load("v238", 0))
        if L == 0 and W2T: A(GW2, "gw2")
        cpoll_check(f"L_pC1{L}", "v238", 0)
        if "g2" not in sys.argv: TS()

        def xreg(n):
            return f"a[{176+4*n}:{179+4*n}]" if n < 20 else f"v[{128+4*(n-20)}:{131+4*(n-20)}]"
        xq = []
        for kk in range(16):
            for T in range(2):
                pre = [f"s_add_u32 s{44+T}, s{44+T}, 4096"] if (kk % 4 == 0 and kk) else []
                xq.append((pre, f"buffer_load_dwordx4 {xreg(2*kk+T)}, v1, s[4:7], s{44+T} offen offset:{(kk%4)*1024} {LX}", ("xn", kk)))
        PRE = P('PRE', 10)
        for it in xq[:PRE]: put(it)
        tq = []
        if L == 0:
            setup_tail()
            A(f"""s_lshl_b32 s49, s35, 2
                  s_add_u32 s49, s49, s37
                  s_mul_i32 s49, s49, 45056
                  s_add_u32 s49, s49, {W2F}""")
        if L == 0 and W2T:
            A(f"""s_and_b32 s82, s32, 1
                  s_lshl_b32 s82, s82, 1
                  s_add_u32 s82, s82, s34
                  s_mul_i32 s82, s82, {88*128}
                  s_add_u32 s82, s82, s49
                  v_lshrrev_b32 v198, 3, v0
                  v_lshlrev_b32 v198, 7, v198
                  v_add_u32 v198, s82, v198
                  s_mov_b32 s89, 4096
                  s_mov_b32 s48, 8192""")
            check("L_pW2", "gw2", "v197", GW2)
            tq = [f"buffer_load_dword v199, v198, s[4:7], {('0', 's89', 's48')[k >> 2]} offen offset:{1024*(k & 3)} sc1" for k in range(11)]
        if L == 0 or not NOBAR: A("s_barrier")
        frags = []
        for ps, nt in ((0, 4), (1, 3), (2, 4)):
            for kk in range(16):
                for t in range(nt):
                    if ps == 0: addr = ("v1", kk*4096 + t*1024)
                    elif ps == 1: addr = ("v10", kk*3072 + t*1024)
                    elif kk < 12: addr = ("v11", kk*4096 + t*1024)
                    else: addr = ("v10", 16384 + (kk-12)*4096 + t*1024)
                    frags.append((ps, kk, t, addr))
        NF, LOOK = len(frags), P('LOOK', 6)
        def aread(n):
            ps, kk, t, (va, off) = frags[n]
            r = 96 + 4*(n % 8)
            A(f"ds_read_b128 v[{r}:{r+3}], {va} offset:{off}", ("af", n))
        def acc(ps, t, T): return 32 + 32*(ps & 1) + 8*t + 4*T

        def epi(ps, nt, together=False, packed=False):
            ops, tmp_last, k = [], {}, 0
            for T in range(2):
                cv = []
                for t in range(2 if packed else nt):
                    a = acc(ps, t, T); e = 184 + 2*(k % 3); k += 1
                    b = len(ops); w = tmp_last.get(e, [])
                    if packed:
                        ops += [["t", f"v_exp_f32 v{e}, -v{a}", w], ["t", f"v_exp_f32 v{e+1}, -v{a+1}", w],
                                ["v", f"v_pk_mul_f32 v[{a}:{a+1}], v[{a}:{a+1}], v[{a+2}:{a+3}]", [b, b+1]],
                                ["v", f"v_pk_fma_f32 v[{e}:{e+1}], v[{e}:{e+1}], s[30:31], s[30:31]", [b, b+1]],
                                ["t", f"v_rcp_f32 v{e}, v{e}", [b+3]], ["t", f"v_rcp_f32 v{e+1}, v{e+1}", [b+3]],
                                ["v", f"v_pk_mul_f32 v[{a}:{a+1}], v[{a}:{a+1}], v[{e}:{e+1}]", [b+2, b+4, b+5]],
                                ["v", f"v_cvt_pk_bf16_f32 v{176+4*T+t}, v{a}, v{a+1}", [b+6]]]
                        tmp_last[e] = [b+6]; cv.append(b+7)
                        continue
                    ops += [["t", f"v_exp_f32 v{e}, -v{a}", w], ["t", f"v_exp_f32 v{e+1}, -v{a+1}", w],
                            ["v", f"v_mul_f32 v{a}, v{a}, v{a+2}", [b]], ["v", f"v_mul_f32 v{a+1}, v{a+1}, v{a+3}", [b+1]],
                            ["v", f"v_fma_f32 v{e}, v{e}, s65, s65", [b]], ["v", f"v_fma_f32 v{e+1}, v{e+1}, s65, s65", [b+1]],
                            ["t", f"v_rcp_f32 v{e}, v{e}", [b+4]], ["t", f"v_rcp_f32 v{e+1}, v{e+1}", [b+5]],
                            ["v", f"v_mul_f32 v{a}, v{a}, v{e}", [b+2, b+6]], ["v", f"v_mul_f32 v{a+1}, v{a+1}, v{e+1}", [b+3, b+7]],
                            ["v", f"v_cvt_pk_bf16_f32 v{176+4*T+t}, v{a}, v{a+1}", [b+8, b+9]]]
                    tmp_last[e] = [b+8, b+9]; cv.append(b+10)
                b, so = 176 + 4*T, 78 if T == 0 else 46
                if nt == 4:
                    ops.append(["m", f"buffer_store_dwordx4 v[{b}:{b+3}], v1, s[4:7], s{so} offen offset:{512*ps} {HS}", cv])
                else:
                    n0 = len(ops)
                    ops += [["t", f"v_permlane32_swap_b32 v{b}, v{b+2}", cv], ["t", f"v_permlane32_swap_b32 v{b+1}, v{b+3}", cv],
                            ["t", f"v_permlane16_swap_b32 v{b}, v{b+1}", [n0, n0+1]], ["t", f"v_permlane16_swap_b32 v{b+2}, v{b+3}", [n0, n0+1]],
                            ["m", f"s_mov_b32 exec_hi, 0xffff\nbuffer_store_dwordx4 v[{b}:{b+3}], v1, s[4:7], s{so} offen offset:2048 {HS}\ns_mov_b32 exec_hi, -1", [n0+2, n0+3]]]
            if together:
                ms = [o for o in ops if o[0] == "m"]
                ms[0][2] = ms[0][2] + ms[1][2]
            return ops

        class Fill:
            def __init__(s, ops, tag): s.ops, s.done, s.tag, s.now = ops, {}, tag, 0
            def left(s): return len(s.done) < len(s.ops)
            def take(s, kind):
                for i, (k, text, deps) in enumerate(s.ops):
                    if i in s.done or k != kind: continue
                    if all(d in s.done and s.done[d] < s.now for d in deps):
                        s.done[i] = s.now; A(text, s.tag if k == "m" else None); return True
                return False
            def drain(s, between=None):
                n = 0
                while s.left():
                    s.now += 1
                    if not (s.take("m") or s.take("t") or s.take("v")): raise SystemExit("stuck")
                    s.take("v")
                    n += 1
                    if between: between(n)

        def wait_for(n, vmtag=None):
            parts = []
            if vmtag is not None and vmtag in A.vm: parts.append(f"vmcnt({A.vm_count(vmtag)})")
            if ("af", n) in A.lg: parts.append(f"lgkmcnt({A.lg_count(('af', n))})")
            if parts: A("s_waitcnt " + " ".join(parts))

        def wneed(n):
            ps, kk, t, _ = frags[n]
            return ((0, 65536, 114688)[ps] + kk*(4096, 3072, 4096)[ps] + 1024*t) // 4096
        W = {"vis": wnext - 1, "at": {}, "bar": True}
        if L == 1 and NOBAR: W = {"vis": 18, "at": {j: -1000 for j in range(19, wnext)}, "bar": False}
        N1, N2 = 64, 112
        NFREE = N1 + 34

        def stream(lo, hi, vq, fill, events, extra=False, dense=False, agg=0):
            lastm = lo - 2
            for n in range(lo, hi):
                ps, kk, t, _ = frags[n]
                r = 96 + 4*(n % 8)
                for T in range(2):
                    a = acc(ps, t, T)
                    A(f"{MF} v[{a}:{a+3}], v[{r}:{r+3}], {xreg(2*kk+T)}, " + ("0" if kk == 0 else f"v[{a}:{a+3}]"))
                    if fill: fill.now += 1
                    if T == 0:
                        if vq and vq[0][0]: A(vq[0][0].pop(0))
                        if n + LOOK < NF: aread(n + LOOK)
                        if fill and n >= lo + 2:
                            fill.take("v")
                            if agg & 1: fill.take("v")
                    else:
                        if n + 1 < NF:
                            nps, nkk, nt_, _ = frags[n+1]
                            xt = ("xn", nkk) if (nps == 0 and nt_ == 0) else None
                            need = wneed(n + 1 + LOOK) if n + 1 + LOOK < NF else -1
                            if need > W["vis"] or n + 1 == NFREE:
                                tgt = max([need, W["vis"]] + [j for j, at in W["at"].items() if at <= n - WLAT])
                                assert tgt <= W["vis"] or tgt in W["at"], (L, n, tgt)
                                tags = [t_ for t_ in (xt, ("W", tgt) if tgt > W["vis"] else None) if t_ in A.vm]
                                wait_for(n + 1, min(tags, key=A.vm_count) if tags else None)
                                A("s_barrier"); W["vis"] = tgt; W["bar"] = True
                                if n + 1 == NFREE:
                                    k = max([q + 1 for q, it in enumerate(vq) if isinstance(it[2], tuple) and it[2][0] == "W"] + [0])
                                    vq[k:k] = [witem(j) for j in range(40, 44)]
                            else: wait_for(n + 1, xt)
                            ev = events.get(n + 1)
                            if ev: ev(n + 1)
                        if fill and n >= lo + 2 and n - lastm >= 2 and fill.take("m"): lastm = n
                        elif vq and not vq[0][0] and (W["bar"] or vq[0][2] != ("W", 35)) and n - lastm >= (1 if dense and len(vq) > (hi - n) // 2 else 2) and (not fill or not fill.left() or vq[0][2] != "late"):
                            it = vq.pop(0); put(it); lastm = n
                            if isinstance(it[2], tuple) and it[2][0] == "W": W["at"][it[2][1]] = n
                            if extra and fill: fill.take("t") or fill.take("v")
                        elif tq and n >= T0 and (n - T0) // W2T > 11 - len(tq) - 1: A(tq.pop(0))
                        elif fill and n >= lo + 2:
                            if not fill.take("t"):
                                fill.take("v"); fill.take("v")
                            elif agg & 2: fill.take("v")
                            if agg & 4: fill.take("t")

        A.lg = []
        for n in range(LOOK): aread(n)
        wait_for(0, ("xn", 0))
        vq = list(xq[PRE:]) + [witem(j) for j in range(wnext, 40)]
        if L == 0 and not W2T: vq.insert(8, ([], GW2, "gw2"))
        GW3 = """buffer_load_dword v198, v184, s[4:7], s93 offen offset:32 sc1"""
        if L == 0 and DEFB:
            assert wnext <= 28
            vq.insert(9, ([], GW3, "gw3"))
        stream(0, N1, vq, None, {44: lambda n: check("L_pW3", "gw3", "v198", GW3)} if (L == 0 and DEFB) else {})
        if "g2" not in sys.argv: TS()
        order = [(ks, nu) for ks in (0, 2, 4, 6, 8, 9, 10, 1, 3) for nu in range(4)] + [(ks, nu) for nu in range(4) for ks in (5, 7)]
        def hreg(i):
            if i < 11: return f"v[{192+4*i}:{195+4*i}]"
            if i < 15: return f"v[{160+4*(i-11)}:{163+4*(i-11)}]"
            if i < 16: return "v[96:99]"
            if i < 36: return f"a[{176+4*(i-16)}:{179+4*(i-16)}]"
            return f"v[{128+4*(i-36)}:{131+4*(i-36)}]"
        def hitem(i):
            ks, nu = order[i]; s = f"s{96+nu}"
            if ks < 8:
                return ([f"s_add_u32 {s}, {s}, s{83 + (ks >> 1)}"] if ks >= 2 else ([f"s_add_u32 {s}, {s}, s88"] if ks == 1 else []),
                        f"buffer_load_dwordx4 {hreg(i)}, v1, s[4:7], {s} offen offset:{(ks&1)*1024} {LH}", ("h", i))
            return ([f"s_sub_u32 {s}, {s}, s87"] if ks == 8 else [],
                    f"buffer_load_dwordx4 {hreg(i)}, v{24+ks-8}, s[4:7], {s} offen offset:2048 {LH}", ("h", i))
        w2q = []
        if L == 0:
            if not W2T: check("L_pW2", "gw2", "v197", GW2)
            for ks in (0, 2, 4, 6, 8, 9, 10, 1, 3, 5, 7):
                for m in range(4):
                    f = 4*ks + m
                    pre = [] if m else [f"s_add_u32 s48, s49, {4096*ks}"]
                    if m == 0 and ks < 8 and ROTH:
                        pre = [f"s_add_u32 s48, s42, {ks >> 1}", "s_and_b32 s48, s48, 3", "s_lshl_b32 s48, s48, 13", f"s_add_u32 s48, s48, s{49 if ks % 2 == 0 else 89}"]
                    w2q.append((pre,
                                f"buffer_load_dwordx4 a[{4*f}:{4*f+3}], v1, s[4:7], s48 offen offset:{m*1024} {LW}", "w2"))
        w2late = w2q[44 - W2LATE:]; w2q = w2q[:44 - W2LATE]
        vq += w2q
        fill = Fill(epi(0, 4), "hA")
        stream(N1, N2, vq, fill, {}, extra=(L == 0), agg=AGGA)
        fill.drain()
        if "g2" not in sys.argv: TS()
        k = max([q + 1 for q, it in enumerate(vq) if isinstance(it[2], tuple) and it[2][0] == "W"] + [0])
        vq[k:k] = [([], "buffer_load_dwordx2 v[246:247], v241, s[4:7], s77 offen sc1", "res"),
                   ([], "buffer_load_dwordx4 v[248:251], v1, s[4:7], s72 offen sc1", "res"),
                   ([], "buffer_load_dwordx4 v[252:255], v1, s[4:7], s72 offen offset:1024 sc1", "res")]
        def evA(n):
            A.wait_vm("hA"); cflag(4)
            if FORCE: cflag(8); cflag(12)
        def evP(n): vq.insert(0, cpoll_load("v239", 4))
        def evC(n):
            cpoll_check(f"L_pA{L}", "v239", 4)
            assert not any(it[2] == "res" for it in vq)
            cv = [k for k, o in enumerate(fill.ops) if o[1].startswith("v_cvt")]
            for z in range(8):
                b = len(fill.ops)
                fill.ops += [["v", f"v_lshlrev_b32 v{64+2*z}, 16, v{248+z}", cv], ["v", f"v_and_b32 v{65+2*z}, 0xffff0000, v{248+z}", cv],
                             ["v", f"v_fma_f32 v{64+2*z}, v{64+2*z}, v246, v247", [b]], ["v", f"v_fma_f32 v{65+2*z}, v{65+2*z}, v246, v247", [b+1]]]
            vq.extend(hitem(i) for i in range(NPRE))
        fill = Fill(epi(1, 3, True), "hR")
        ev = {N2 + EVA: evA, N2 + EVP: evP, N2 + EVC: evC}
        if EVR < 0: ev[NF + EVR] = lambda n: (A.wait_vm("hR"), cflag(8))
        stream(N2, NF, vq, fill, ev, extra=(L == 0), dense=(L == 0), agg=AGGR)
        fill.drain()
        while vq: put(vq.pop(0))
        TS()

        hq = [hitem(i) for i in range(NPRE, 44)]
        fill = Fill(epi(2, 4, True, True), "hB")
        def feed(n):
            if n >= EVL and (n - EVL) % LSTEP == 0 and hq[0][2][1] < 16: put(hq.pop(0))
            if n == EVR: (None if SENT else A.wait_vm("hR")); cflag(8)
            if sum(1 for i, o in enumerate(fill.ops) if i not in fill.done and o[0] != "m") == 0 and "pollR" not in seen:
                seen.add("pollR"); put(cpoll_load("v239", 8))
        seen = set()
        fill.drain(feed)
        if SENT: cflag(12)
        if "g2" not in sys.argv: TS()
        def acc2(nu, m): return (32, 48, 80, 64)[nu] + 4*m
        def validate(nu):
            if not SENT: return
            lab = f"L_v{L}{nu}"
            A(f"""v_cmp_u_f32 vcc, v{acc2(nu, 0)}, v{acc2(nu, 0)}
                  s_cbranch_vccnz {lab}_re
                  {lab}_ok:""")
            t = [f"{lab}_re:"] + ([f"s_mov_b64 exec, 1", "v_mov_b32 v240, 1", f"s_mov_b32 s82, {TSO + 16384 + 16*L + 4*nu}", "buffer_atomic_add v240, off, s[4:7], s82", "s_mov_b64 exec, -1"] if CNT else []) + [f"s_sub_u32 s83, s76, {CF - C2 + 60*L}", "s_mov_b32 s82, 0", f"{lab}_lp:",
                 "buffer_load_dword v240, v239, s[4:7], s83 offen sc1", "s_add_u32 s82, s82, 1", f"s_cmp_gt_u32 s82, {SPIN}",
                 f"s_cbranch_scc1 {lab}_go", "s_waitcnt vmcnt(0)", "v_cmp_ne_u32 vcc, s28, v240", f"s_cbranch_vccnz {lab}_lp", f"{lab}_go:",
                 f"s_add_u32 s82, s37, {1+nu}", "s_and_b32 s82, s82, 3", "s_mul_i32 s82, s82, 45056", "s_add_u32 s82, s82, s79"]
            mine = [(i, ks) for i, (ks, n_) in enumerate(order) if n_ == nu]
            for i, ks in mine:
                if ks >= 8: t.append(f"buffer_load_dwordx4 {hreg(i)}, v{24+ks-8}, s[4:7], s82 offen offset:2048 sc1")
            for i, ks in mine:
                if ks < 8 and ks & 1:
                    t += [f"buffer_load_dwordx4 {hreg(i)}, v1, s[4:7], s82 offen offset:1024 sc1", "s_add_u32 s82, s82, 2816"]
            if nu == 3:
                for z in range(8):
                    t += [f"v_lshlrev_b32 v{64+2*z}, 16, v{248+z}", f"v_and_b32 v{65+2*z}, 0xffff0000, v{248+z}",
                          f"v_fma_f32 v{64+2*z}, v{64+2*z}, v246, v247", f"v_fma_f32 v{65+2*z}, v{65+2*z}, v246, v247"]
            t.append("s_waitcnt vmcnt(0)")
            for i, ks in mine:
                for m in range(4):
                    a = acc2(nu, m); f = 4*ks + m
                    t.append(f"{MF} v[{a}:{a+3}], a[{4*f}:{4*f+3}], {hreg(i)}, " + ("0" if (ks == 0 and nu < 3) else f"v[{a}:{a+3}]"))
            t += ["s_nop 7", f"s_branch {lab}_ok"]
            tails.append("\n".join(t))
        assert not (SENT and ROTH)
        pendw = []
        early = [(s_, mm) for mm in range(4) for s_ in range(2)]
        A.wait_vm(("h", 0))
        for i, (ks, nu) in enumerate(order):
            if i in TSG: TS()
            for m in range(4):
                a = acc2(nu, m)
                c = "0" if (ks == 0 and nu < 3) else f"v[{a}:{a+3}]"
                f = 4*ks + m
                A(f"{MF} v[{a}:{a+3}], a[{4*f}:{4*f+3}], {hreg(i)}, {c}")
                if m == 0 and hq:
                    nxt = hq[0][2][1]
                    if nxt == 16 and i == GR:
                        if "g2" in sys.argv and not TSG: TS()
                        cpoll_check(f"L_pR{L}", "v239", 8)
                        if "g2" in sys.argv and not TSG: TS()
                        for _ in range(BURSTR): put(hq.pop(0))
                    if nxt == 36 and i == GB:
                        if "g2" in sys.argv and not TSG: TS()
                        cpoll_check(f"L_pB{L}", "v239", 12)
                        if "g2" in sys.argv and not TSG: TS()
                        for _ in range(BURST): put(hq.pop(0))
                    if not ((nxt == 16 and i < GR) or (nxt == 36 and i < GB)): put(hq.pop(0))
                    elif nxt == 16 and w2late: put(w2late.pop(0))
                if m == 2 and hq and hq[0][2][1] == 16 and w2late and i < GR: put(w2late.pop(0))
                if m == 1 and hq:
                    for p in hq[0][0]: A(p)
                    hq[0][0].clear()
                if m == 2 and hq and hq[0][2][1] == POLLB and i >= GPB and "pollB" not in seen:
                    seen.add("pollB"); put(cpoll_load("v239", 12))
                if i == 42 and m == 0:
                    A("s_waitcnt lgkmcnt(0)\ns_barrier"); A.lg = []
                if i in (42,) and early:
                    for _ in range(2):
                        s_, mm = early.pop(0); r = 100 + 16*s_ + 4*mm
                        A(f"ds_read_b128 v[{r}:{r+3}], v15 offset:{4096*s_+1024*mm}", ("rd", s_, mm))
                if i == 43:
                    A.wait_lg(("rd", 1, m))
                    for z in range(4*m, 4*m+4): A(f"v_add_f32 v{100+z}, v{100+z}, v{116+z}")
                if pendw and m in (1, 3) and not (ks == 5 and m == 1 and len(pendw) == 4):
                    if len(pendw) == 4: validate(nu - 1)
                    A(pendw.pop(0))
                if m == 3 and i + 1 < len(order):
                    if i + 1 == GF_B and not SENT: A.wait_vm("hB"); cflag(12)
                    if i + 1 == 26 and SENT:
                        A.wait_vm("hB")
                        A(f"s_sub_u32 s82, s74, {CF - C2 + 60*L}")
                        gflag("s82")
                    A.wait_vm(("h", i + 1))
            if ks == 7 and nu < 3:
                pendw = [f"ds_write_b128 v{12+nu}, v[{acc2(nu, m)}:{acc2(nu, m)+3}] offset:{1024*m}" for m in range(4)]
        while pendw: A(pendw.pop(0))
        assert not hq and not w2late
        validate(3)
        TS()
        A("""s_waitcnt lgkmcnt(0)
             s_barrier""")
        A.lg = []
        for m in range(4):
            A(f"ds_read_b128 v[{116+4*m}:{119+4*m}], v15 offset:{8192+1024*m}", ("rd", m))
        if L == 0:
            A("""s_lshl_b32 s83, s35, 10
                 s_add_u32 s83, s83, s66""")
        for z in range(8):
            A(f"v_pk_add_f32 v[{64+2*z}:{65+2*z}], v[{64+2*z}:{65+2*z}], v[{100+2*z}:{101+2*z}]")
        for m in range(4):
            A.wait_lg(("rd", m))
            for z in (2*m, 2*m+1):
                A(f"v_pk_add_f32 v[{64+2*z}:{65+2*z}], v[{64+2*z}:{65+2*z}], v[{116+2*z}:{117+2*z}]")
        TSflush()

    layer(0)
    cur[0] = 1
    TS(0)
    tile_stats()
    A(f"""s_mov_b64 exec, s[56:57]
          buffer_store_dwordx2 v[48:49], v245, s[4:7], s83 offen
          s_mov_b64 exec, s[58:59]
          buffer_store_dwordx2 v[48:49], v245, s[4:7], s83 offen sc1
          s_mov_b64 exec, -1
          s_add_u32 s92, s66, 4096
          s_add_u32 s67, s67, {2*MB}
          s_add_u32 s93, s72, {X2 - XN}""")
    for z in range(8):
        A(f"v_cvt_pk_bf16_f32 v{80+z}, v{64+2*z}, v{65+2*z}")
    seq_consts()
    TS(1)
    vpoll("L_pS1", """buffer_load_dwordx4 v[52:55], v5, s[4:7], s66 offen sc1
                      buffer_load_dwordx4 v[56:59], v5, s[4:7], s92 offen sc1""", [53, 55, 57, 59])
    TS(2)
    A("""buffer_store_dwordx4 v[80:83], v1, s[4:7], s93 offen sc1
         v_add_f32 v48, v52, v56
         v_add_f32 v49, v54, v58""")
    qreduce(48, 49)
    A("""v_mov_b32 v49, v48
         buffer_store_dwordx4 v[84:87], v1, s[4:7], s93 offen offset:1024 sc1
         v_permlane32_swap_b32 v48, v49""")
    seq_pass1("v6")
    A(f"""s_add_u32 s68, s68, 131072
          s_add_u32 s69, s69, 131072
          s_add_u32 s70, s70, {2*MB}
          s_add_u32 s72, s72, {2*MB*NEWX}
          s_add_u32 s77, s77, {131072*NEWX}
          s_add_u32 s0, s0, {131072*NEWX}
          s_add_u32 s73, s73, {2*MB*NEWX}
          s_add_u32 s74, s74, 64
          s_add_u32 s75, s75, {2*MB*NEWX}
          s_add_u32 s76, s76, 64
          s_add_u32 s78, s78, {HL*NEWX}
          s_add_u32 s79, s79, {HL*NEWX}
          s_add_u32 s8, s52, {X2}
          s_addc_u32 s9, s53, 0
          s_lshl_b32 s82, s37, 5
          s_add_u32 s71, s81, s82
          s_add_u32 s80, s71, 16
          v_lshlrev_b32 v23, 4, v23""")
    if OUTLDS:
        A(f"""s_mul_i32 s82, s37, {16*144}
              s_add_u32 s82, s82, {IB}
              v_mul_u32_u24 v6, 144, v2
              v_lshl_add_u32 v6, v3, 4, v6
              v_add_u32 v6, s82, v6
              v_lshrrev_b32 v36, 3, v0
              v_and_b32 v37, 7, v0
              v_mul_u32_u24 v7, 144, v36
              v_lshl_add_u32 v7, v37, 4, v7
              v_add_u32 v7, s82, v7
              v_lshlrev_b32 v4, 16, v36
              v_lshl_add_u32 v4, v37, 4, v4
              v_add_u32 v4, s39, v4""")
    if not EARLY & 4: A.vm0()
    gflag("s68")
    if CPOS == 1: clear_h()
    if PF2 & 1: code_ahead(36)
    TS(3)
    TSflush()
    layer(1)

    if OUTLDS:
        for z in range(8):
            A(f"v_cvt_pk_bf16_f32 v{80+z}, v{64+2*z}, v{65+2*z}")
            if z == 3: A("ds_write_b128 v6, v[80:83]")
        A(f"""ds_write_b128 v6, v[84:87] offset:64
              s_mov_b32 s82, {8*65536}
              s_waitcnt lgkmcnt(0)
              ds_read_b128 v[80:83], v7
              ds_read_b128 v[84:87], v7 offset:{8*144}
              s_waitcnt lgkmcnt(1)
              buffer_store_dwordx4 v[80:83], v4, s[12:15], 0 offen {OUTF}
              s_waitcnt lgkmcnt(0)
              buffer_store_dwordx4 v[84:87], v4, s[12:15], s82 offen {OUTF}""")
    else:
        for z in range(8):
            A(f"v_cvt_pk_bf16_f32 v{80+z}, v{64+2*z}, v{65+2*z}")
            if z == 3: A(f"buffer_store_dwordx4 v[80:83], v4, s[12:15], 0 offen {OUTF}")
        A(f"buffer_store_dwordx4 v[84:87], v4, s[12:15], 0 offen offset:64 {OUTF}")
    if ts:
        cur[0] = 2
        TS(0); TSflush()
        A(f"""s_lshl_b32 s82, s40, 2
              s_add_u32 s82, s82, s37
              s_lshl_b32 s82, s82, 8
              s_add_u32 s82, s82, {TSO}
              v_lshlrev_b32 v36, 2, v0
              buffer_store_dword v190, v36, s[4:7], s82 offen""")
    if E2E:
        A(f"""s_waitcnt vmcnt(0)
              s_memrealtime s[94:95]
              s_lshl_b32 s82, s40, 2
              s_add_u32 s82, s82, s37
              s_lshl_b32 s82, s82, 3
              s_add_u32 s82, s82, {TSO}
              s_waitcnt lgkmcnt(0)
              v_mov_b32 v36, s100
              v_mov_b32 v37, s94
              s_mov_b64 exec, 1
              buffer_store_dwordx2 v[36:37], off, s[4:7], s82
              s_mov_b64 exec, -1""")
    A("""s_or_b32 s82, s40, s37
         s_cmp_lg_u32 s82, 0
         s_cbranch_scc1 L_exit""")
    gflag("0")
    A("""L_exit:
         s_endpgm""")
    for t in tails: A(t)
    A("""L_end:
         s_endpgm""")
    assert nts[0] <= 20
    return A


DOC = """;
; One persistent launch, 256 workgroups (one per CU) of four waves; generated by a script, hand-scheduled.
;
; Fourier mixing. The DFT matrices are constant parameters, so y = Re(F_seq LN(x) F_hid) is evaluated as a
; factorised transform whose small matrices are built in registers with v_cos/v_sin:
;   pass 1  radix 64 over s1 on a 64 x 64 tile (rows with one s2), Hermitian-packed result Y in the workspace
;   pass 2  radix 32 over s2 with the twiddles folded in, then both hidden stages, residual and LayerNorm on 8 full rows
; SwiGLU. Sixteen workgroups (a cluster) share 128 rows: each computes 88 hidden columns for all of them (weights
; (its weight slice stays in registers for both layers; K split over the waves, reduced through LDS).
; The tile rows are exactly the rows of the next pass 1, which needs only the row statistics of seven neighbours.
;
; Hand-offs. Data is stored write-through (sc1) and drained before its flag is stored; readers poll with sc1 loads and
; Cluster flags and statistics (self-tagged words) use plain stores only when all sixteen workgroups report the
; same XCC id in this launch, write-through stores otherwise. Every wait is bounded.
"""

HEAD = open("cdna_kernels/%s.s.ref" % NAME).read().split("; Override launch geometry")[0]

def emit(**kw):
    body = pad(gen(**kw).lines)
    if P('ALIGN', 0): body = align(body, P('ALIGN', 0))
    k = NAME + "_kernel"
    out = [HEAD.rstrip("\n"), DOC.rstrip("\n"), f"; @launch grid=(256,1,1) block=(256,1,1) lds={LDS_BYTES}",
           '.amdgcn_target "amdgcn-amd-amdhsa--gfx950"', ".text", f".globl {k}", ".p2align 8", f".type {k},@function", f"{k}:"]
    out += body
    out += ['.section .rodata,"a"', ".p2align 6", f".amdhsa_kernel {k}", "  .amdhsa_next_free_vgpr 512", "  .amdhsa_next_free_sgpr 102",
            "  .amdhsa_accum_offset 256", "  .amdhsa_group_segment_fixed_size 0", "  .amdhsa_kernarg_size 96", "  .amdhsa_user_sgpr_count 2",
            "  .amdhsa_user_sgpr_kernarg_segment_ptr 1", "  .amdhsa_system_sgpr_workgroup_id_x 1", "  .amdhsa_float_denorm_mode_32 3", ".end_amdhsa_kernel"]
    return "\n".join(out) + "\n"

if __name__ == "__main__":
    sys.stdout.write(emit(ts="ts" in sys.argv, slow="slow" in sys.argv))
```

```python
import os, sys, struct
from asmlib import Asm, pad, align

NAME = "interleave_layers__spectral_fnet__swiglu_ffn__prompt"
MB = 1 << 20
GF, CF, CX, C2, TSO = 0x1F00000, 0x10000, 0x18000, 0x8000, 0xA0000
ST, STQ = 0x20000, 0xC0000
Y, XN, X1, X2, W1F, W2F, H = 0x100000, 0x500000, 0x900000, 0xD00000, 0xF00000, 0x1200000, 0x1400000
HL = 0x580000
PR = X1
YB, ZB, RB, IB, LDS_BYTES = 81664, 147200, 98304, 147456, 163840
SPIN, NFAST = 400000, 48
LW, LY, LX, LH = [os.environ.get(k, 'sc1').replace('none', '').replace('+', ' ') for k in ('LW', 'LY', 'LX', 'LH')]
def P(name, default): return int(os.environ.get(name, default))
NC1, NC1B, NSIDE1 = P('NC1', 12), P('NC1B', 0), P('NSIDE1', 10)
GFS, GSLEEP, GDELAY = P('GFS', 3), P('GSLEEP', 0), P('GDELAY', 0)
EARLY = P('EARLY', 0)
TOG, SLOWN, SLOWW = P('TOG', 0), P('SLOWN', 2), P('SLOWW', 0)
PF2 = P("PF2", 1)
OUTLDS = P('OUTLDS', 0)
W2T, T0 = P('W2T', 0), P('T0', 4)
CPOS = P('CPOS', 0)
SENT, FORCE, CLEAR, CNT = P('SENT', 0), P('FORCE', 0), P('CLEAR', 0), P('CNT', 0)
NOBAR = P('NOBAR', 0)
DEFB = P('DEFB', 0)
GPRE = P('GPRE', 0)
XPRE = P('XPRE', 11)
E2E = P('E2E', 0)
NGAP = P('NGAP', 3)
OUTF = os.environ.get('OUTF', 'sc1').replace('none', '').replace('+', ' ')
WARM, NEWX = P('WARM', 0), P('NEWX', 1)
ROTW, ROTH = P('ROTW', 0), P('ROTH', 0)
WLAT, NSIDE0, W1EARLY, W2LATE = P('WLAT', 22), P('NSIDE0', 14), P('W1EARLY', 2), P('W2LATE', 8)
LOG2E = 1.4426950408889634
TSG = [int(x) for x in os.environ.get('TSG', '').split('_') if x]
HSC = ['' if c == 'p' else 'sc1' for c in os.environ.get('HPLAIN', 'sss')]
CLK = 's_memtime' if 'cyc' in sys.argv else 's_memrealtime'
MF = "v_mfma_f32_16x16x32_bf16"


def f2u(x):
    return "0x%08x" % struct.unpack("<I", struct.pack("<f", x))[0]


def gen(ts=False, slow=False):
    A = Asm()
    nts, pend = [0], []

    cur = [0]
    def TSflush():
        if not ts or not pend: return
        A("s_waitcnt lgkmcnt(0)"); A.lg = []
        for n, k in enumerate(pend): A(f"v_writelane_b32 v190, s{TSR[n]}, {k}")
        pend.clear()

    TSR = (16, 18, 20, 22, 100, 94)
    def TS(k=None):
        if not ts: return
        if k is None:
            k = nts[0]; nts[0] += 1
        A(f"{CLK} s[{TSR[len(pend)]}:{TSR[len(pend)]+1}]")
        pend.append(20*cur[0] + k)

    def vpoll(label, load, regs, mask=None, dual=None, late=None, sleep=0):
        TSflush()
        if mask: A(f"s_mov_b64 exec, {mask}")
        A("s_mov_b32 s82, 0")
        if dual:
            for dst, fast, delta in dual: A(f"s_mov_b32 {dst}, {fast}")
        A(f"{label}:")
        A(load)
        A("s_waitcnt vmcnt(0)")
        A(f"v_cmp_eq_u32 vcc, s28, v{regs[0]}")
        for k, r in enumerate(regs[1:]):
            A(f"v_cmp_eq_u32 s[{84+2*k}:{85+2*k}], s28, v{r}")
        for k, r in enumerate(regs[1:]):
            A(f"s_and_b64 vcc, vcc, s[{84+2*k}:{85+2*k}]")
        A(f"""s_cmp_eq_u64 vcc, exec
              s_cbranch_scc1 {label}_ok
              s_add_u32 s82, s82, 1""")
        if sleep: A(f"s_sleep {sleep}")
        if late:
            A(f"""s_cmp_lg_u32 s82, {NFAST - 1}
                  s_cbranch_scc1 {label}_nl
                  {late}
                  {label}_nl:""")
        if dual:
            A(f"""s_cmp_ge_u32 s82, {NFAST}
                  s_cselect_b32 s84, s82, 0
                  s_and_b32 s84, s84, 1""")
            for dst, fast, delta in dual:
                A(f"""s_mul_i32 s85, s84, {delta}
                      s_add_u32 {dst}, {fast}, s85""")
        A(f"""s_cmp_lt_u32 s82, {SPIN}
              s_cbranch_scc1 {label}
              {label}_ok:""")
        if late: A(late)
        if mask: A("s_mov_b64 exec, -1")
        A.vm = []

    tails = []
    def cpoll_load(vaddr, off):
        return ([], f"buffer_load_dword v240, {vaddr}, s[4:7], s76 offen offset:{off} sc1", "poll")

    def check(label, tag, reg, load):
        A.wait_vm(tag)
        A(f"""v_cmp_ne_u32 vcc, s28, {reg}
              s_cbranch_vccnz {label}_re
              {label}_ok:""")
        tails.append(f"""{label}_re:
              s_mov_b32 s82, 0
              {label}_lp:
              {load}
              s_add_u32 s82, s82, 1
              s_cmp_gt_u32 s82, {SPIN}
              s_cbranch_scc1 {label}_ok
              s_waitcnt vmcnt(0)
              v_cmp_ne_u32 vcc, s28, {reg}
              s_cbranch_vccnz {label}_lp
              s_branch {label}_ok""")

    def cpoll_check(label, vaddr, off):
        check(label, "poll", "v240", cpoll_load(vaddr, off)[1])

    def witem(j, base="s47"):
        lds, va = (4096*j, "v242") if j < 40 else (81920 + 4096*(j - 40), "v243")
        return ([f"s_add_u32 m0, {base}, {lds}"], f"buffer_load_dwordx4 {va}, s[4:7], m0 offen {LW} lds", ("W", j))

    def wgroup(lo, hi, ra, rb):
        n = hi - lo; h = n // 2
        if not ROTW: return [witem(j) for j in range(lo, hi)]
        A(f"""s_and_b32 s82, s32, 1
              s_mul_i32 {ra}, s82, {4096*h}
              s_add_u32 {ra}, {ra}, s47
              s_mul_i32 {rb}, s82, {4096*(n - h)}
              s_sub_u32 {rb}, s47, {rb}""")
        return [witem(j, ra if j - lo + h < n else rb) for j in range(lo, hi)]

    def warm(nh):
        A(f"""v_lshlrev_b32 v43, 8, v0
              v_add_u32 v43, s73, v43
              v_mov_b32 v44, s0
              v_cmp_eq_u32 vcc, 16, v0
              v_subrev_u32 v45, 17, v0
              v_cndmask_b32 v43, v43, v44, vcc
              v_cmp_lt_u32 vcc, 21, v45
              v_lshlrev_b32 v45, 7, v45
              v_add_u32 v45, s78, v45
              v_add_u32 v44, {45056 - 22*128}, v45
              v_cndmask_b32 v45, v45, v44, vcc
              v_cmp_lt_u32 vcc, 16, v0
              s_mov_b32 exec_hi, {(1 << max(17 + nh - 32, 0)) - 1}
              v_cndmask_b32 v43, v43, v45, vcc
              s_mov_b32 exec_lo, {(1 << min(17 + nh, 32)) - 1}
              buffer_load_dword v46, v43, s[4:7], 0 offen sc1
              s_mov_b64 exec, -1""")

    def clear_h():
        A("s_add_u32 s46, s78, 45056")
        if SENT or CLEAR:
            for k in range(4): A(f"v_mov_b32 v{186+k}, -1")
            for so in ("s78", "s46"):
                A(f"""buffer_store_dwordx4 v[186:189], v1, s[4:7], {so} offen offset:1024 sc1
                      s_mov_b32 exec_hi, 0xffff
                      buffer_store_dwordx4 v[186:189], v1, s[4:7], {so} offen offset:2048 sc1
                      s_mov_b32 exec_hi, -1""")

    npf = [0]
    def code_ahead(lines):
        npf[0] += 1; lab = f"L_pf_{npf[0]}"
        A(f"""s_getpc_b64 s[84:85]
              {lab}:
              s_mul_i32 s82, s37, {128*lines}
              v_min_u32 v36, {lines - 1}, v0
              v_lshlrev_b32 v36, 7, v36
              v_add_u32 v36, s82, v36
              v_min_u32 v36, L_end-{lab}, v36
              global_load_dword v169, v36, s[84:85]""")

    def cflag(off):
        A("s_mov_b64 exec, s[60:61]")
        A(f"buffer_store_dword v30, off, s[4:7], s74 offset:{off}")
        A("s_mov_b64 exec, s[62:63]")
        A(f"buffer_store_dword v30, off, s[4:7], s74 offset:{off} sc1", "cond")
        A("s_mov_b64 exec, -1")

    def gflag(soff):
        A(f"""s_mov_b64 exec, 1
              buffer_store_dword v30, off, s[4:7], {soff} sc1
              s_mov_b64 exec, -1""")

    def put(item):
        if item is None: return
        for p in item[0]: A(p)
        A(item[1], item[2])

    def qreduce(a, b):
        A(f"""v_permlane32_swap_b32 v{a}, v{b}
              v_add_f32 v{a}, v{a}, v{b}
              v_mov_b32 v{b}, v{a}
              v_permlane16_swap_b32 v{a}, v{b}
              v_add_f32 v{a}, v{a}, v{b}""")

    def finish_stats(s, ss, r, scale=None):
        out = [f"v_mul_f32 v{s}, s64, v{s}", f"v_mul_f32 v{r+1}, v{s}, v{s}", f"v_fma_f32 v{ss}, v{ss}, s64, -v{r+1}",
               f"v_max_f32 v{ss}, 0, v{ss}", f"v_add_f32 v{ss}, {f2u(1e-5)}, v{ss}", f"v_rsq_f32 v{r}, v{ss}"]
        if scale: out.append(f"v_mul_f32 v{r}, {f2u(scale)}, v{r}")
        out.append(f"v_mul_f32 v{r+1}, v{s}, v{r}")
        return out

    def normalize(x, r):
        return f"v_pk_fma_f32 v[{x}:{x+1}], v[{x}:{x+1}], v[{r}:{r+1}], v[{r}:{r+1}] op_sel:[0,0,1] op_sel_hi:[1,0,1] neg_lo:[0,0,1] neg_hi:[0,0,1]"

    TLB = "" if not P('TLB', 0) else """s_lshr_b32 s86, s2, 3
          s_lshl_b32 s86, s86, 2
          s_add_u32 s86, s86, s37
          s_and_b32 s86, s86, 15
          s_lshl_b32 s86, s86, 21
          s_add_u32 s86, s52, s86
          s_addc_u32 s87, s53, 0
          s_load_dword s92, s[86:87], 64
          s_load_dword s93, s[50:51], 0"""
    def xr(z): return 96 + 4*z if z < 8 else 192 + 4*(z - 8)
    XLOAD = "\n".join([f"buffer_load_dwordx4 v[{128+4*z}:{131+4*z}], v4, s[8:11], s83 offen offset:{64*z}" for z in range(2)] +
                      [f"buffer_load_dwordx4 v[{xr(z)}:{xr(z)+3}], v4, s[8:11], 0 offen offset:{64*z}" for z in range(16)])
    if ts or E2E: A(f"{CLK} s[100:101]")
    A(f"""s_cmp_ge_u32 s2, 256
          s_cbranch_scc1 L_end
          s_load_dwordx2 s[30:31], s[0:1], 0
          s_load_dwordx4 s[44:47], s[0:1], 48
          s_load_dwordx4 s[48:51], s[0:1], 64
          s_load_dwordx2 s[52:53], s[0:1], 88
          s_getpc_b64 s[84:85]
          L_pc:
          v_lshlrev_b32 v1, 7, v0
          v_add_u32 v2, 32768, v1
          v_cmp_gt_u32 vcc, L_end-L_pc, v2
          v_min_u32 v1, L_end-L_pc, v1
          v_min_u32 v2, L_end-L_pc, v2
          {"global_load_dword v169, v1, s[84:85]" if P('PF', 1) else ""}
          s_and_saveexec_b64 s[86:87], vcc
          s_cbranch_execz L_pf2
          global_load_dword v169, v2, s[84:85]
          L_pf2:
          s_mov_b64 exec, -1
          s_and_b32 s82, s2, 7
          s_lshr_b32 s83, s2, 3
          s_and_b32 s33, s83, 15
          s_lshr_b32 s83, s83, 4
          s_lshl_b32 s32, s82, 1
          s_add_u32 s32, s32, s83
          s_lshr_b32 s34, s33, 3
          s_and_b32 s35, s33, 7
          s_lshl_b32 s40, s32, 4
          s_add_u32 s40, s40, s33
          s_sub_u32 s82, 32, s32
          s_cmp_eq_u32 s32, 0
          s_cselect_b32 s82, 16, s82
          s_cmp_eq_u32 s34, 0
          s_cselect_b32 s36, s32, s82
          v_lshrrev_b32 v5, 6, v0
          v_and_b32 v0, 63, v0
          v_readfirstlane_b32 s37, v5
          v_and_b32 v2, 15, v0
          v_lshrrev_b32 v3, 4, v0
          v_lshlrev_b32 v1, 4, v0
          s_lshr_b32 s82, s37, 1
          s_lshl_b32 s82, s82, 5
          s_add_u32 s82, s82, s36
          s_and_b32 s83, s37, 1
          s_lshl_b32 s83, s83, 10
          s_add_u32 s82, s82, s83
          s_lshl_b32 s82, s82, 10
          s_lshl_b32 s83, s35, 7
          s_add_u32 s39, s82, s83
          v_lshrrev_b32 v6, 2, v0
          v_and_b32 v7, 3, v0
          v_lshlrev_b32 v4, 16, v6
          v_lshl_add_u32 v4, v7, 4, v4
          v_add_u32 v4, s82, v4
          v_mul_u32_u24 v6, 160, v6
          v_lshl_add_u32 v244, v7, 3, v6
          s_mov_b32 s10, {2*MB}
          s_mov_b32 s11, 0x20000
          s_waitcnt lgkmcnt(0)
          s_load_dword s42, s[52:53], 0
          {TLB}
          s_mov_b32 s8, s30
          s_mov_b32 s9, s31
          s_mov_b32 s81, 0x3f803f80""")
    xl = XLOAD.split("\n")
    for z, l in enumerate(xl[:XPRE]): A(l, ("x", z - 2))
    mark0 = len(A.lines)
    A(f"""s_mov_b32 s12, s44
          s_mov_b32 s13, s45
          s_mov_b32 s14, {512*2752}
          s_mov_b32 s15, 0x20000
          s_mov_b32 s96, s46
          s_mov_b32 s97, s47
          s_mov_b32 s98, {512*2752}
          s_mov_b32 s99, 0x20000""")
    A(f"""s_lshl_b32 s82, s32, 5
          s_lshl_b32 s83, s37, 3
          s_add_u32 s82, s82, s83
          v_add_u32 v170, s82, v3
          v_mul_u32_u24 v170, 2752, v170
          s_mul_i32 s83, s33, 11
          v_add_u32 v171, s83, v2
          v_lshl_add_u32 v174, v171, 4, v170
          v_cmp_gt_u32 vcc, 172, v171
          v_cmp_gt_u32 s[84:85], 11, v2
          v_mov_b32 v172, 0x7f000000
          s_and_b64 vcc, vcc, s[84:85]
          v_cndmask_b32 v174, v172, v174, vcc
          v_add_u32 v175, {4*2752}, v174
          buffer_load_dwordx4 v[144:147], v174, s[12:15], 0 offen
          buffer_load_dwordx4 v[148:151], v174, s[96:99], 0 offen
          buffer_load_dwordx4 v[152:155], v175, s[12:15], 0 offen
          buffer_load_dwordx4 v[156:159], v175, s[96:99], 0 offen""")
    A(f"""s_mov_b32 s4, s52
          s_mov_b32 s5, s53
          s_mov_b32 s6, {256*MB}
          s_mov_b32 s7, 0x20000
          s_mov_b32 s24, s48
          s_mov_b32 s25, s49
          s_mov_b32 s26, {1376*1024}
          s_mov_b32 s27, 0x20000""")
    def w2addr():
        A("""v_lshrrev_b32 v41, 3, v0
             v_and_b32 v42, 1, v41
             v_lshl_add_u32 v40, v3, 3, v42
             v_and_b32 v42, 7, v0
             v_lshlrev_b32 v42, 4, v42
             v_lshl_add_u32 v40, v40, 10, v42
             v_lshl_add_u32 v41, v41, 10, v42
             s_add_u32 s2, s40, 256""")
        for G, dst in (("s40", 46), ("s2", 47)):
            A(f"""s_mul_i32 s82, {G}, 5958
                  s_lshr_b32 s82, s82, 16
                  s_mul_i32 s83, s82, 11
                  s_sub_u32 s83, {G}, s83
                  s_lshr_b32 s84, s82, 2
                  s_and_b32 s82, s82, 3
                  s_mul_i32 s82, s82, 352
                  s_lshl_b32 s84, s84, 7
                  s_lshr_b32 s85, s83, 1
                  s_mul_i32 s85, s85, 88
                  s_and_b32 s86, s83, 1
                  s_lshl_b32 s86, s86, 5
                  s_add_u32 s85, s85, s86
                  s_lshl_b32 s86, s37, 1
                  s_add_u32 s85, s85, s86
                  s_lshl_b32 s86, s83, 2
                  s_add_u32 s86, s86, s37
                  s_sub_u32 s86, s86, 32
                  s_mul_i32 s87, s86, 43
                  s_lshr_b32 s87, s87, 7
                  s_mul_i32 s87, s87, 64
                  s_lshl_b32 s86, s86, 3
                  s_add_u32 s86, s86, s87
                  s_add_u32 s86, s86, 64
                  s_cmp_ge_u32 s83, 8
                  s_cselect_b32 s85, s86, s85
                  s_cselect_b64 vcc, -1, 0
                  s_add_u32 s82, s82, s85
                  s_lshl_b32 s82, s82, 10
                  s_add_u32 s82, s82, s84
                  v_cndmask_b32 v{dst}, v40, v41, vcc
                  v_add_u32 v{dst}, s82, v{dst}""")
    A(f"""s_lshl_b32 s82, s37, 19
          s_lshl_b32 s83, s36, 11
          s_add_u32 s82, s82, s83
          s_lshl_b32 s83, s35, 8
          s_add_u32 s82, s82, s83
          s_add_u32 s67, s82, {Y}
          s_lshl_b32 s82, s37, 15
          s_lshr_b32 s83, s35, 1
          s_lshl_b32 s83, s83, 13
          s_add_u32 s82, s82, s83
          s_lshl_b32 s83, s36, 1
          s_and_b32 s84, s35, 1
          s_add_u32 s83, s83, s84
          s_lshr_b32 s84, s83, {GFS}
          s_lshl_b32 s84, s84, 7
          s_add_u32 s82, s82, s84
          s_and_b32 s83, s83, {(1 << GFS) - 1}
          s_lshl_b32 s83, s83, 2
          s_add_u32 s82, s82, s83
          s_add_u32 s68, s82, {GF}
          s_mov_b32 s64, {f2u(1/512)}
          v_lshlrev_b32 v5, 4, v2
          v_lshl_add_u32 v5, v3, 10, v5
          s_mul_i32 s82, s37, {16*160}
          s_add_u32 s82, s82, {IB}
          v_add_u32 v244, s82, v244
          v_lshrrev_b32 v32, 2, v2
          v_lshl_add_u32 v33, v3, 2, v32
          v_and_b32 v34, 3, v2
          v_mul_u32_u24 v7, 160, v33
          v_lshl_add_u32 v7, v34, 3, v7
          v_add_u32 v7, {IB}, v7
          v_lshrrev_b32 v8, 1, v2
          v_lshlrev_b32 v8, 16, v8
          v_and_b32 v35, 1, v2
          v_lshl_add_u32 v8, v35, 4, v8
          v_lshl_add_u32 v8, v3, 5, v8""")
    A(f"""s_getreg_b32 s3, hwreg(HW_REG_XCC_ID, 0, 4)
          s_waitcnt lgkmcnt(0)
          s_mul_i32 s28, s42, 0x9E3779B1
          s_add_u32 s28, s28, 0x7F4A7C15
          s_mov_b32 s29, s28
          s_add_u32 s3, s3, s28
          v_mov_b32 v30, s28
          v_mov_b32 v236, s3
          s_lshl_b32 s82, s40, 7
          s_add_u32 s38, s82, {CX}""")
    if ts:
        A("v_mov_b32 v190, 0\nv_writelane_b32 v190, s100, 62")

    LANE = """v_lshrrev_b32 v32, 2, v2
              v_lshl_add_u32 v33, v3, 2, v32
              v_and_b32 v34, 3, v2
              v_and_b32 v35, 1, v2
              v_lshrrev_b32 v36, 3, v0
              v_and_b32 v37, 7, v0
              v_and_b32 v38, 1, v3"""
    def setup_touch():
        A(f"""s_lshl_b32 s82, s36, 13
              s_lshl_b32 s83, s37, 8
              s_add_u32 s82, s82, s83
              s_add_u32 s66, s82, {ST}
              s_lshl_b32 s82, s40, 7
              s_lshl_b32 s83, s37, 4
              s_add_u32 s82, s82, s83
              s_add_u32 s74, s82, {CF}
              s_lshl_b32 s82, s35, 10
              s_add_u32 s82, s82, s66
              v_lshlrev_b32 v44, 7, v0
              v_add_u32 v44, s82, v44
              v_mov_b32 v45, s74
              v_cmp_gt_u32 vcc, 2, v0
              v_cndmask_b32 v44, v45, v44, vcc""")

    def setup_gather():
        A(f"""s_lshr_b32 s82, s33, 2
              s_and_b32 s82, s82, 1
              s_lshl_b32 s82, s82, 5
              s_add_u32 s43, s36, s82
              s_sub_u32 s82, 64, s43
              s_cmp_le_u32 s43, 31
              s_cselect_b32 s41, s43, s82
              s_and_b32 s41, s41, 31
              s_and_b32 s82, s33, 3
              s_lshl_b32 s82, s82, 9
              s_add_u32 s55, s43, s82
              s_lshr_b32 s82, s41, 3
              s_lshl_b32 s82, s82, 15
              s_lshl_b32 s83, s37, 13
              s_add_u32 s82, s82, s83
              s_add_u32 s69, s82, {GF}
              s_lshl_b32 s82, s41, 16
              s_lshl_b32 s83, s37, 9
              s_add_u32 s82, s82, s83
              s_add_u32 s70, s82, {Y}
              s_lshl_b32 s82, s37, 7
              s_add_u32 s82, s82, s55
              s_lshl_b32 s71, s82, 10
              s_add_u32 s80, s71, 65536
              v_lshrrev_b32 v36, 3, v0
              v_and_b32 v37, 7, v0
              v_and_b32 v38, 1, v3
              v_lshrrev_b32 v9, {GFS}, v0
              v_and_b32 v39, {(1 << GFS) - 1}, v0
              v_lshlrev_b32 v9, 7, v9
              v_lshl_add_u32 v9, v39, 2, v9
              v_lshlrev_b32 v16, 2, v38
              v_xor_b32 v16, v16, v37
              v_lshlrev_b32 v16, 4, v16
              v_lshl_add_u32 v16, v36, 11, v16
              v_lshrrev_b32 v39, 1, v3
              v_lshl_add_u32 v39, v2, 1, v39
              v_lshl_add_u32 v23, v38, 5, v39
              v_lshlrev_b32 v23, 4, v23""")
    if OUTLDS:
        A(f"""s_mul_i32 s82, s37, {16*144}
              s_add_u32 s82, s82, {IB}
              v_mul_u32_u24 v6, 144, v2
              v_lshl_add_u32 v6, v3, 4, v6
              v_add_u32 v6, s82, v6
              v_lshrrev_b32 v36, 3, v0
              v_and_b32 v37, 7, v0
              v_mul_u32_u24 v7, 144, v36
              v_lshl_add_u32 v7, v37, 4, v7
              v_add_u32 v7, s82, v7
              v_lshlrev_b32 v4, 16, v36
              v_lshl_add_u32 v4, v37, 4, v4
              v_add_u32 v4, s39, v4""")

    def setup_spectral():
        A(f"""{LANE}
              s_lshl_b32 s82, s37, 14
              s_add_u32 s82, s82, {YB}
              v_lshrrev_b32 v18, 1, v33
              v_lshlrev_b32 v18, 7, v18
              v_lshl_add_u32 v18, v38, 6, v18
              v_and_b32 v39, 1, v33
              v_lshl_add_u32 v18, v39, 4, v18
              v_lshrrev_b32 v39, 1, v34
              v_lshl_add_u32 v18, v39, 5, v18
              v_lshl_add_u32 v18, v35, 3, v18
              v_add_u32 v18, s82, v18
              v_xor_b32 v17, 64, v18
              v_mul_u32_u24 v19, 1032, v2
              v_lshl_add_u32 v19, v3, 3, v19
              s_lshl_b32 s82, s37, 8
              s_and_b32 s83, s37, 1
              s_lshl_b32 s83, s83, 5
              s_add_u32 s82, s82, {ZB}
              s_add_u32 s84, s82, s83
              s_xor_b32 s83, s83, 32
              s_add_u32 s85, s82, s83
              v_add_u32 v20, s85, v19
              v_add_u32 v19, s84, v19
              v_lshrrev_b32 v28, 1, v37
              v_mul_u32_u24 v28, 4128, v28
              v_and_b32 v39, 1, v37
              v_lshl_add_u32 v28, v39, 10, v28
              v_lshl_add_u32 v28, v36, 4, v28
              v_add_u32 v28, s82, v28
              v_xor_b32 v31, 16, v28
              v_lshlrev_b32 v29, 8, v36
              v_lshl_add_u32 v29, v37, 4, v29
              v_lshlrev_b32 v21, 6, v33
              v_lshl_add_u32 v21, v38, 5, v21
              v_lshl_add_u32 v21, v34, 3, v21
              s_mul_i32 s82, s37, 4128
              s_add_u32 s82, s82, {ZB}
              v_xor_b32 v22, 32, v21
              v_add_u32 v21, s82, v21
              v_add_u32 v22, s82, v22
              v_lshrrev_b32 v39, 1, v3
              v_lshl_add_u32 v39, v2, 1, v39
              v_and_b32 v27, 1, v32
              v_xor_b32 v27, v27, v39
              v_lshlrev_b32 v27, 4, v27
              v_lshl_add_u32 v27, v38, 3, v27
              v_add_u32 v27, s82, v27
              v_lshrrev_b32 v39, 5, v0
              v_lshlrev_b32 v245, 4, v2
              v_lshl_add_u32 v245, v39, 3, v245
              v_add_u32 v242, s54, v1
              s_lshl_b32 s47, s37, 10
              s_lshl_b32 s82, s40, 9
              s_lshl_b32 s83, s37, 7
              s_add_u32 s82, s82, s83
              s_add_u32 s0, s82, {PR}
              s_lshr_b32 s82, s40, 1
              s_lshl_b32 s82, s82, 14
              s_and_b32 s83, s33, 1
              s_lshl_b32 s83, s83, 7
              s_add_u32 s81, s82, s83
              s_lshl_b32 s83, s37, 12
              s_add_u32 s82, s81, s83
              s_add_u32 s73, s82, {XN}
              s_mul_i32 s82, s32, {8*45056}
              s_add_u32 s82, s82, {H}
              s_mul_i32 s83, s37, {2*45056}
              s_add_u32 s78, s82, s83
              s_mul_i32 s83, s33, 2816
              s_add_u32 s78, s78, s83
              s_mul_i32 s83, s34, {4*45056}
              s_add_u32 s82, s82, s83
              s_mul_i32 s83, s37, {4*2816}
              s_add_u32 s79, s82, s83""")

    def setup_gemm():
        A(f"""s_lshl_b32 s82, s32, 3
              s_lshl_b32 s83, s34, 2
              s_add_u32 s82, s82, s83
              s_add_u32 s82, s82, s37
              s_lshl_b32 s84, s82, 10
              s_add_u32 s77, s84, {PR}
              s_lshl_b32 s82, s82, 14
              s_lshl_b32 s83, s35, 11
              s_add_u32 s82, s82, s83
              s_add_u32 s72, s82, {XN}
              s_lshl_b32 s82, s32, 11
              s_lshl_b32 s83, s37, 9
              s_add_u32 s82, s82, s83
              s_add_u32 s76, s82, {CF}
              s_lshl_b32 s82, s32, 17
              s_lshl_b32 s83, s37, 15
              s_add_u32 s82, s82, s83
              s_add_u32 s75, s82, {XN}
              s_mov_b32 s65, {f2u(LOG2E*LOG2E)}
              s_mov_b32 s30, s65
              s_mov_b32 s31, s65
              v_and_b32 v34, 3, v2
              v_and_b32 v35, 1, v2
              v_lshlrev_b32 v238, 7, v3
              v_lshl_add_u32 v239, v35, 4, v238
              s_lshl_b32 s82, s34, 5
              v_add_u32 v239, s82, v239
              v_lshl_add_u32 v238, v34, 4, v238
              v_add_u32 v10, 65536, v1
              v_add_u32 v11, 114688, v1
              v_add_u32 v243, 81920, v242
              v_lshrrev_b32 v241, 1, v2
              v_lshlrev_b32 v241, 7, v241
              v_lshl_add_u32 v241, v35, 3, v241""")

    def setup_tail():
        out = []
        for nu in range(3):
            out += [f"s_add_u32 s82, s37, {1+nu}", "s_and_b32 s82, s82, 3", "s_mul_i32 s82, s82, 12288",
                    f"s_add_u32 s82, s82, {RB + 4096*nu}", f"v_add_u32 v{12+nu}, s82, v1"]
        out += ["s_mul_i32 s82, s37, 12288", f"s_add_u32 s82, s82, {RB}", "v_add_u32 v15, s82, v1",
                f"s_mul_i32 s82, s37, {16*160}", f"s_add_u32 s82, s82, {IB}", "v_mul_u32_u24 v6, 160, v2",
                "v_lshl_add_u32 v6, v3, 3, v6", "v_add_u32 v6, s82, v6",
                "v_lshlrev_b32 v4, 16, v2", "v_lshl_add_u32 v4, v3, 4, v4", "v_add_u32 v4, s39, v4"]
        for k in range(3):
            out += [f"v_add_u32 v36, {4*k}, v3", "v_mul_u32_u24 v37, 43, v36", "v_lshrrev_b32 v37, 7, v37", "v_mul_u32_u24 v38, 3, v37",
                    "v_sub_u32 v36, v36, v38", "v_mul_u32_u24 v37, 2816, v37", "v_lshl_add_u32 v37, v36, 8, v37", f"v_lshl_add_u32 v{24+k}, v2, 4, v37"]
        A("\n".join(out))

    def seq_consts():
        A(f"""s_lshl_b32 s82, s37, 4
              v_add_u32 v60, s82, v2
              v_lshrrev_b32 v61, 1, v60
              v_cmp_eq_u32 vcc, 1, v60
              v_and_b32 v62, 1, v60
              v_cvt_f32_u32 v63, v3
              v_cndmask_b32 v61, v61, 32, vcc
              v_cndmask_b32 v62, v62, 0, vcc
              v_and_b32 v60, 1, v61
              v_cvt_f32_u32 v61, v61
              v_cvt_f32_u32 v62, v62
              v_mul_f32 v61, {f2u(1/64)}, v61
              v_mul_f32 v62, {f2u(0.25)}, v62
              v_mul_f32 v63, {f2u(8.0)}, v63
              v_fma_f32 v62, v61, v63, v62
              v_mul_u32_u24 v60, 0x8000, v60
              v_lshl_or_b32 v60, v60, 16, v60""")
        for ks in range(2):
            for pr in range(2):
                for b in range(2):
                    A(f"""v_fmamk_f32 v{136+b}, v61, {f2u(float(ks + 2*(2*pr+b)))}, v62
                          v_cos_f32 v{136+b}, v{136+b}""")
                A(f"""v_cvt_pk_bf16_f32 v{88+4*ks+pr}, v136, v137
                      v_xor_b32 v{90+4*ks+pr}, v60, v{88+4*ks+pr}""")

    def tile_stats():
        A("""v_pk_add_f32 v[60:61], v[64:65], v[66:67]
             v_pk_mul_f32 v[62:63], v[64:65], v[64:65]
             v_pk_fma_f32 v[62:63], v[66:67], v[66:67], v[62:63]""")
        for z in range(2, 8):
            A(f"""v_pk_add_f32 v[60:61], v[60:61], v[{64+2*z}:{65+2*z}]
                  v_pk_fma_f32 v[62:63], v[{64+2*z}:{65+2*z}], v[{64+2*z}:{65+2*z}], v[62:63]""")
        A("""v_add_f32 v48, v60, v61
             v_add_f32 v49, v62, v63""")
        qreduce(48, 49)
        A("v_mov_b32 v49, s28")

    def seq_pass1(img, extra_stores=None):
        for l in finish_stats(48, 49, 60): A(l)
        for z in range(8):
            A(normalize(64+2*z, 60))
            A(f"v_cvt_pk_bf16_f32 v{128+z}, v{64+2*z}, v{65+2*z}")
            if z & 1: A(f"ds_write_b64 {img}, v[{127+z}:{128+z}] offset:{32*(z>>1)}")
        A("""s_waitcnt lgkmcnt(0)
             s_barrier""")
        A.lg = []
        for m in range(4):
            for ks in range(2):
                for hh in range(2):
                    r = 96 + 8*m + 4*ks + 2*hh
                    A(f"ds_read_b64_tr_b16 v[{r}:{r+1}], v7 offset:{ks*5120+hh*2560+32*m}", ("p1", m))
        if extra_stores: extra_stores()
        for m in range(4):
            A.wait_lg(("p1", m))
            A(f"{MF} v[{32+4*m}:{35+4*m}], v[{96+8*m}:{99+8*m}], v[88:91], 0")
            A(f"{MF} v[{32+4*m}:{35+4*m}], v[{100+8*m}:{103+8*m}], v[92:95], v[{32+4*m}:{35+4*m}]")
        for z in range(8):
            A(f"v_cvt_pk_bf16_f32 v{128+z}, v{32+2*z}, v{33+2*z}")
            if z == 3: A("buffer_store_dwordx4 v[128:131], v8, s[4:7], s67 offen sc1")
        A("buffer_store_dwordx4 v[132:135], v8, s[4:7], s67 offen offset:128 sc1")

    seq_consts()
    bg = A.lines[mark0:]; del A.lines[mark0:]
    w1l = [l for l in bg if "buffer_load" in l]
    A.vm = [t for t in A.vm if t is not None]
    for l in bg:
        if l not in w1l: A(l)
    A.wait_vm(("x", -1))
    TS(0)
    nx = XPRE
    for z in range(8):
        if z % 4 == 0 and nx < 18: A(xl[nx], ("x", nx - 2)); nx += 1
        A(f"""v_lshlrev_b32 v{64+2*z}, 16, v{128+z}
              v_and_b32 v{65+2*z}, 0xffff0000, v{128+z}""")
    for z in range(16):
        A.wait_vm(("x", z))
        if nx < 18: A(xl[nx], ("x", nx - 2)); nx += 1
        elif w1l and W1EARLY: A(w1l.pop(0))
        for k in range(4):
            r = xr(z) + k; first = z == 0 and k == 0
            A(f"""v_dot2_f32_bf16 v48, v{r}, s81, {0 if first else "v48"}
                  v_dot2_f32_bf16 v49, v{r}, v{r}, {0 if first else "v49"}""")
    A("""s_nop 2
         v_add_f32_dpp v48, v48, v48 quad_perm:[1,0,3,2] row_mask:0xf bank_mask:0xf
         v_add_f32_dpp v49, v49, v49 quad_perm:[1,0,3,2] row_mask:0xf bank_mask:0xf
         v_add_f32_dpp v48, v48, v48 quad_perm:[2,3,0,1] row_mask:0xf bank_mask:0xf
         v_add_f32_dpp v49, v49, v49 quad_perm:[2,3,0,1] row_mask:0xf bank_mask:0xf""")
    TS(2)
    seq_pass1("v244")
    def relayout(later):
        A("""v_lshrrev_b32 v32, 2, v2
             v_and_b32 v34, 3, v2""")
        A(f"""s_lshl_b32 s82, s37, 12
              v_lshlrev_b32 v40, 5, v0
              v_add_u32 v40, s82, v40
              v_lshlrev_b32 v43, 9, v32
              v_lshl_add_u32 v43, v3, 5, v43
              v_lshl_add_u32 v43, v34, 3, v43
              v_add_u32 v43, s82, v43
              s_mul_i32 s54, s33, 180224
              s_add_u32 s54, s54, {W1F}
              s_lshl_b32 s84, s37, 8
              s_add_u32 s83, s54, s84
              s_lshl_b32 s85, s32, 12
              s_add_u32 s85, s85, s83
              s_add_u32 s86, s85, 114688
              s_mul_i32 s87, s32, 3072
              s_add_u32 s87, s87, s83
              s_add_u32 s87, s87, 65536""")
        for rq in range(2):
            b = 144 + 8*rq
            A(f"""s_waitcnt vmcnt({later + 2 - 2*rq})
                  v_swap_b32 v{b+1}, v{b+4}
                  v_swap_b32 v{b+3}, v{b+5}
                  v_swap_b32 v{b+2}, v{b+4}
                  v_swap_b32 v{b+5}, v{b+6}
                  ds_write_b128 v40, v[{b}:{b+3}] offset:{2048*rq}
                  ds_write_b128 v40, v[{b+4}:{b+7}] offset:{2048*rq+16}""")
        A("s_waitcnt lgkmcnt(0)")
        for z in range(3):
            d = 170 if (z == 1 and DEFB) else 144 + 4*z
            A(f"""ds_read_b64_tr_b16 v[{d}:{d+1}], v43 offset:{128*z}
                  ds_read_b64_tr_b16 v[{d+2}:{d+3}], v43 offset:{128*z+2048}""")
        A(f"""s_waitcnt lgkmcnt(4)
             buffer_store_dwordx4 v[144:147], v5, s[4:7], s85 offen sc1
             {"s_mov_b32 s49, s86" if DEFB else "s_waitcnt lgkmcnt(2)"}
             {"" if DEFB else "buffer_store_dwordx4 v[148:151], v5, s[4:7], s86 offen sc1"}
             s_waitcnt lgkmcnt(0)
             s_mov_b32 exec_hi, 0xffff
             buffer_store_dwordx4 v[152:155], v5, s[4:7], s87 offen sc1
             s_mov_b32 exec_hi, -1""")
    relayout(2)
    w2addr()
    setup_touch()
    A(f"s_waitcnt vmcnt({2 if DEFB else 3})")
    gflag("s68")
    TS(3)
    A("""buffer_load_dwordx4 v[176:179], v46, s[24:27], 0 offen
         buffer_load_dwordx4 v[180:183], v47, s[24:27], 0 offen
         s_mov_b64 exec, 7
         buffer_load_dword v168, v44, s[4:7], 0 offen sc1
         s_cmp_eq_u32 s37, 0
         s_cselect_b64 exec, 1, 0
         buffer_store_dword v236, off, s[4:7], s38 offset:16 sc1
         s_mov_b64 exec, -1""")
    A(f"""s_lshl_b32 s82, s37, 2
          s_add_u32 s1, s82, s38
          s_mov_b32 s12, s50
          s_mov_b32 s13, s51
          s_mov_b32 s14, {2*MB}""")
    setup_gather()

    def layer(L):
        nts[0] = 4
        def resload():
            for r in range(2):
                A(f"buffer_load_dwordx4 v[{160+4*r}:{163+4*r}], v23, s[8:11], s{71 if r == 0 else 80} offen sc1", "res")
        if L == 0: resload()
        XS = "" if WARM & (8 if L == 0 else 1) else "sc1"
        HS = "" if (WARM & 2 and L == 1) else "sc1"
        D = dict(GPB=0, LSTEP=5, EVL=16, BURSTR=2, EVA=14, EVP=32, EVC=48, NPRE=7, EVR=1 if SENT else 15, GR=8 if SENT else 10, GFB=11, POLLB=18 if SENT else 26, GB=14 if SENT else 24, BURST=0 if SENT else 9, AGGA=0, AGGR=0)
        GPB, LSTEP, EVL, BURSTR, EVA, EVP, EVC, NPRE, EVR, GR, GF_B, POLLB, GB, BURST, AGGA, AGGR = [P(f"{k}{L}", P(k, v)) for k, v in D.items()]
        B2, BA, TC, TSN, BB = 192, 200, 206, 214, 222
        A(f"""s_cmp_eq_u32 s43, 32
              s_cselect_b32 s84, 0, 1.0
              s_cselect_b32 s85, 1.0, 0
              s_cmp_gt_u32 s43, 32
              s_cselect_b32 s86, -1.0, 1.0
              s_and_b32 s82, s43, 31
              s_cmp_eq_u32 s82, 0
              s_cselect_b32 s86, 0, s86
              v_lshrrev_b32 v32, 1, v2
              v_lshlrev_b32 v32, 6, v32
              v_add_u32 v32, s55, v32
              v_cvt_f32_u32 v32, v32
              v_and_b32 v33, 1, v2
              v_cvt_f32_u32 v39, v33
              v_cvt_f32_u32 v34, v3
              v_cvt_f32_u32 v40, v2
              v_mul_f32 v32, {f2u(1/2048)}, v32
              v_mul_f32 v39, {f2u(0.25)}, v39
              v_add_f32 v35, v34, v34
              v_fma_f32 v39, v32, v35, v39
              v_mul_u32_u24 v33, 0x8000, v33
              v_lshl_or_b32 v33, v33, 16, v33
              v_mul_f32 v34, 4.0, v34""")
        for ks in range(2):
            for z in range(4):
                A(f"""v_fmamk_f32 v35, v32, {f2u(float(16*ks + 8*(z>>1) + (z&1)))}, v39
                      v_cos_f32 v36, v35
                      v_sin_f32 v37, v35
                      v_mul_f32 v38, s85, v36
                      v_mul_f32 v36, s84, v36
                      v_fma_f32 v37, v37, s86, v38
                      v_cvt_pk_bf16_f32 v{B2+4*ks+z}, v36, v37""")
        def sincos4(scale, cdst, sdst, add=0):
            A(f"""v_mul_f32 v32, {f2u(scale)}, v40
                  v_mul_f32 v39, v32, v34""")
            for j in range(4):
                A(f"""v_fmamk_f32 v35, v32, {f2u(float(j+add))}, v39
                      v_cos_f32 v{cdst+j}, v35
                      v_sin_f32 v{sdst+j}, v35""")
        sincos4(1/16, 44, 48)
        A(f"""v_cvt_pk_bf16_f32 v{BA+2}, v44, v45
              v_cvt_pk_bf16_f32 v{BA+3}, v46, v47
              v_cvt_pk_bf16_f32 v{BA+4}, v48, v49
              v_cvt_pk_bf16_f32 v{BA+5}, v50, v51
              v_xor_b32 v{BA}, 0x80008000, v{BA+4}
              v_xor_b32 v{BA+1}, 0x80008000, v{BA+5}""")
        sincos4(1/512, TC, TSN)
        sincos4(1/512, TC+4, TSN+4, 16)
        sincos4(1/32, 44, 48)
        for ks in range(2):
            A(f"""v_cvt_pk_bf16_f32 v{BB+4*ks}, v{44+4*ks}, v{45+4*ks}
                  v_cvt_pk_bf16_f32 v{BB+4*ks+1}, v{46+4*ks}, v{47+4*ks}
                  v_xor_b32 v{BB+4*ks+2}, v33, v{BB+4*ks}
                  v_xor_b32 v{BB+4*ks+3}, v33, v{BB+4*ks+1}""")
        for z in range(8):
            A(f"v_xor_b32 v{BB+8+z}, 0x80000000, v{BB+z}")
        A(f"""s_mov_b32 s90, s70
              s_lshl_b32 s91, s37, 14
              s_add_u32 s91, s91, {YB}
              s_mov_b32 m0, s91
              s_lshl_b32 s92, s32, 11
              s_add_u32 s92, s92, {CX + 16}
              v_lshlrev_b32 v41, 7, v2""")
        if L == 0:
            A(f"""s_lshl_b32 s93, s33, 7
                  s_add_u32 s93, s93, {CX}
                  v_lshlrev_b32 v184, 11, v2
                  v_lshl_add_u32 v184, v3, 2, v184""")
            A("buffer_load_dword v36, v9, s[4:7], s69 offen sc1\ns_waitcnt vmcnt(5)") if GPRE else A("s_waitcnt vmcnt(6)")
            gflag("s1")
            if GPRE: A("s_waitcnt vmcnt(1)\nv_cmp_ne_u32 vcc, s28, v36\ns_cbranch_vccz L_pG0_ok")
        if L == 1 and WARM & 3: warm(44 if WARM & 2 else 0)
        TS()
        vpoll(f"L_pG{L}", "buffer_load_dword v36, v9, s[4:7], s69 offen sc1", [36], sleep=GSLEEP)
        TS()
        m0_ = len(A.lines)
        if L == 0:
            A(f"""s_lshl_b32 s82, s37, 12
                  v_add_u32 v42, s82, v1
                  v_lshrrev_b32 v44, 2, v2
                  v_and_b32 v45, 3, v2
                  v_lshlrev_b32 v44, 7, v44
                  v_lshl_add_u32 v44, v45, 4, v44
                  v_lshrrev_b32 v45, 1, v3
                  v_lshl_add_u32 v44, v45, 6, v44
                  v_and_b32 v45, 1, v3
                  v_lshl_add_u32 v44, v45, 3, v44
                  v_add_u32 v44, s82, v44
                  ds_write_b128 v42, v[176:179]
                  ds_write_b128 v42, v[180:183] offset:1024
                  s_waitcnt lgkmcnt(0)
                  ds_read_b64_tr_b16 v[176:177], v44
                  ds_read_b64_tr_b16 v[178:179], v44 offset:512
                  ds_read_b64_tr_b16 v[180:181], v44 offset:1024
                  ds_read_b64_tr_b16 v[182:183], v44 offset:1536
                  s_waitcnt lgkmcnt(0)""")
            setup_spectral()
        weave = A.lines[m0_:]; del A.lines[m0_:]
        per = -(-len(weave) // 13)
        for z in range(16):
            if z >= 3:
                for l in weave[per*(z-3):per*(z-2)]: A(l)
            if z and z % 4 == 0: A("s_add_u32 m0, m0, 4096")
            A(f"buffer_load_dwordx4 v16, s[4:7], s90 offen offset:{(z%4)*1024} {LY} lds", ("y", z >> 2))
            if z < 15: A(f"s_add_u32 s90, s90, {16384 - 1024}" if z % 4 != 3 else f"s_sub_u32 s90, s90, {3*(16384 - 1024) - 128}")
        A("s_barrier")
        if L == 0:
            A("buffer_load_dword v185, v184, s[4:7], s93 offen sc1", "gw")
            A("buffer_load_dword v168, v41, s[4:7], s92 offen sc1", "res")
        else: resload()
        if CPOS == 1 and L == 0 or CPOS == 2: clear_h()
        A.lg = []
        def p2mfma(mt):
            A.wait_lg(("p2", mt))
            A(f"{MF} v[{32+4*mt}:{35+4*mt}], v[{96+8*mt}:{99+8*mt}], v[{B2}:{B2+3}], 0")
            A(f"{MF} v[{32+4*mt}:{35+4*mt}], v[{100+8*mt}:{103+8*mt}], v[{B2+4}:{B2+7}], v[{32+4*mt}:{35+4*mt}]")
        def p2out(m):
            A(f"""v_cvt_pk_bf16_f32 v{64+2*m}, v{32+4*m}, v{33+4*m}
                  v_cvt_pk_bf16_f32 v{65+2*m}, v{34+4*m}, v{35+4*m}""")
            A(f"ds_write_b64 v{19+(m&1)}, v[{64+2*m}:{65+2*m}] offset:{64*(m>>1)}")
        for cg in range(4):
            A.wait_vm(("y", cg))
            if cg == 0: TS()
            for mt in (2*cg, 2*cg+1):
                for ks in range(2):
                    for hh in range(2):
                        r = 96 + 8*mt + 4*ks + 2*hh
                        A(f"ds_read_b64_tr_b16 v[{r}:{r+1}], v{18 - (mt & 1)} offset:{cg*4096+ks*2048+hh*1024}", ("p2", mt))
            if cg >= 1: p2out(2*cg-2); p2out(2*cg-1)
            p2mfma(2*cg); p2mfma(2*cg+1)
            if cg == 3:
                if L == 0:
                    A(f"""s_lshl_b32 s82, s40, 12
                          s_lshl_b32 s83, s37, 8
                          s_add_u32 s82, s82, s83
                          s_add_u32 s82, s82, {W2F}
                          s_add_u32 s83, s82, {256*4096}""")
                    if DEFB: A("buffer_store_dwordx4 v[170:173], v5, s[4:7], s49 offen sc1")
                    A("buffer_store_dwordx4 v[176:179], v5, s[4:7], s82 offen sc1", "w2s")
                    A("""s_cmp_lt_u32 s40, 96
                         s_cselect_b64 exec, -1, 0""")
                    A("buffer_store_dwordx4 v[180:183], v5, s[4:7], s83 offen sc1", "cond")
                    A("s_mov_b64 exec, -1")
        p2out(6); p2out(7)
        if L == 0: check("L_pW", "gw", "v185", "buffer_load_dword v185, v184, s[4:7], s93 offen sc1")
        A("""s_waitcnt lgkmcnt(0)
             s_barrier""")
        A.lg = []
        TS()
        for r in range(2):
            for h in range(2):
                for cc in range(2):
                    reg = 96 + 8*r + 4*h + 2*cc
                    A(f"ds_read_b64_tr_b16 v[{reg}:{reg+1}], v{21+h} offset:{r*2064+cc*1032}", ("sa", r))
        A("s_add_u32 s46, s78, 45056")
        if CPOS == 0: clear_h()
        wnext = 0 if L == 0 else 19
        side = wgroup(wnext, wnext + (NSIDE0 if L == 0 else NSIDE1), "s90", "s91")
        wnext += len(side)
        mark = len(A.lines)
        for r in range(2):
            A.wait_lg(("sa", r))
            for h in range(2):
                for c2 in range(2):
                    d = 32 + 16*r + 8*c2 + 4*h
                    b = BA + 2 if c2 == 0 else BA
                    A(f"{MF} v[{d}:{d+3}], v[{96+8*r+4*h}:{99+8*r+4*h}], v[{b}:{b+3}], 0")
        for r in range(2):
            for z in range(4):
                ur, ui = 32 + 16*r + 2*z, 40 + 16*r + 2*z
                A(f"""v_pk_mul_f32 v[64:65], v[{ui}:{ui+1}], v[{TSN+2*z}:{TSN+2*z+1}]
                      v_pk_mul_f32 v[66:67], v[{ur}:{ur+1}], v[{TSN+2*z}:{TSN+2*z+1}]
                      v_pk_fma_f32 v[64:65], v[{ur}:{ur+1}], v[{TC+2*z}:{TC+2*z+1}], v[64:65]
                      v_pk_fma_f32 v[66:67], v[{ui}:{ui+1}], v[{TC+2*z}:{TC+2*z+1}], v[66:67] neg_lo:[0,0,1] neg_hi:[0,0,1]
                      v_cvt_pk_bf16_f32 v{112+8*r+z}, v64, v65
                      v_cvt_pk_bf16_f32 v{116+8*r+z}, v66, v67""")
            for g in range(2):
                d = 80 + 8*r + 4*g
                A(f"{MF} v[{d}:{d+3}], v[{112+8*r}:{115+8*r}], v[{BB+8*g}:{BB+8*g+3}], 0")
            for g in range(2):
                d = 80 + 8*r + 4*g
                A(f"{MF} v[{d}:{d+3}], v[{116+8*r}:{119+8*r}], v[{BB+8*g+4}:{BB+8*g+7}], v[{d}:{d+3}]")
        A("RESWAIT")
        nres = A.vm_count("res")
        for r in range(2):
            A(f"""v_permlane16_swap_b32 v{160+4*r}, v{162+4*r}
                  v_permlane16_swap_b32 v{161+4*r}, v{163+4*r}""")
        for r in range(2):
            for z in range(4):
                A(f"""v_lshlrev_b32 v{128+8*r+2*z}, 16, v{160+4*r+z}
                      v_and_b32 v{129+8*r+2*z}, 0xffff0000, v{160+4*r+z}""")
        if L == 0:
            A(f"""v_cmp_ne_u32 vcc, s3, v168
                  s_cmp_eq_u64 vcc, {-2 if slow else 0}
                  s_cselect_b64 s[60:61], 1, 0
                  s_cselect_b64 s[62:63], 0, 1
                  s_cselect_b32 s56, 0xffff, 0
                  s_cselect_b32 s57, 0xffff, 0
                  s_cselect_b32 s58, 0, 0xffff
                  s_cselect_b32 s59, 0, 0xffff""")
        for r in range(2):
            x = 80 + 8*r
            for z in range(4): A(f"v_pk_add_f32 v[{x+2*z}:{x+2*z+1}], v[{x+2*z}:{x+2*z+1}], v[{x+48+2*z}:{x+49+2*z}]")
            A(f"""v_pk_add_f32 v[{32+4*r}:{33+4*r}], v[{x}:{x+1}], v[{x+2}:{x+3}]
                  v_pk_mul_f32 v[{34+4*r}:{35+4*r}], v[{x}:{x+1}], v[{x}:{x+1}]""")
            for z in range(1, 4):
                if z > 1: A(f"v_pk_add_f32 v[{32+4*r}:{33+4*r}], v[{32+4*r}:{33+4*r}], v[{x+2*z}:{x+2*z+1}]")
                A(f"v_pk_fma_f32 v[{34+4*r}:{35+4*r}], v[{x+2*z}:{x+2*z+1}], v[{x+2*z}:{x+2*z+1}], v[{34+4*r}:{35+4*r}]")
            A(f"""v_add_f32 v{40+2*r}, v{32+4*r}, v{33+4*r}
                  v_add_f32 v{41+2*r}, v{34+4*r}, v{35+4*r}""")
        A("""v_permlane32_swap_b32 v40, v42
             v_permlane32_swap_b32 v41, v43
             v_add_f32 v40, v40, v42
             v_add_f32 v41, v41, v43
             DGAP
             v_permlane16_swap_b32 v40, v41
             v_add_f32 v40, v40, v41""")
        for sh in (8, 4, 2, 1):
            A(f"DGAP\nv_add_f32_dpp v40, v40, v40 row_ror:{sh} row_mask:0xf bank_mask:0xf")
        A("""v_mov_b32 v41, v40
             DGAP
             v_permlane16_swap_b32 v40, v41""")
        for l in finish_stats(40, 41, 44, LOG2E): A(l)
        A("""v_mov_b32 v48, v44
             v_mov_b32 v49, v45
             v_rcp_f32 v46, v44
             v_permlane32_swap_b32 v44, v48
             v_permlane32_swap_b32 v45, v49
             v_mov_b32 v47, v40""")
        for r in range(2):
            for z in range(4):
                x = 80 + 8*r + 2*z
                A(normalize(x, 44+4*r))
                A(f"v_cvt_pk_bf16_f32 v{64+4*r+z}, v{x}, v{x+1}")
                if z & 1: A(f"ds_write_b64 v27, v[{63+4*r+z}:{64+4*r+z}] offset:{1024*r+512*(z>>1)}")
        body = A.lines[mark:]; del A.lines[mark:]
        first_gap = min(k for k, l in enumerate(body) if "DGAP" in l)
        ngap = NGAP
        step = (first_gap - 4) // (len(side) - ngap); issued = 0; held = None; seen_gap = 0
        for k, l in enumerate(body):
            if "RESWAIT" in l: A(f"s_waitcnt vmcnt({issued + nres})"); continue
            if "DGAP" in l:
                seen_gap += 1
                if ngap and (seen_gap % 2 == 1 or NGAP > 3): put(side.pop(0)); ngap -= 1
                continue
            A.lines.append(l)
            if held and "s_cmp" not in l and "s_cselect" not in l: A(held[1], held[2]); issued += 1; held = None
            elif k % step == 1 and len(side) > ngap and k < first_gap and "s_cmp" not in l and "s_cselect" not in l and "v_cmp" not in l:
                held = side.pop(0); A(held[0][0])
        assert held is None
        assert not side
        if L == 0:
            A.wait_vm("w2s")
            A("s_add_u32 s1, s1, 32")
            gflag("s1")
        A(f"""s_mov_b32 exec_lo, 1
              s_mov_b32 exec_hi, 1
              buffer_store_dwordx2 v[46:47], v245, s[4:7], s0 offen {XS}
              s_mov_b64 exec, -1
              s_waitcnt lgkmcnt(0)
              s_barrier
              ds_read_b128 v[48:51], v28
              ds_read_b128 v[52:55], v31 offset:128
              s_waitcnt lgkmcnt(1)
              buffer_store_dwordx4 v[48:51], v29, s[4:7], s73 offen {XS}
              s_waitcnt lgkmcnt(0)
              buffer_store_dwordx4 v[52:55], v29, s[4:7], s73 offen offset:2048 {XS}""")
        TS()
        TSflush()
        if (L == 0 and PF2 & 2) or (L == 1 and PF2 & 4): code_ahead(28)
        if L == 0: setup_gemm()
        A(f"""s_mov_b32 s44, s75
              s_add_u32 s45, s75, 16384
              """)
        for nu in range(4):
            A(f"""s_add_u32 s82, s37, {1+nu}
                  s_and_b32 s82, s82, 3
                  s_mul_i32 s82, s82, 45056
                  s_add_u32 s{96+nu}, s79, s82""")
        if L == 0:
            A(f"""s_lshl_b32 s82, s35, 2
                  s_add_u32 s82, s82, s37
                  s_mul_i32 s82, s82, 11
                  v_min_u32 v196, 10, v2
                  v_add_u32 v196, s82, v196
                  v_and_b32 v196, 255, v196
                  v_lshlrev_b32 v196, 7, v196
                  v_lshl_add_u32 v196, v3, 2, v196
                  s_mov_b32 s2, {CX + 32}""")
        A(f"""s_lshl_b32 s82, s32, 1
              s_add_u32 s82, s82, s34
              s_add_u32 s82, s82, s35
              s_and_b32 s42, s82, {3 if ROTH else 0}
              s_mul_i32 s83, s42, 2816""")
        for nu in range(4): A(f"s_add_u32 s{96+nu}, s{96+nu}, s83")
        for k in range(1, 4):
            A(f"""s_add_u32 s82, s42, {k}
                  s_cmp_eq_u32 s82, 4
                  s_cselect_b32 s82, -3, 1
                  s_mul_i32 s{83+k}, s82, 2816""")
        A(f"""s_add_u32 s82, s42, 3
              s_and_b32 s82, s82, 3
              s_mul_i32 s87, s82, 2816
              s_mov_b32 s88, s83""")
        if EARLY & 1: A.lg = []
        else: A.vm0(); A.lg = []
        cflag(0)
        for _ in range(NC1 if L == 0 else NC1B): put(witem(wnext)); wnext += 1
        assert wnext <= 35
        GW2 = "buffer_load_dword v197, v196, s[4:7], s2 offen sc1"
        put(cpoll_load("v238", 0))
        if L == 0 and W2T: A(GW2, "gw2")
        cpoll_check(f"L_pC1{L}", "v238", 0)
        if "g2" not in sys.argv: TS()

        def xreg(n):
            return f"a[{176+4*n}:{179+4*n}]" if n < 20 else f"v[{128+4*(n-20)}:{131+4*(n-20)}]"
        xq = []
        for kk in range(16):
            for T in range(2):
                pre = [f"s_add_u32 s{44+T}, s{44+T}, 4096"] if (kk % 4 == 0 and kk) else []
                xq.append((pre, f"buffer_load_dwordx4 {xreg(2*kk+T)}, v1, s[4:7], s{44+T} offen offset:{(kk%4)*1024} {LX}", ("xn", kk)))
        PRE = P('PRE', 10)
        for it in xq[:PRE]: put(it)
        tq = []
        if L == 0:
            setup_tail()
            A(f"""s_lshl_b32 s49, s35, 2
                  s_add_u32 s49, s49, s37
                  s_mul_i32 s49, s49, 45056
                  s_add_u32 s49, s49, {W2F}""")
        if L == 0 and W2T:
            A(f"""s_and_b32 s82, s32, 1
                  s_lshl_b32 s82, s82, 1
                  s_add_u32 s82, s82, s34
                  s_mul_i32 s82, s82, {88*128}
                  s_add_u32 s82, s82, s49
                  v_lshrrev_b32 v198, 3, v0
                  v_lshlrev_b32 v198, 7, v198
                  v_add_u32 v198, s82, v198
                  s_mov_b32 s89, 4096
                  s_mov_b32 s48, 8192""")
            check("L_pW2", "gw2", "v197", GW2)
            tq = [f"buffer_load_dword v199, v198, s[4:7], {('0', 's89', 's48')[k >> 2]} offen offset:{1024*(k & 3)} sc1" for k in range(11)]
        if L == 0 or not NOBAR: A("s_barrier")
        frags = []
        for ps, nt in ((0, 4), (1, 3), (2, 4)):
            for kk in range(16):
                for t in range(nt):
                    if ps == 0: addr = ("v1", kk*4096 + t*1024)
                    elif ps == 1: addr = ("v10", kk*3072 + t*1024)
                    elif kk < 12: addr = ("v11", kk*4096 + t*1024)
                    else: addr = ("v10", 16384 + (kk-12)*4096 + t*1024)
                    frags.append((ps, kk, t, addr))
        NF, LOOK = len(frags), P('LOOK', 6)
        def aread(n):
            ps, kk, t, (va, off) = frags[n]
            r = 96 + 4*(n % 8)
            A(f"ds_read_b128 v[{r}:{r+3}], {va} offset:{off}", ("af", n))
        def acc(ps, t, T): return 32 + 32*(ps & 1) + 8*t + 4*T

        def epi(ps, nt, together=False, packed=False):
            ops, tmp_last, k = [], {}, 0
            for T in range(2):
                cv = []
                for t in range(nt):
                    a = acc(ps, t, T); e = 184 + 2*(k % 3); k += 1
                    b = len(ops); w = tmp_last.get(e, [])
                    if packed:
                        ops += [["t", f"v_exp_f32 v{e}, -v{a}", w], ["t", f"v_exp_f32 v{e+1}, -v{a+1}", w],
                                ["v", f"v_pk_mul_f32 v[{a}:{a+1}], v[{a}:{a+1}], v[{a+2}:{a+3}]", [b, b+1]],
                                ["v", f"v_pk_fma_f32 v[{e}:{e+1}], v[{e}:{e+1}], s[30:31], s[30:31]", [b, b+1]],
                                ["t", f"v_rcp_f32 v{e}, v{e}", [b+3]], ["t", f"v_rcp_f32 v{e+1}, v{e+1}", [b+3]],
                                ["v", f"v_pk_mul_f32 v[{a}:{a+1}], v[{a}:{a+1}], v[{e}:{e+1}]", [b+2, b+4, b+5]],
                                ["v", f"v_cvt_pk_bf16_f32 v{176+4*T+t}, v{a}, v{a+1}", [b+6]]]
                        tmp_last[e] = [b+6]; cv.append(b+7)
                        continue
                    ops += [["t", f"v_exp_f32 v{e}, -v{a}", w], ["t", f"v_exp_f32 v{e+1}, -v{a+1}", w],
                            ["v", f"v_mul_f32 v{a}, v{a}, v{a+2}", [b]], ["v", f"v_mul_f32 v{a+1}, v{a+1}, v{a+3}", [b+1]],
                            ["v", f"v_fma_f32 v{e}, v{e}, s65, s65", [b]], ["v", f"v_fma_f32 v{e+1}, v{e+1}, s65, s65", [b+1]],
                            ["t", f"v_rcp_f32 v{e}, v{e}", [b+4]], ["t", f"v_rcp_f32 v{e+1}, v{e+1}", [b+5]],
                            ["v", f"v_mul_f32 v{a}, v{a}, v{e}", [b+2, b+6]], ["v", f"v_mul_f32 v{a+1}, v{a+1}, v{e+1}", [b+3, b+7]],
                            ["v", f"v_cvt_pk_bf16_f32 v{176+4*T+t}, v{a}, v{a+1}", [b+8, b+9]]]
                    tmp_last[e] = [b+8, b+9]; cv.append(b+10)
                b, so = 176 + 4*T, 78 if T == 0 else 46
                if nt == 4:
                    ops.append(["m", f"buffer_store_dwordx4 v[{b}:{b+3}], v1, s[4:7], s{so} offen offset:{512*ps} {HS}", cv])
                else:
                    n0 = len(ops)
                    ops += [["t", f"v_permlane32_swap_b32 v{b}, v{b+2}", cv], ["t", f"v_permlane32_swap_b32 v{b+1}, v{b+3}", cv],
                            ["t", f"v_permlane16_swap_b32 v{b}, v{b+1}", [n0, n0+1]], ["t", f"v_permlane16_swap_b32 v{b+2}, v{b+3}", [n0, n0+1]],
                            ["m", f"s_mov_b32 exec_hi, 0xffff\nbuffer_store_dwordx4 v[{b}:{b+3}], v1, s[4:7], s{so} offen offset:2048 {HS}\ns_mov_b32 exec_hi, -1", [n0+2, n0+3]]]
            if together:
                ms = [o for o in ops if o[0] == "m"]
                ms[0][2] = ms[0][2] + ms[1][2]
            return ops

        class Fill:
            def __init__(s, ops, tag): s.ops, s.done, s.tag, s.now = ops, {}, tag, 0
            def left(s): return len(s.done) < len(s.ops)
            def take(s, kind):
                for i, (k, text, deps) in enumerate(s.ops):
                    if i in s.done or k != kind: continue
                    if all(d in s.done and s.done[d] < s.now for d in deps):
                        s.done[i] = s.now; A(text, s.tag if k == "m" else None); return True
                return False
            def drain(s, between=None):
                n = 0
                while s.left():
                    s.now += 1
                    if not (s.take("m") or s.take("t") or s.take("v")): raise SystemExit("stuck")
                    s.take("v")
                    n += 1
                    if between: between(n)

        def wait_for(n, vmtag=None):
            parts = []
            if vmtag is not None and vmtag in A.vm: parts.append(f"vmcnt({A.vm_count(vmtag)})")
            if ("af", n) in A.lg: parts.append(f"lgkmcnt({A.lg_count(('af', n))})")
            if parts: A("s_waitcnt " + " ".join(parts))

        def wneed(n):
            ps, kk, t, _ = frags[n]
            return ((0, 65536, 114688)[ps] + kk*(4096, 3072, 4096)[ps] + 1024*t) // 4096
        W = {"vis": wnext - 1, "at": {}, "bar": True}
        if L == 1 and NOBAR: W = {"vis": 18, "at": {j: -1000 for j in range(19, wnext)}, "bar": False}
        N1, N2 = 64, 112
        NFREE = N1 + 34

        def stream(lo, hi, vq, fill, events, extra=False, dense=False, agg=0):
            lastm = lo - 2
            for n in range(lo, hi):
                ps, kk, t, _ = frags[n]
                r = 96 + 4*(n % 8)
                for T in range(2):
                    a = acc(ps, t, T)
                    A(f"{MF} v[{a}:{a+3}], v[{r}:{r+3}], {xreg(2*kk+T)}, " + ("0" if kk == 0 else f"v[{a}:{a+3}]"))
                    if fill: fill.now += 1
                    if T == 0:
                        if vq and vq[0][0]: A(vq[0][0].pop(0))
                        if n + LOOK < NF: aread(n + LOOK)
                        if fill and n >= lo + 2:
                            fill.take("v")
                            if agg & 1: fill.take("v")
                    else:
                        if n + 1 < NF:
                            nps, nkk, nt_, _ = frags[n+1]
                            xt = ("xn", nkk) if (nps == 0 and nt_ == 0) else None
                            need = wneed(n + 1 + LOOK) if n + 1 + LOOK < NF else -1
                            if need > W["vis"] or n + 1 == NFREE:
                                tgt = max([need, W["vis"]] + [j for j, at in W["at"].items() if at <= n - WLAT])
                                assert tgt <= W["vis"] or tgt in W["at"], (L, n, tgt)
                                tags = [t_ for t_ in (xt, ("W", tgt) if tgt > W["vis"] else None) if t_ in A.vm]
                                wait_for(n + 1, min(tags, key=A.vm_count) if tags else None)
                                A("s_barrier"); W["vis"] = tgt; W["bar"] = True
                                if n + 1 == NFREE:
                                    k = max([q + 1 for q, it in enumerate(vq) if isinstance(it[2], tuple) and it[2][0] == "W"] + [0])
                                    vq[k:k] = [witem(j) for j in range(40, 44)]
                            else: wait_for(n + 1, xt)
                            ev = events.get(n + 1)
                            if ev: ev(n + 1)
                        if fill and n >= lo + 2 and n - lastm >= 2 and fill.take("m"): lastm = n; W["st"] = n
                        elif vq and not vq[0][0] and (W["bar"] or vq[0][2] != ("W", 35)) and n - lastm >= (SLOWN if (L == 0 and vq[0][2] == "w2" and n - W.get("st", -99) < SLOWW) else 1 if dense and len(vq) > (hi - n) // 2 else 2) and (not fill or not fill.left() or vq[0][2] != "late"):
                            it = vq.pop(0); put(it); lastm = n
                            if isinstance(it[2], tuple) and it[2][0] == "W": W["at"][it[2][1]] = n
                            if extra and fill: fill.take("t") or fill.take("v")
                        elif tq and n >= T0 and (n - T0) // W2T > 11 - len(tq) - 1: A(tq.pop(0))
                        elif fill and n >= lo + 2:
                            if not fill.take("t"):
                                fill.take("v"); fill.take("v")
                            elif agg & 2: fill.take("v")
                            if agg & 4: fill.take("t")

        A.lg = []
        for n in range(LOOK): aread(n)
        wait_for(0, ("xn", 0))
        vq = list(xq[PRE:]) + [witem(j) for j in range(wnext, 40)]
        if L == 0 and not W2T: vq.insert(8, ([], GW2, "gw2"))
        GW3 = """buffer_load_dword v198, v184, s[4:7], s93 offen offset:32 sc1"""
        if L == 0 and DEFB:
            assert wnext <= 28
            vq.insert(9, ([], GW3, "gw3"))
        stream(0, N1, vq, None, {44: lambda n: check("L_pW3", "gw3", "v198", GW3)} if (L == 0 and DEFB) else {})
        if "g2" not in sys.argv: TS()
        order = [(ks, nu) for ks in (0, 2, 4, 6, 8, 9, 10) for nu in range(4)] + [(ks, nu) for nu in range(4) for ks in (1, 3, 5, 7)]
        def hreg(i):
            if i < 11: return f"v[{192+4*i}:{195+4*i}]"
            if i < 15: return f"v[{160+4*(i-11)}:{163+4*(i-11)}]"
            if i < 16: return "v[96:99]"
            if i < 36: return f"a[{176+4*(i-16)}:{179+4*(i-16)}]"
            return f"v[{128+4*(i-36)}:{131+4*(i-36)}]"
        def hitem(i):
            ks, nu = order[i]; s = f"s{96+nu}"
            if ks < 8:
                return ([f"s_add_u32 {s}, {s}, s{83 + (ks >> 1)}"] if ks >= 2 else ([f"s_add_u32 {s}, {s}, s88"] if ks == 1 else []),
                        f"buffer_load_dwordx4 {hreg(i)}, v1, s[4:7], {s} offen offset:{(ks&1)*1024} {LH}", ("h", i))
            return ([f"s_sub_u32 {s}, {s}, s87"] if ks == 8 else [],
                    f"buffer_load_dwordx4 {hreg(i)}, v{24+ks-8}, s[4:7], {s} offen offset:2048 {LH}", ("h", i))
        w2q = []
        if L == 0:
            if not W2T: check("L_pW2", "gw2", "v197", GW2)
            for ks in (0, 2, 4, 6, 8, 9, 10, 1, 3, 5, 7):
                for m in range(4):
                    f = 4*ks + m
                    pre = [] if m else [f"s_add_u32 s48, s49, {4096*ks}"]
                    if m == 0 and ks < 8 and ROTH:
                        pre = [f"s_add_u32 s48, s42, {ks >> 1}", "s_and_b32 s48, s48, 3", "s_lshl_b32 s48, s48, 13", f"s_add_u32 s48, s48, s{49 if ks % 2 == 0 else 89}"]
                    w2q.append((pre,
                                f"buffer_load_dwordx4 a[{4*f}:{4*f+3}], v1, s[4:7], s48 offen offset:{m*1024} {LW}", "w2"))
        w2late = w2q[44 - W2LATE:]; w2q = w2q[:44 - W2LATE]
        vq += w2q
        fill = Fill(epi(0, 4, bool(TOG >> L & 1)), "hA")
        stream(N1, N2, vq, fill, {}, extra=(L == 0), agg=AGGA)
        fill.drain()
        if "g2" not in sys.argv: TS()
        k = max([q + 1 for q, it in enumerate(vq) if isinstance(it[2], tuple) and it[2][0] == "W"] + [0])
        vq[k:k] = [([], "buffer_load_dwordx2 v[246:247], v241, s[4:7], s77 offen sc1", "res"),
                   ([], "buffer_load_dwordx4 v[248:251], v1, s[4:7], s72 offen sc1", "res"),
                   ([], "buffer_load_dwordx4 v[252:255], v1, s[4:7], s72 offen offset:1024 sc1", "res")]
        def evA(n):
            A.wait_vm("hA"); cflag(4)
            if FORCE: cflag(8); cflag(12)
        def evP(n): vq.insert(0, cpoll_load("v239", 4))
        def evC(n):
            cpoll_check(f"L_pA{L}", "v239", 4)
            assert not any(it[2] == "res" for it in vq)
            cv = [k for k, o in enumerate(fill.ops) if o[1].startswith("v_cvt")]
            for z in range(8):
                b = len(fill.ops)
                fill.ops += [["v", f"v_lshlrev_b32 v{64+2*z}, 16, v{248+z}", cv], ["v", f"v_and_b32 v{65+2*z}, 0xffff0000, v{248+z}", cv],
                             ["v", f"v_fma_f32 v{64+2*z}, v{64+2*z}, v246, v247", [b]], ["v", f"v_fma_f32 v{65+2*z}, v{65+2*z}, v246, v247", [b+1]]]
            vq.extend(hitem(i) for i in range(NPRE))
        fill = Fill(epi(1, 3, True), "hR")
        ev = {N2 + EVA: evA, N2 + EVP: evP, N2 + EVC: evC}
        if EVR < 0: ev[NF + EVR] = lambda n: (A.wait_vm("hR"), cflag(8))
        stream(N2, NF, vq, fill, ev, extra=(L == 0), dense=(L == 0), agg=AGGR)
        fill.drain()
        while vq: put(vq.pop(0))
        TS()

        hq = [hitem(i) for i in range(NPRE, 44)]
        fill = Fill(epi(2, 4, True, True), "hB")
        def feed(n):
            if n >= EVL and (n - EVL) % LSTEP == 0 and hq[0][2][1] < 16: put(hq.pop(0))
            if n == EVR: (None if SENT else A.wait_vm("hR")); cflag(8)
            if sum(1 for i, o in enumerate(fill.ops) if i not in fill.done and o[0] != "m") == 0 and "pollR" not in seen:
                seen.add("pollR"); put(cpoll_load("v239", 8))
        seen = set()
        fill.drain(feed)
        if SENT: cflag(12)
        if "g2" not in sys.argv: TS()
        def acc2(nu, m): return (32, 48, 80, 64)[nu] + 4*m
        def validate(nu):
            if not SENT: return
            lab = f"L_v{L}{nu}"
            A(f"""v_cmp_u_f32 vcc, v{acc2(nu, 0)}, v{acc2(nu, 0)}
                  s_cbranch_vccnz {lab}_re
                  {lab}_ok:""")
            t = [f"{lab}_re:"] + ([f"s_mov_b64 exec, 1", "v_mov_b32 v240, 1", f"s_mov_b32 s82, {TSO + 16384 + 16*L + 4*nu}", "buffer_atomic_add v240, off, s[4:7], s82", "s_mov_b64 exec, -1"] if CNT else []) + [f"s_sub_u32 s83, s76, {CF - C2 + 60*L}", "s_mov_b32 s82, 0", f"{lab}_lp:",
                 "buffer_load_dword v240, v239, s[4:7], s83 offen sc1", "s_add_u32 s82, s82, 1", f"s_cmp_gt_u32 s82, {SPIN}",
                 f"s_cbranch_scc1 {lab}_go", "s_waitcnt vmcnt(0)", "v_cmp_ne_u32 vcc, s28, v240", f"s_cbranch_vccnz {lab}_lp", f"{lab}_go:",
                 f"s_add_u32 s82, s37, {1+nu}", "s_and_b32 s82, s82, 3", "s_mul_i32 s82, s82, 45056", "s_add_u32 s82, s82, s79"]
            mine = [(i, ks) for i, (ks, n_) in enumerate(order) if n_ == nu]
            for i, ks in mine:
                if ks >= 8: t.append(f"buffer_load_dwordx4 {hreg(i)}, v{24+ks-8}, s[4:7], s82 offen offset:2048 sc1")
            for i, ks in mine:
                if ks < 8 and ks & 1:
                    t += [f"buffer_load_dwordx4 {hreg(i)}, v1, s[4:7], s82 offen offset:1024 sc1", "s_add_u32 s82, s82, 2816"]
            if nu == 3:
                for z in range(8):
                    t += [f"v_lshlrev_b32 v{64+2*z}, 16, v{248+z}", f"v_and_b32 v{65+2*z}, 0xffff0000, v{248+z}",
                          f"v_fma_f32 v{64+2*z}, v{64+2*z}, v246, v247", f"v_fma_f32 v{65+2*z}, v{65+2*z}, v246, v247"]
            t.append("s_waitcnt vmcnt(0)")
            for i, ks in mine:
                for m in range(4):
                    a = acc2(nu, m); f = 4*ks + m
                    t.append(f"{MF} v[{a}:{a+3}], a[{4*f}:{4*f+3}], {hreg(i)}, " + ("0" if (ks == 0 and nu < 3) else f"v[{a}:{a+3}]"))
            t += ["s_nop 7", f"s_branch {lab}_ok"]
            tails.append("\n".join(t))
        assert not (SENT and ROTH)
        pendw = []
        early = [(s_, mm) for mm in range(4) for s_ in range(2)]
        A.wait_vm(("h", 0))
        for i, (ks, nu) in enumerate(order):
            if i in TSG: TS()
            for m in range(4):
                a = acc2(nu, m)
                c = "0" if (ks == 0 and nu < 3) else f"v[{a}:{a+3}]"
                f = 4*ks + m
                A(f"{MF} v[{a}:{a+3}], a[{4*f}:{4*f+3}], {hreg(i)}, {c}")
                if m == 0 and hq:
                    nxt = hq[0][2][1]
                    if nxt == 16 and i == GR:
                        if "g2" in sys.argv and not TSG: TS()
                        cpoll_check(f"L_pR{L}", "v239", 8)
                        if "g2" in sys.argv and not TSG: TS()
                        for _ in range(BURSTR): put(hq.pop(0))
                    if nxt == 28 and i == GB:
                        if "g2" in sys.argv and not TSG: TS()
                        cpoll_check(f"L_pB{L}", "v239", 12)
                        if "g2" in sys.argv and not TSG: TS()
                        for _ in range(BURST): put(hq.pop(0))
                    if not ((nxt == 16 and i < GR) or (nxt == 28 and i < GB)): put(hq.pop(0))
                    elif nxt == 16 and w2late: put(w2late.pop(0))
                if m == 2 and hq and hq[0][2][1] == 16 and w2late and i < GR: put(w2late.pop(0))
                if m == 1 and hq:
                    for p in hq[0][0]: A(p)
                    hq[0][0].clear()
                if m == 2 and hq and hq[0][2][1] == POLLB and i >= GPB and "pollB" not in seen:
                    seen.add("pollB"); put(cpoll_load("v239", 12))
                if i == 40 and m == 0:
                    A("s_waitcnt lgkmcnt(0)\ns_barrier"); A.lg = []
                if i in (40, 41) and m != 1 and early:
                    for _ in range(2 if m == 2 else 1):
                        s_, mm = early.pop(0); r = 100 + 16*s_ + 4*mm
                        A(f"ds_read_b128 v[{r}:{r+3}], v15 offset:{4096*s_+1024*mm}", ("rd", s_, mm))
                if i in (42, 43):
                    k = 4*(i - 42) + m
                    if k % 2 == 0: A.wait_lg(("rd", 1, k // 2))
                    for z in (2*k, 2*k+1): A(f"v_add_f32 v{100+z}, v{100+z}, v{116+z}")
                if pendw and m == (3 if ks == 1 else 1):
                    if len(pendw) == 4: validate(nu - 1)
                    A(pendw.pop(0))
                if m == 3 and i + 1 < len(order):
                    if i + 1 == GF_B and not SENT: A.wait_vm("hB"); cflag(12)
                    if i + 1 == 26 and SENT:
                        A.wait_vm("hB")
                        A(f"s_sub_u32 s82, s74, {CF - C2 + 60*L}")
                        gflag("s82")
                    A.wait_vm(("h", i + 1))
            if ks == 7 and nu < 3:
                pendw = [f"ds_write_b128 v{12+nu}, v[{acc2(nu, m)}:{acc2(nu, m)+3}] offset:{1024*m}" for m in range(4)]
        assert not pendw and not hq and not w2late
        validate(3)
        TS()
        A("""s_waitcnt lgkmcnt(0)
             s_barrier""")
        A.lg = []
        for m in range(4):
            A(f"ds_read_b128 v[{116+4*m}:{119+4*m}], v15 offset:{8192+1024*m}", ("rd", m))
        if L == 0:
            A("""s_lshl_b32 s83, s35, 10
                 s_add_u32 s83, s83, s66""")
        for z in range(8):
            A(f"v_pk_add_f32 v[{64+2*z}:{65+2*z}], v[{64+2*z}:{65+2*z}], v[{100+2*z}:{101+2*z}]")
        for m in range(4):
            A.wait_lg(("rd", m))
            for z in (2*m, 2*m+1):
                A(f"v_pk_add_f32 v[{64+2*z}:{65+2*z}], v[{64+2*z}:{65+2*z}], v[{116+2*z}:{117+2*z}]")
        TSflush()

    layer(0)
    cur[0] = 1
    TS(0)
    tile_stats()
    A(f"""s_mov_b64 exec, s[56:57]
          buffer_store_dwordx2 v[48:49], v245, s[4:7], s83 offen
          s_mov_b64 exec, s[58:59]
          buffer_store_dwordx2 v[48:49], v245, s[4:7], s83 offen sc1
          s_mov_b64 exec, -1
          s_add_u32 s92, s66, 4096
          s_add_u32 s67, s67, {2*MB}
          s_add_u32 s93, s72, {X2 - XN}""")
    for z in range(8):
        A(f"v_cvt_pk_bf16_f32 v{80+z}, v{64+2*z}, v{65+2*z}")
    seq_consts()
    TS(1)
    vpoll("L_pS1", """buffer_load_dwordx4 v[52:55], v5, s[4:7], s66 offen sc1
                      buffer_load_dwordx4 v[56:59], v5, s[4:7], s92 offen sc1""", [53, 55, 57, 59])
    TS(2)
    A("""buffer_store_dwordx4 v[80:83], v1, s[4:7], s93 offen sc1
         v_add_f32 v48, v52, v56
         v_add_f32 v49, v54, v58""")
    qreduce(48, 49)
    A("""v_mov_b32 v49, v48
         buffer_store_dwordx4 v[84:87], v1, s[4:7], s93 offen offset:1024 sc1
         v_permlane32_swap_b32 v48, v49""")
    seq_pass1("v6")
    A(f"""s_add_u32 s68, s68, 131072
          s_add_u32 s69, s69, 131072
          s_add_u32 s70, s70, {2*MB}
          s_add_u32 s72, s72, {2*MB*NEWX}
          s_add_u32 s77, s77, {131072*NEWX}
          s_add_u32 s0, s0, {131072*NEWX}
          s_add_u32 s73, s73, {2*MB*NEWX}
          s_add_u32 s74, s74, 64
          s_add_u32 s75, s75, {2*MB*NEWX}
          s_add_u32 s76, s76, 64
          s_add_u32 s78, s78, {HL*NEWX}
          s_add_u32 s79, s79, {HL*NEWX}
          s_add_u32 s8, s52, {X2}
          s_addc_u32 s9, s53, 0
          s_lshl_b32 s82, s37, 5
          s_add_u32 s71, s81, s82
          s_add_u32 s80, s71, 16
          v_lshlrev_b32 v23, 4, v23""")
    if OUTLDS:
        A(f"""s_mul_i32 s82, s37, {16*144}
              s_add_u32 s82, s82, {IB}
              v_mul_u32_u24 v6, 144, v2
              v_lshl_add_u32 v6, v3, 4, v6
              v_add_u32 v6, s82, v6
              v_lshrrev_b32 v36, 3, v0
              v_and_b32 v37, 7, v0
              v_mul_u32_u24 v7, 144, v36
              v_lshl_add_u32 v7, v37, 4, v7
              v_add_u32 v7, s82, v7
              v_lshlrev_b32 v4, 16, v36
              v_lshl_add_u32 v4, v37, 4, v4
              v_add_u32 v4, s39, v4""")
    if not EARLY & 4: A.vm0()
    gflag("s68")
    if CPOS == 1: clear_h()
    if PF2 & 1: code_ahead(36)
    TS(3)
    TSflush()
    layer(1)

    if OUTLDS:
        for z in range(8):
            A(f"v_cvt_pk_bf16_f32 v{80+z}, v{64+2*z}, v{65+2*z}")
            if z == 3: A("ds_write_b128 v6, v[80:83]")
        A(f"""ds_write_b128 v6, v[84:87] offset:64
              s_mov_b32 s82, {8*65536}
              s_waitcnt lgkmcnt(0)
              ds_read_b128 v[80:83], v7
              ds_read_b128 v[84:87], v7 offset:{8*144}
              s_waitcnt lgkmcnt(1)
              buffer_store_dwordx4 v[80:83], v4, s[12:15], 0 offen {OUTF}
              s_waitcnt lgkmcnt(0)
              buffer_store_dwordx4 v[84:87], v4, s[12:15], s82 offen {OUTF}""")
    else:
        for z in range(8):
            A(f"v_cvt_pk_bf16_f32 v{80+z}, v{64+2*z}, v{65+2*z}")
            if z == 3: A(f"buffer_store_dwordx4 v[80:83], v4, s[12:15], 0 offen {OUTF}")
        A(f"buffer_store_dwordx4 v[84:87], v4, s[12:15], 0 offen offset:64 {OUTF}")
    if ts:
        cur[0] = 2
        TS(0); TSflush()
        A(f"""s_lshl_b32 s82, s40, 2
              s_add_u32 s82, s82, s37
              s_lshl_b32 s82, s82, 8
              s_add_u32 s82, s82, {TSO}
              v_lshlrev_b32 v36, 2, v0
              buffer_store_dword v190, v36, s[4:7], s82 offen""")
    if E2E:
        A(f"""s_waitcnt vmcnt(0)
              s_memrealtime s[94:95]
              s_lshl_b32 s82, s40, 2
              s_add_u32 s82, s82, s37
              s_lshl_b32 s82, s82, 3
              s_add_u32 s82, s82, {TSO}
              s_waitcnt lgkmcnt(0)
              v_mov_b32 v36, s100
              v_mov_b32 v37, s94
              s_mov_b64 exec, 1
              buffer_store_dwordx2 v[36:37], off, s[4:7], s82
              s_mov_b64 exec, -1""")
    A("""s_or_b32 s82, s40, s37
         s_cmp_lg_u32 s82, 0
         s_cbranch_scc1 L_exit""")
    gflag("0")
    A("""L_exit:
         s_endpgm""")
    for t in tails: A(t)
    A("""L_end:
         s_endpgm""")
    assert nts[0] <= 20
    return A


DOC = """;
; One persistent launch, 256 workgroups (one per CU) of four waves; generated by a script, hand-scheduled.
;
; Fourier mixing. The DFT matrices are constant parameters, so y = Re(F_seq LN(x) F_hid) is evaluated as a
; factorised transform whose small matrices are built in registers with v_cos/v_sin:
;   pass 1  radix 64 over s1 on a 64 x 64 tile (rows with one s2), Hermitian-packed result Y in the workspace
;   pass 2  radix 32 over s2 with the twiddles folded in, then both hidden stages, residual and LayerNorm on 8 full rows
; SwiGLU. Sixteen workgroups (a cluster) share 128 rows: each computes 88 hidden columns for all of them (weights
; re-laid out once into MFMA fragment order and streamed through LDS), then a 64 x 64 tile of the down projection
; (its weight slice stays in registers for both layers; K split over the waves, reduced through LDS).
; The tile rows are exactly the rows of the next pass 1, which needs only the row statistics of seven neighbours.
;
; Hand-offs. Data is stored write-through (sc1) and drained before its flag is stored; readers poll with sc1 loads and
; Cluster flags and statistics (self-tagged words) use plain stores only when all sixteen workgroups report the
; same XCC id in this launch, write-through stores otherwise. Every wait is bounded.
"""

HEAD = open("cdna_kernels/%s.s.ref" % NAME).read().split("; Override launch geometry")[0]

def emit(**kw):
    body = pad(gen(**kw).lines)
    if P('ALIGN', 0): body = align(body, P('ALIGN', 0))
    k = NAME + "_kernel"
    out = [HEAD.rstrip("\n"), DOC.rstrip("\n"), f"; @launch grid=(256,1,1) block=(256,1,1) lds={LDS_BYTES}",
           '.amdgcn_target "amdgcn-amd-amdhsa--gfx950"', ".text", f".globl {k}", ".p2align 8", f".type {k},@function", f"{k}:"]
    out += body
    out += ['.section .rodata,"a"', ".p2align 6", f".amdhsa_kernel {k}", "  .amdhsa_next_free_vgpr 512", "  .amdhsa_next_free_sgpr 102",
            "  .amdhsa_accum_offset 256", "  .amdhsa_group_segment_fixed_size 0", "  .amdhsa_kernarg_size 96", "  .amdhsa_user_sgpr_count 2",
            "  .amdhsa_user_sgpr_kernarg_segment_ptr 1", "  .amdhsa_system_sgpr_workgroup_id_x 1", "  .amdhsa_float_denorm_mode_32 3", ".end_amdhsa_kernel"]
    return "\n".join(out) + "\n"

if __name__ == "__main__":
    sys.stdout.write(emit(ts="ts" in sys.argv, slow="slow" in sys.argv))
```
